```python
import torch

def _softmax(x, axis=-1):
    return torch.softmax(x, dim=axis)
def _gelu(x):
    return torch.nn.functional.gelu(x, approximate="tanh")
def _silu(x):
    return torch.nn.functional.silu(x)
def _sigmoid(x):
    return torch.sigmoid(x)
def _layernorm(x, axis=-1, eps=1e-5):
    m = x.mean(dim=axis, keepdim=True)
    v = x.var(dim=axis, keepdim=True, unbiased=False)
    return (x - m) / torch.sqrt(v + eps)
def _scatter_add(tgt, idx, src, axis=0):
    return tgt.clone().index_add_(axis, idx, src)
def _segment_sum(src, seg, n):
    out = torch.zeros((n,) + src.shape[1:], dtype=src.dtype)
    return out.index_add_(0, seg, src)
def _pad(x, pw):
    flat = tuple(v for pair in reversed(pw) for v in pair)
    return torch.nn.functional.pad(x, flat)

kernel_name = 'concat_heads__spectral_fnet__grouped_kv_mqa__prompt'

def setup_inputs():

    _w = (lambda a: (lambda t: t.to(torch.bfloat16) if t.is_floating_point() else t)(torch.as_tensor(a)))
    def _A_setup():
        B, S, D = 1, 2048, 1024
        ns = torch.arange(S)[:, None] * torch.arange(S)[None, :]
        nd = torch.arange(D)[:, None] * torch.arange(D)[None, :]
        Ws_re = torch.cos(-2.0 * torch.pi * ns / S).to(float)
        Ws_im = torch.sin(-2.0 * torch.pi * ns / S).to(float)
        Wd_re = torch.cos(-2.0 * torch.pi * nd / D).to(float)
        Wd_im = torch.sin(-2.0 * torch.pi * nd / D).to(float)
        return {
            "x": _w((lambda *s: torch.randn(*s, dtype=torch.bfloat16) * 0.05)(B, S, D)),
            "dft_seq_re": _w(Ws_re),
            "dft_seq_im": _w(Ws_im),
            "dft_hid_re": _w(Wd_re),
            "dft_hid_im": _w(Wd_im),
        }
    _A_in = _A_setup()

    def _B_setup():
        B, S, D, H = 1, 2048, 1024, 32
        Dh = D // H
        return {
            "x": _w((lambda *s: torch.randn(*s, dtype=torch.bfloat16) * 0.05)(B, S, D)),
            "wq": _w((lambda *s: torch.randn(*s, dtype=torch.bfloat16) * 3.2)(D, H * Dh)),
            "wk": _w((lambda *s: torch.randn(*s, dtype=torch.bfloat16) * 3.2)(D, Dh)),
            "wv": _w((lambda *s: torch.randn(*s, dtype=torch.bfloat16) * 0.4)(D, Dh)),
            "wo": _w((lambda *s: torch.randn(*s, dtype=torch.bfloat16) * 0.4)(H * Dh, D)),
        }
    _B_in = _B_setup()

    return {
        "A_x": _A_in["x"],
        "A_dft_seq_re": _A_in["dft_seq_re"],
        "A_dft_seq_im": _A_in["dft_seq_im"],
        "A_dft_hid_re": _A_in["dft_hid_re"],
        "A_dft_hid_im": _A_in["dft_hid_im"],
        "B_x": _B_in["x"],
        "B_wq": _B_in["wq"],
        "B_wk": _B_in["wk"],
        "B_wv": _B_in["wv"],
        "B_wo": _B_in["wo"],
    }

def reference(A_x, A_dft_seq_re, A_dft_seq_im, A_dft_hid_re, A_dft_hid_im, B_x, B_wq, B_wk, B_wv, B_wo):
    def _A_ref(x, dft_seq_re, dft_seq_im, dft_hid_re, dft_hid_im):
        a = torch.einsum("bsd,ed->bse", x, dft_hid_re)
        b = torch.einsum("bsd,ed->bse", x, dft_hid_im)
        y = torch.einsum("ts,bse->bte", dft_seq_re, a) - torch.einsum("ts,bse->bte", dft_seq_im, b)
        return y

    def _B_ref(x, wq, wk, wv, wo):
        B, S, D = x.shape
        H = 32
        Dh = D // H
        q = (lambda x, *d: x.permute(*d))((x @ wq).reshape(B, S, H, Dh), 0, 2, 1, 3)
        k = x @ wk
        v = x @ wv
        scores = torch.einsum("bhqd,bkd->bhqk", q, k) * (Dh ** -0.5)
        p = _softmax(scores, axis=-1)
        o = torch.einsum("bhqk,bkd->bhqd", p, v)
        return (lambda x, *d: x.permute(*d))(o, 0, 2, 1, 3).reshape(B, S, H * Dh) @ wo

    a = _A_ref(A_x, A_dft_seq_re, A_dft_seq_im, A_dft_hid_re, A_dft_hid_im)
    b = _B_ref(B_x, B_wq, B_wk, B_wv, B_wo)
    return torch.concatenate([a, b], axis=-1)
```

```python
import numpy as np
def bf16_bits(x):
    x=np.asarray(x,dtype=np.float32); u=x.view(np.uint32).astype(np.uint64)
    r=((u+0x7FFF+((u>>16)&1))>>16).astype(np.uint16); return r
def bf16_val(u): return (u.astype(np.uint32)<<16).view(np.float32)
def pi_(j):
    b=lambda n:(j>>n)&1
    return 16*b(2)+8*b(4)+4*b(3)+(j&3)
def piinv(k):
    for j in range(32):
        if pi_(j)==k: return j
L=np.arange(64); J=L&31; H=L>>5; JJ=np.arange(8)
def cs(num,den):
    a=2*np.pi*(np.asarray(num)%den)/den
    c=np.cos(a); s=np.sin(a)
    c=np.where(np.abs(c)<1e-12,0.0,c); s=np.where(np.abs(s)<1e-12,0.0,s)
    return c,s
def T1():
    T=np.zeros((2,4,64,8))
    for nb in range(2):
        for k in range(4):
            for l in range(64):
                j=l&31;h=l>>5; sg=16*nb+(j>>1); c=j&1
                s1=32*(k>>1)+16*(k&1)+8*h+JJ
                if sg>=1:
                    C,S=cs(sg*s1,64); T[nb,k,l]=C if c==0 else -S
                else:
                    T[nb,k,l]=1.0 if c==0 else cs(32*s1,64)[0]
    return T
def trow(sg,tb):
    if sg>=1: return sg+64*tb
    return 64*tb if tb<16 else 32+64*(tb-16)
def T2():
    T=np.zeros((32,2,4,64,8))
    for sg in range(32):
        for nb in range(2):
            for k in range(4):
                for l in range(64):
                    j=l&31;h=l>>5; tb=16*nb+(j>>1); cp=j&1; c=k>>1
                    s2=16*(k&1)+8*h+JJ
                    t=trow(sg,tb)
                    C,S=cs(t*s2,2048); Cr,Ci=C,-S
                    if sg>=1:
                        v={(0,0):Cr,(0,1):-Ci,(1,0):Ci,(1,1):Cr}[(cp,c)]
                    else:
                        use = 0 if tb<16 else 1
                        if c!=use: v=np.zeros(8)
                        elif tb==0 and cp==1: v=cs(1024*s2,2048)[0]
                        else: v=Ci if cp else Cr
                    T[sg,nb,k,l]=v
    return T
def T3():
    T=np.zeros((2,4,64,8))
    for nb in range(2):
        for k in range(4):
            for l in range(64):
                j=l&31;h=l>>5; k1=pi_(j); c=k>>1
                d1=16*(k&1)+8*h+JJ
                C,S=cs(k1*d1,32); Cr,Ci=C,-S
                T[nb,k,l]={(0,0):Cr,(0,1):-Ci,(1,0):Ci,(1,1):Cr}[(nb,c)]
    return T
def TW():
    T=np.zeros((8,64,4),np.float32)
    for rho in range(32):
        r=rho&15
        for l in range(64):
            j=l&31;h=l>>5; d2=16*(r>>3)+8*h+(r&7); k1=pi_(j)
            C,S=cs(d2*k1,1024)
            T[rho>>2,l,rho&3]=C if rho<16 else S
    return T
def TX():
    T=np.zeros((64,4),np.uint32)
    for l in range(64):
        j=l&31;h=l>>5
        q=(2*pi_(j)+h+1)%64
        T[l,0]=4*(32*(q&1)+piinv(q>>1))
        T[l,1]=64*pi_(l&15)+16*(l>>4)
        T[l,2]=1984-512-64*pi_(l&15)+32*(1-(l>>5))+16*((l>>4)&1)
    return T
def blob():
    parts=[bf16_bits(T1()).tobytes(), bf16_bits(T3()).tobytes(), TW().tobytes(), TX().tobytes().ljust(1024,b'\0'), bf16_bits(T2()).tobytes()]
    return b''.join(parts)
OFF_T1=0; OFF_T3=8192; OFF_TW=16384; OFF_TX=24576; OFF_T2=25600; TBL_SIZE=25600+262144

def mfma32(A,B,C=None):
    M=np.zeros((32,32))
    for h in range(2): M+=A[32*h:32*h+32]@B[32*h:32*h+32].T
    D=np.zeros((64,16))
    for r in range(16):
        for h in range(2): D[32*h:32*h+32,r]=M[(r&3)+8*(r>>2)+4*h,:]
    return D if C is None else D+C
def tr_read(img,addr):
    out=np.zeros((64,4))
    for g in range(4):
        blk=np.array([img[addr[16*g+i]//2:addr[16*g+i]//2+4] for i in range(16)])
        tile=blk.reshape(4,16)
        for i in range(16): out[16*g+i]=tile[:,i]
    return out
def rb(x): return bf16_val(bf16_bits(x)).astype(np.float64)
rr=(L>>2)&3; G=(L>>4)&1; b2=L&1; b3=(L>>1)&1
def fft_bases():
    return [ (8*H+rr)*128+(2*G+b2)*32+((c^(rr>>1))*16)+8*b3 for c in range(2)]
def fft8(img,T):
    base=fft_bases(); A=[]
    for k in range(4):
        a=[tr_read(img,base[k>>1]+(k&1)*2048+e*512) for e in range(2)]
        A.append(np.concatenate(a,axis=1))
    D=[None,None]
    for nb in range(2):
        for k in range(4): D[nb]=mfma32(A[k],T[nb,k],D[nb])
    return D
def gather(src,voff,soff,step):
    img=np.zeros(2048)
    for n in range(4):
        for l in range(64):
            a=(voff[l]+soff+n*step)//2
            img[(n*1024+l*16)//2:(n*1024+l*16)//2+8]=src[a:a+8]
    return img
def store4(dst,base,D):
    for nb in range(2):
        for i in range(2):
            for l in range(64):
                a=(base+(2*nb+i)*1024+16*l)//2
                dst[a:a+8]=rb(D[nb][l,8*i:8*i+8])
def emulate(x):
    t1=rb(T1()); t2=rb(T2()); t3=rb(T3()); tw=TW().astype(np.float64); tx=TX()
    cL=(L&1)^((L>>4)&1); o=(L>>1)&3
    voffP1=cL*(2<<20)+(L>>3)*65536+o*16
    voffZ=(L>>3)*4096+(o>>1)*1024+(o&1)*512+cL*16
    xs=x.reshape(-1); z1=np.zeros(2<<20); z2=np.zeros(2<<20); y=np.full((2048,1024),np.nan)
    for j in range(32):
        for cb in range(32):
            img=gather(xs,voffP1,j*2048+cb*64,512*1024)
            store4(z1,(cb*32+j)*4096,fft8(img,t1))
    for sg in range(32):
        for cb in range(32):
            img=gather(z1,voffZ,cb*131072+(sg>>4)*2048+(sg&15)*32,32768)
            store4(z2,(sg*32+cb)*4096,fft8(img,t2[sg]))
    cosT=np.concatenate([tw[m] for m in range(4)],axis=1); sinT=np.concatenate([tw[m] for m in range(4,8)],axis=1)
    for sg in range(32):
        for tb in range(32):
            img=gather(z2,voffZ,sg*131072+(tb>>4)*2048+(tb&15)*32,32768)
            passes=[(trow(sg,tb),None)] if (sg,tb)!=(0,0) else [(0,0),(1024,1)]
            for t,sp in passes:
                base=fft_bases()
                if sp==1: base=base[::-1]
                A=[np.concatenate([tr_read(img,base[k>>1]+(k&1)*2048+e*512) for e in range(2)],axis=1) for k in range(4)]
                if sp is not None: A[2]=A[2]*0; A[3]=A[3]*0
                D=[None,None]
                for nb in range(2):
                    for k in range(4): D[nb]=mfma32(A[k],t3[nb,k],D[nb])
                re=rb(D[0]*cosT+D[1]*sinT); im=rb(D[1]*cosT-D[0]*sinT)
                Y=None
                for kp in range(2):
                    Y=mfma32(re[:,8*kp:8*kp+8],t3[0,kp],Y); Y=mfma32(im[:,8*kp:8*kp+8],t3[0,2+kp],Y)
                nbr=Y[tx[:,0]//4,0]
                val=np.concatenate([Y,nbr[:,None]],axis=1)
                F=Y.copy(); Mi=np.zeros((64,16))
                for m in range(8): Mi[:,2*m]=val[:,16-2*m]; Mi[:,2*m+1]=val[:,15-2*m]
                def swap16(X):
                    a=X[:,:8].copy(); b=X[:,8:].copy()
                    a2=a.copy(); b2_=b.copy()
                    for g in (0,2):
                        a2[16*(g+1):16*(g+2)]=b[16*g:16*(g+1)]
                        b2_[16*g:16*(g+1)]=a[16*(g+1):16*(g+2)]
                    return a2,b2_
                fa,fb=swap16(F); ma,mb=swap16(Mi)
                tm=(2048-t)%2048
                for l in range(64):
                    p=tx[l,1]//2; y[t,p:p+8]=fa[l]; y[t,p+256:p+264]=fb[l]
                for l in range(64):
                    p=tx[l,2]//2; y[tm,p+256:p+264]=ma[l]; y[tm,p:p+8]=mb[l]
    return z1,z2,rb(y)
if __name__=="__main__":
    rng=np.random.default_rng(0)
    x=rb(rng.standard_normal((2048,1024))*0.05)
    z1,z2,y=emulate(x)
    ref=np.fft.fft2(x).real
    print("nan",np.isnan(y).sum(),"max err",np.abs(y-ref).max(),"rms",np.sqrt(((y-ref)**2).mean()),"std",ref.std())
    print(len(blob()),TBL_SIZE)
```

```python
import sys, struct
import tables as TB

NAME = "concat_heads__spectral_fnet__grouped_kv_mqa__prompt"

class Opt:
    stamps = False
    codepf = True
    spin = 1 << 20
    out_sc = ""
    force_fb = False
    off = 90.0

def f2u(x): return struct.unpack("<I", struct.pack("<f", x))[0]
def vr(b, n): return f"v[{b}:{b+n-1}]"
def ar(b, n): return f"a[{b}:{b+n-1}]"
def sr(b, n): return f"s[{b}:{b+n-1}]"

WS_KV = 0
WS_FL = 0x40000
FL_EPOCH = WS_FL
FL_KV = WS_FL + 0x1000
FL_Z1 = WS_FL + 0x2000
FL_Z2 = WS_FL + 0x3000
FL_O = WS_FL + 0x4000
WS_O = 0x100000
WS_Z1 = 0x800000
WS_Z2 = 0xC00000
WS_ST = 0x1000000
L_W = 0; L_X = 96 * 1024; L_MISC = 144 * 1024
sW, sX, sJ, sRB, sG, sC0 = 30, 31, 32, 33, 34, 35
GX, GW, WS, OUT, FD, TBL, AD = 36, 40, 44, 48, 52, 56, 60
sTAG, sC, sOffW, sBaseX, sTX, sStepX, sMaskX, sM0W, sM0X = 64, 65, 66, 67, 68, 69, 70, 71, 72
sDA, sDB, sSlot, sSpec, sFlagIt, sMode = 74, 75, 76, 77, 78, 79
sT0, sT1, sT2, sT3, sT4, sT5 = 80, 81, 82, 83, 84, 85
sNextB = 86; sCB = 87; sFlagOff = 88; sPollOff = 89
aM0, aDM0, aOff, aDOff, aAdv, aMask = 90, 91, 92, 93, 94, 95
fTab, fOff, fStep, fSt = 96, 97, 98, 99
sOff2 = 73; sSpin = 100; sRow = 101
S = [0, 16, 32, 48]; O = [64, 80]; Lr = [96, 100]; M = [104, 120]; Q = [136, 144]; K = [152, 160]; V = [168, 176]
ONES = 184; IDX = 188; vCur = 189; vNext = 190; vAD = 191
vFD = 196
vFB = 228
v16 = 230; vFG = 231; vZ = 232; vA = 233; vB = 234; vOW = 238; vOX = 242
vPoll = 244; vP4 = 245
vDummy = 246
vL = 250; vT0 = 251; vT1 = 252; vT2 = 253; vT3 = 254; vT4 = 255
vTX = 184

class G:
    def __init__(self, opt):
        self.o = []; self.opt = opt; self.nst = 0; self.uid = 0
    def e(self, s):
        for l in s.strip("\n").split("\n"):
            l = l.strip()
            if l: self.o.append(("" if l.endswith(":") else "  ") + l)
    def lab(self, p):
        self.uid += 1; return f"{p}_{self.uid}"
    def stamp(self, name):
        if not self.opt.stamps: return
        k = self.nst; self.nst += 1
        self.opt.names.append(name)
        self.e(f"""
        s_memrealtime s[6:7]
        s_waitcnt lgkmcnt(0)
        v_mov_b32 v195, s6
        buffer_store_dword v195, off, {sr(WS,4)}, s8 offset:{4*k}
        """)
    def srd(self, d, lo, size):
        self.e(f"""
        s_mov_b32 s{d}, s{lo}
        s_and_b32 s{d+1}, s{lo+1}, 0xffff
        s_mov_b32 s{d+2}, {size}
        s_mov_b32 s{d+3}, 0x20000
        """)
    def copy_srd(self, d, s):
        self.e(f"s_mov_b64 s[{d}:{d+1}], s[{s}:{s+1}]\ns_mov_b64 s[{d+2}:{d+3}], s[{s+2}:{s+3}]")
    def issue_W(self):
        L = [f"s_mov_b32 m0, s{sM0W}", f"s_add_u32 s{sM0W}, s{sM0W}, 16384"]
        L += [f"buffer_load_dwordx4 v{vOW+n}, {sr(GW,4)}, s{sOffW} offen offset:{1024*n} lds" for n in range(4)]
        L += [f"s_add_u32 s{sOffW}, s{sOffW}, 0x20000", f"s_and_b32 s{sOffW}, s{sOffW}, 0x1fffff",
              f"s_cmp_ge_u32 s{sM0W}, {L_X}", f"s_cselect_b32 s{sT0}, {L_X}, 0", f"s_sub_u32 s{sM0W}, s{sM0W}, s{sT0}"]
        return L
    def issue_X(self):
        L = [f"s_mov_b32 m0, s{sM0X}", f"s_add_u32 s{sT1}, s{sBaseX}, s{sTX}"]
        L += [f"buffer_load_dwordx4 v{vOX+n}, {sr(GX,4)}, s{sT1} offen offset:{1024*n} sc1 lds" for n in range(2)]
        L += [f"s_add_u32 s{sTX}, s{sTX}, s{sStepX}", f"s_and_b32 s{sTX}, s{sTX}, s{sMaskX}",
              f"s_add_u32 s{sM0X}, s{sM0X}, 8192", f"s_cmp_ge_u32 s{sM0X}, {L_MISC}",
              f"s_cselect_b32 s{sT0}, {L_MISC-L_X}, 0", f"s_sub_u32 s{sM0X}, s{sM0X}, s{sT0}"]
        return L
    def flag(self, tmp, soff):
        return f"""
        v_mov_b32 v{tmp}, s{sTAG}
        s_mov_b64 exec, 1
        buffer_store_dword v{tmp}, off, {sr(WS,4)}, s{soff} sc1
        s_mov_b64 exec, -1
        """
    def poll_check(self, nreg, reg, retry_load):
        lt = self.lab("Lpoll"); ld = self.lab("Lpolld")
        self.e(f"s_mov_b32 s{sSpin}, {self.opt.spin}")
        self.e(f"{lt}:")
        self.e(f"v_cmp_ne_u32 vcc, s{sTAG}, v{reg}")
        for i in range(1, nreg):
            self.e(f"v_cmp_ne_u32 s[{sT0}:{sT0+1}], s{sTAG}, v{reg+i}\ns_or_b64 vcc, vcc, s[{sT0}:{sT0+1}]")
        self.e(f"""
        s_cmp_eq_u64 vcc, 0
        s_cbranch_scc1 {ld}
        s_sub_u32 s{sSpin}, s{sSpin}, 1
        s_cbranch_scc1 {ld}
        s_sleep 1
        {retry_load}
        s_waitcnt vmcnt(0)
        s_branch {lt}
        {ld}:
        """)

def gen(opt):
    g = G(opt); e = g.e
    opt.names = []
    e(f"{NAME}_kernel:")
    e(f"""
    s_cmp_ge_u32 s2, 256
    s_cbranch_scc1 Lend
    s_load_dwordx16 s[4:19], s[0:1], 0
    s_load_dwordx8 s[20:27], s[0:1], 64
    s_load_dwordx2 s[28:29], s[0:1], 96
    v_lshrrev_b32 v1, 6, v0
    v_and_b32 v{vL}, 63, v0
    v_readfirstlane_b32 s{sW}, v1
    s_and_b32 s{sX}, s2, 7
    s_lshr_b32 s{sJ}, s2, 3
    s_and_b32 s{sT0}, s{sJ}, 3
    s_lshl_b32 s{sRB}, s{sX}, 2
    s_add_u32 s{sRB}, s{sRB}, s{sT0}
    s_lshr_b32 s{sG}, s{sJ}, 2
    s_lshl_b32 s{sT0}, s{sT0}, 1
    s_add_u32 s{sT0}, s{sT0}, s{sG}
    s_lshl_b32 s{sT0}, s{sT0}, 1
    s_and_b32 s{sC0}, s{sT0}, 15
    s_lshl_b32 s{sCB}, s{sX}, 2
    s_add_u32 s{sCB}, s{sCB}, s{sW}
    """)
    e(f"""
    v_lshlrev_b32 v{v16}, 4, v{vL}
    v_lshrrev_b32 v1, 5, v{vL}
    v_lshrrev_b32 v2, 4, v{vL}
    v_bfe_u32 v3, v{vL}, 2, 2
    v_and_b32 v4, 1, v{vL}
    v_bfe_u32 v5, v{vL}, 1, 1
    v_and_b32 v6, 1, v2
    v_and_b32 v7, 31, v{vL}
    v_lshlrev_b32 v{vP4}, 2, v7
    """)
    e(f"""
    v_xor_b32 v8, v7, v1
    v_lshlrev_b32 v8, 4, v8
    v_lshl_or_b32 v8, v1, 11, v8
    """)
    for n in range(8):
        e(f"v_xor_b32 v{128+n}, {32*n}, v8")
        c = n * 4096 - 1024 * (n & 3)
        if c: e(f"v_add_u32 v{128+n}, {c}, v{128+n}")
    e(f"""
    v_and_b32 v9, 15, v{vL}
    v_lshlrev_b32 v10, 2, v2
    v_xor_b32 v10, v10, v9
    v_lshlrev_b32 v10, 4, v10
    v_lshl_or_b32 v{vOW}, v2, 11, v10
    v_add_u32 v{vOW+1}, 7168, v{vOW}
    v_add_u32 v{vOW+2}, 14336, v{vOW}
    v_add_u32 v{vOW+3}, 21504, v{vOW}
    """)
    e(f"""
    v_lshrrev_b32 v11, 3, v{vL}
    v_and_b32 v12, 7, v{vL}
    v_xor_b32 v12, v12, v2
    v_lshlrev_b32 v12, 4, v12
    v_lshl_or_b32 v{vOX}, v11, 11, v12
    v_xor_b32 v{vOX+1}, 64, v{vOX}
    v_add_u32 v{vOX+1}, {16384-1024}, v{vOX+1}
    """)
    e(f"""
    s_lshl_b32 s{sM0W}, s{sW}, 12
    s_lshl_b32 s{sM0X}, s{sW}, 11
    s_add_u32 s{sM0X}, s{sM0X}, {L_X}
    s_lshl_b32 s{sOffW}, s{sC0}, 17
    s_lshl_b32 s{sT0}, s{sW}, 15
    s_add_u32 s{sOffW}, s{sOffW}, s{sT0}
    s_lshl_b32 s{sT0}, s{sG}, 8
    s_add_u32 s{sOffW}, s{sOffW}, s{sT0}
    s_lshl_b32 s{sBaseX}, s{sRB}, 17
    s_lshl_b32 s{sT0}, s{sW}, 15
    s_add_u32 s{sBaseX}, s{sBaseX}, s{sT0}
    s_lshl_b32 s{sTX}, s{sC0}, 7
    s_movk_i32 s{sStepX}, 128
    s_movk_i32 s{sMaskX}, 2047
    """)
    e(f"""
    s_lshl_b32 s{sT2}, s{sW}, 13
    s_add_u32 s{sT2}, s{sT2}, {112*1024}
    s_mov_b32 s{sT3}, {48*1024}
    s_cmp_eq_u32 s{sW}, 1
    s_cselect_b32 s{sT3}, {144*1024}, s{sT3}
    s_cmp_eq_u32 s{sW}, 2
    s_cselect_b32 s{sT3}, {80*1024}, s{sT3}
    s_cmp_eq_u32 s{sW}, 3
    s_cselect_b32 s{sT3}, {64*1024}, s{sT3}
    s_lshr_b32 s{sT0}, s{sG}, 1
    s_lshl_b32 s{sT0}, s{sT0}, 15
    s_lshl_b32 s{sT4}, s{sRB}, 17
    s_add_u32 s{sT4}, s{sT4}, s{sT0}
    s_lshl_b32 s{sT0}, s{sW}, 9
    s_add_u32 s{sT4}, s{sT4}, s{sT0}
    s_lshl_b32 s{sT5}, s{sW}, 14
    s_getpc_b64 s[{TBL}:{TBL+1}]
    Lpc0:
    s_add_u32 s{TBL}, s{TBL}, fn_tables@rel32@lo+4
    s_addc_u32 s{TBL+1}, s{TBL+1}, fn_tables@rel32@hi+12
    s_and_b32 s{TBL+1}, s{TBL+1}, 0xffff
    s_mov_b32 s{TBL+2}, {TB.TBL_SIZE}
    s_mov_b32 s{TBL+3}, 0x20000
    s_waitcnt lgkmcnt(0)
    s_load_dword s{sTAG}, s[28:29], {FL_EPOCH}
    """)
    g.srd(GX, 14, 4194304)
    e(f"""
    s_bitcmp1_b32 s{sG}, 0
    s_cselect_b32 s{AD}, s20, s18
    s_cselect_b32 s{AD+1}, s21, s19
    s_and_b32 s{AD+1}, s{AD+1}, 0xffff
    s_mov_b32 s{AD+2}, 65536
    s_mov_b32 s{AD+3}, 0x20000
    s_mov_b32 m0, s{sT2}
    """)
    g.srd(GW, 16, 2097152)
    for n in range(8):
        if n == 4: e(f"s_add_u32 m0, s{sT2}, 4096\ns_nop 0")
        e(f"buffer_load_dwordx4 v{128+n}, {sr(GX,4)}, s{sT4} offen offset:{1024*(n&3)} lds")
    for q in range(4):
        e(f"s_add_u32 m0, s{sT3}, {4096*q}")
        e(f"s_add_u32 s{sT0}, s{sT5}, {4096*q}")
        for n in range(4):
            e(f"buffer_load_dwordx4 v{v16}, {sr(AD,4)}, s{sT0} offen offset:{1024*n} lds")
    for f in (g.issue_W, g.issue_X, g.issue_W, g.issue_X, g.issue_W):
        e("\n".join(f()))
    g.srd(WS, 28, 0x10000000)
    if opt.stamps:
        e(f"""
        s_lshl_b32 s8, s2, 2
        s_add_u32 s8, s8, s{sW}
        s_lshl_b32 s8, s8, 7
        s_add_u32 s8, s8, {WS_ST}
        """)
    g.stamp("issued")
    if opt.codepf:
        lb = g.lab("Lnopf")
        e(f"""
        s_lshl_b32 s{sT0}, s{sJ}, 2
        s_add_u32 s{sT0}, s{sT0}, s{sW}
        s_lshl_b32 s{sT0}, s{sT0}, 10
        s_cmp_ge_u32 s{sT0}, Lcode_end-Lpc1
        s_cbranch_scc1 {lb}
        s_getpc_b64 s[10:11]
        Lpc1:
        v_add_u32 v13, s{sT0}, v{v16}
        global_load_dwordx4 {vr(vDummy,4)}, v13, s[10:11]
        {lb}:
        """)
    g.srd(OUT, 24, 8388608)
    g.srd(FD, 4, 4194304)
    e(f"""
    v_xor_b32 v13, v2, v9
    v_lshlrev_b32 v13, 4, v13
    v_lshl_or_b32 v13, v9, 9, v13
    v_add_u32 v136, s{sT2}, v13
    v_xor_b32 v14, 64, v13
    v_add_u32 v137, s{sT2}, v14
    v_xor_b32 v14, 128, v13
    v_add_u32 v138, s{sT2}, v14
    v_xor_b32 v14, 192, v13
    v_add_u32 v139, s{sT2}, v14
    """)
    e(f"""
    v_lshl_add_u32 v13, v2, 3, v3
    v_lshlrev_b32 v13, 6, v13
    v_add_u32 v13, s{sT3}, v13
    v_and_b32 v14, 3, v{vL}
    v_lshlrev_b32 v14, 4, v14
    v_lshlrev_b32 v15, 5, v4
    v_lshl_or_b32 v15, v5, 3, v15
    s_bitcmp1_b32 s{sG}, 0
    s_cselect_b64 vcc, -1, 0
    s_cselect_b32 s{sT0}, 16, 8
    v_cndmask_b32 v14, v14, v15, vcc
    v_add_u32 v140, v13, v14
    v_add_u32 v141, s{sT0}, v140
    """)
    e(f"""
    v_lshl_add_u32 v14, v1, 5, v9
    v_lshlrev_b32 v14, 4, v14
    v_lshl_or_b32 v14, v6, 10, v14
    v_cndmask_b32 v142, v14, v{v16}, vcc
    """)
    e(f"""
    v_lshl_add_u32 v13, v1, 4, v3
    v_xor_b32 v14, s{sW}, v3
    v_lshlrev_b32 v14, 1, v14
    v_add_u32 v14, v14, v4
    v_lshl_add_u32 v14, v14, 1, v6
    v_lshl_add_u32 v14, v14, 1, v5
    v_lshlrev_b32 v14, 3, v14
    v_lshl_or_b32 v{vA}, v13, 8, v14
    """)
    e(f"""
    v_bfe_u32 v13, v{vL}, 1, 3
    v_lshlrev_b32 v14, 1, v1
    v_xor_b32 v13, v13, v14
    v_lshlrev_b32 v13, 4, v13
    v_lshl_or_b32 v13, v7, 7, v13
    v_add_u32 v{vB}, {L_X}, v13
    v_xor_b32 v{vB+1}, 16, v{vB}
    v_xor_b32 v{vB+2}, 64, v{vB}
    v_xor_b32 v{vB+3}, 80, v{vB}
    """)
    e(f"""
    v_lshl_add_u32 v13, v1, 3, v3
    v_lshl_add_u32 v14, v6, 1, v4
    v_lshrrev_b32 v15, 1, v3
    v_lshl_add_u32 v14, v14, 1, v15
    v_lshl_add_u32 v14, v14, 1, v5
    v_lshlrev_b32 v14, 3, v14
    v_lshl_or_b32 v13, v13, 7, v14
    s_lshl_b32 s{sT0}, s{sW}, 12
    s_add_u32 s{sT0}, s{sT0}, {L_MISC}
    v_add_u32 v{vFB}, s{sT0}, v13
    v_xor_b32 v{vFB+1}, 16, v{vFB}
    """)
    e(f"""
    v_xor_b32 v13, v4, v6
    v_bfe_u32 v14, v{vL}, 1, 2
    v_lshlrev_b32 v15, 4, v14
    v_lshl_or_b32 v15, v11, 16, v15
    v_lshl_or_b32 v{vFG}, v13, 21, v15
    v_lshlrev_b32 v15, 9, v14
    v_lshl_or_b32 v15, v11, 12, v15
    v_lshl_or_b32 v{vZ}, v13, 4, v15
    """)
    e(f"""
    s_waitcnt lgkmcnt(0)
    s_mul_i32 s{sTAG}, s{sTAG}, 0x9e3779b1
    s_add_u32 s{sTAG}, s{sTAG}, 0x7f4a7c15
    s_waitcnt vmcnt(16)
    """)
    g.stamp("kv landed")
    for ks in range(8):
        e(f"ds_read_b128 {vr(4*ks,4)}, v{136+(ks&3)} offset:{256*(ks>>2)}")
        for b in range(2):
            for ee in range(2):
                e(f"ds_read_b64_tr_b16 {vr(64+8*ks+4*b+2*ee,2)}, v{140+b} offset:{2048*ks+256*ee}")
    e(f"s_bitcmp1_b32 s{sG}, 0\ns_cbranch_scc1 Lkv_v")
    for var in range(2):
        if var == 1: e("Lkv_v:")
        for ks in range(8):
            if ks == 0: e("s_waitcnt lgkmcnt(15)")
            if ks == 5: e("s_waitcnt lgkmcnt(0)")
            for b in range(2):
                w = vr(64 + 8 * ks + 4 * b, 4); x = vr(4 * ks, 4); d = vr(32 + 4 * b, 4)
                c = "0" if ks == 0 else d
                e(f"v_mfma_f32_16x16x32_bf16 {d}, {w}, {x}, {c}" if var == 0 else f"v_mfma_f32_16x16x32_bf16 {d}, {x}, {w}, {c}")
        if var == 0: e("s_branch Lkv_j")
    e(f"""
    Lkv_j:
    s_cmp_eq_u32 s{sW}, 3
    s_cselect_b32 s{sT0}, s{sT2}, s{sT3}
    v_add_u32 v13, s{sT0}, v{v16}
    s_cmp_eq_u32 s{sW}, 0
    s_cbranch_scc1 Lkv_nw
    s_nop 4
    ds_write_b128 v13, v[32:35]
    ds_write_b128 v13, v[36:39] offset:1024
    s_waitcnt lgkmcnt(0)
    Lkv_nw:
    s_barrier
    s_cmp_lg_u32 s{sW}, 0
    s_cbranch_scc1 Lkv_done
    v_add_u32 v13, {80*1024}, v{v16}
    v_add_u32 v14, {136*1024}, v{v16}
    ds_read_b128 v[40:43], v13
    ds_read_b128 v[44:47], v13 offset:1024
    ds_read_b128 v[48:51], v14
    ds_read_b128 v[52:55], v14 offset:1024
    ds_read_b128 v[56:59], v14 offset:8192
    ds_read_b128 v[60:63], v14 offset:9216
    s_lshl_b32 s{sT0}, s{sRB}, 13
    s_lshr_b32 s{sT1}, s{sG}, 2
    s_lshl_b32 s{sT1}, s{sT1}, 12
    s_add_u32 s{sT0}, s{sT0}, s{sT1}
    s_bfe_u32 s{sT1}, s{sG}, 0x10001
    s_lshl_b32 s{sT2}, s{sT1}, 8
    s_lshl_b32 s{sT1}, s{sT1}, 10
    s_add_u32 s{sT1}, s{sT1}, 2048
    s_bitcmp1_b32 s{sG}, 0
    s_cselect_b32 s{sT1}, s{sT1}, s{sT2}
    s_add_u32 s{sT0}, s{sT0}, s{sT1}
    """)
    for p in range(3):
        e(f"s_waitcnt lgkmcnt({4-2*p})")
        for i in range(4):
            e(f"v_pk_add_f32 {vr(32+2*i,2)}, {vr(32+2*i,2)}, {vr(40+8*p+2*i,2)}")
    for i in range(4):
        e(f"v_cvt_pk_bf16_f32 v{40+i}, v{32+2*i}, v{33+2*i}")
    e(f"""
    s_bitcmp1_b32 s{sG}, 0
    s_cbranch_scc0 Lkv_st
    v_permlane16_swap_b32 v40, v42
    v_permlane16_swap_b32 v41, v43
    Lkv_st:
    buffer_store_dwordx4 v[40:43], v142, {sr(WS,4)}, s{sT0} offen sc1
    Lkv_done:
    """)
    for f in (g.issue_X, g.issue_W, g.issue_X, g.issue_W, g.issue_X):
        e("\n".join(f()))
    e(f"""
    s_cmp_eq_u32 s{sW}, 0
    s_cselect_b32 s{sFlagIt}, 1, 99
    s_mov_b32 s{sSpec}, 0xf000
    s_mov_b32 s{sMode}, 0
    s_lshl_b32 s{sFlagOff}, s{sRB}, 3
    s_add_u32 s{sFlagOff}, s{sFlagOff}, s{sG}
    s_lshl_b32 s{sFlagOff}, s{sFlagOff}, 2
    s_add_u32 s{sFlagOff}, s{sFlagOff}, {FL_KV}
    s_waitcnt vmcnt(24)
    """)
    g.stamp("kv done")
    FA = [32, 36]; FB = [40, 48]
    def reads(step, st):
        u, k = step >> 1, step & 1
        L = [f"ds_read_b64_tr_b16 {vr(FA[st]+2*ee,2)}, v{vA} offset:{u*8192+k*2048+ee*1024}" for ee in range(2)]
        L += [f"ds_read_b128 {vr(FB[st]+4*qb,4)}, v{vB+step} offset:{4096*qb}" for qb in range(2)]
        return L
    def mm(st, qb):
        return f"v_mfma_f32_32x32x16_bf16 {vr(16*qb,16)}, {vr(FA[st],4)}, {vr(FB[st]+4*qb,4)}, {vr(16*qb,16)}"
    e("Lgemm:")
    e(f"s_mov_b32 s{sC}, 0\ns_mov_b32 s{sSlot}, 0")
    for i in range(32): e(f"v_mov_b32 v{i}, 0")
    e("s_barrier")
    e("\n".join(reads(0, 0)))
    e(".p2align 3\nLg_loop:")
    for step in range(3):
        st = step & 1
        r = reads(step + 1, 1 - st)
        e("\n".join(r))
        e("s_waitcnt lgkmcnt(4)")
        e(mm(st, 0))
        if step == 0:
            e(f"""
            s_add_u32 s{sSlot}, s{sSlot}, 1
            s_cmp_eq_u32 s{sSlot}, 6
            s_cselect_b32 s{sDB}, -5, 1
            s_cselect_b32 s{sSlot}, 0, s{sSlot}
            s_lshl_b32 s{sDA}, s{sDB}, 14
            s_lshl_b32 s{sDB}, s{sDB}, 13
            """)
        e(mm(st, 1))
    e(f"""
    s_bitcmp1_b32 s{sSpec}, s{sC}
    s_cbranch_scc1 Lg_spec
    s_waitcnt vmcnt(18)
    Lg_back:
    v_add_u32 v{vA}, s{sDA}, v{vA}
    v_add_u32 v{vB}, s{sDB}, v{vB}
    s_barrier
    """)
    e("\n".join(reads(0, 0)))
    e(f"""
    v_add_u32 v{vB+1}, s{sDB}, v{vB+1}
    v_add_u32 v{vB+2}, s{sDB}, v{vB+2}
    v_add_u32 v{vB+3}, s{sDB}, v{vB+3}
    s_waitcnt lgkmcnt(4)
    """)
    e(mm(1, 0))
    e(f"s_cmp_gt_u32 s{sC}, 10\ns_cbranch_scc1 Lg_nodma")
    e("\n".join(g.issue_W()))
    e(mm(1, 1))
    e("\n".join(g.issue_X()))
    e(f"""
    s_cmp_eq_u32 s{sC}, s{sFlagIt}
    s_cbranch_scc1 Lg_flag
    Lg_next:
    s_add_u32 s{sC}, s{sC}, 1
    s_branch Lg_loop
    Lg_nodma:
    {mm(1,1)}
    s_add_u32 s{sC}, s{sC}, 1
    s_cmp_lt_u32 s{sC}, 16
    s_cbranch_scc1 Lg_loop
    s_cmp_eq_u32 s{sMode}, 0
    s_cbranch_scc1 Lq_epi
    s_branch Lout_epi
    Lg_flag:
    {g.flag(56, sFlagOff)}
    s_branch Lg_next
    Lg_spec:
    s_cmp_eq_u32 s{sC}, 12
    s_cbranch_scc0 Lg_s1
    s_waitcnt vmcnt(12)
    s_branch Lg_back
    Lg_s1:
    s_cmp_eq_u32 s{sC}, 1
    s_cbranch_scc0 Lg_s2
    s_waitcnt vmcnt(10)
    s_branch Lg_back
    Lg_s2:
    s_cmp_eq_u32 s{sC}, 2
    s_cbranch_scc0 Lg_s3
    s_waitcnt vmcnt(14)
    s_branch Lg_back
    Lg_s3:
    s_cmp_gt_u32 s{sC}, 13
    s_cbranch_scc1 Lg_s4
    s_waitcnt vmcnt(6)
    s_branch Lg_back
    Lg_s4:
    s_waitcnt vmcnt(0)
    s_branch Lg_back
    """)
    kvpoll = f"buffer_load_dwordx4 v[56:59], v{v16}, {sr(WS,4)}, s{sPollOff} offen sc1"
    e(f"""
    Lq_epi:
    s_mov_b32 s{sPollOff}, {FL_KV}
    {kvpoll}
    """)
    g.copy_srd(AD, WS)
    e(f"""
    s_lshl_b32 s{aM0}, s{sW}, 13
    s_movk_i32 s{aDM0}, 4096
    s_lshl_b32 s{aOff}, s{sX}, 15
    s_add_u32 s{aOff}, s{aOff}, s{aM0}
    s_movk_i32 s{aDOff}, 4096
    s_mov_b32 s{aAdv}, 32768
    s_mov_b32 s{aMask}, 0x3ffff
    s_mov_b32 s{sT2}, {f2u(1.4426950408889634/32**0.5)}
    s_mov_b32 s{sT3}, s{sT2}
    v_mov_b32 v{vAD}, v{v16}
    v_mov_b32 v{vAD+1}, v{v16}
    v_mov_b32 v{vAD+2}, v{v16}
    v_mov_b32 v{vAD+3}, v{v16}
    """)
    g.stamp("q gemm done")
    for i in range(16):
        e(f"v_pk_mul_f32 {vr(2*i,2)}, {vr(2*i,2)}, s[{sT2}:{sT3}]")
    for i in range(16):
        e(f"v_cvt_pk_bf16_f32 v{Q[0]+i}, v{2*i}, v{2*i+1}")
    e("s_waitcnt vmcnt(0) lgkmcnt(0)")
    g.poll_check(4, 56, kvpoll)
    g.stamp("kv flags")
    e("s_barrier")
    def a_dma(n): return f"buffer_load_dwordx4 v{vAD+(n&3)}, {sr(AD,4)}, s{aOff if n<4 else sOff2} offen offset:{1024*(n&3)} sc1 lds"
    a_adv = [f"s_add_u32 s{aM0}, s{aM0}, 32768", f"s_and_b32 s{aM0}, s{aM0}, 0x1ffff",
             f"s_add_u32 s{aOff}, s{aOff}, s{aAdv}", f"s_and_b32 s{aOff}, s{aOff}, s{aMask}"]
    e(f"s_mov_b32 s{sC}, 3\nLa_pre:")
    e(f"s_mov_b32 m0, s{aM0}\ns_add_u32 s{sOff2}, s{aOff}, s{aDOff}")
    for n in range(4): e(a_dma(n))
    e(f"s_add_u32 m0, s{aM0}, s{aDM0}\ns_sub_u32 s{sC}, s{sC}, 1")
    for n in range(4, 8): e(a_dma(n))
    e("\n".join(a_adv))
    e(f"s_cmp_lg_u32 s{sC}, 0\ns_cbranch_scc1 La_pre")
    e(f"""
    s_or_b32 s{sT0}, s2, s{sW}
    s_cmp_lg_u32 s{sT0}, 0
    s_cbranch_scc1 La_noep
    s_mov_b32 s{sT0}, {FL_EPOCH}
    {g.flag(56, sT0)}
    La_noep:
    v_mov_b32 v{IDX}, 0xdddddddd
    v_mov_b32 v{vCur}, v{v16}
    v_add_u32 v{vNext}, 32768, v{v16}
    s_mov_b32 s{sNextB}, 0x10000
    v_mov_b32 v60, 0x3f803f80
    v_and_b32 v61, 7, v{vL}
    v_cmp_eq_u32 vcc, 0, v61
    v_cmp_eq_u32 s[{sT0}:{sT0+1}], 4, v61
    s_nop 1
    v_cndmask_b32 v{ONES}, 0, v60, vcc
    v_cndmask_b32 v{ONES+1}, 0, v60, vcc
    v_cndmask_b32 v{ONES+2}, 0, v60, s[{sT0}:{sT0+1}]
    v_cndmask_b32 v{ONES+3}, 0, v60, s[{sT0}:{sT0+1}]
    """)
    for i in range(O[0], Lr[1] + 4): e(f"v_mov_b32 v{i}, 0")
    for i in range(8): e(f"v_mov_b32 v{V[1]+i}, 0")
    e(f"""
    s_mov_b32 s{fTab}, {TB.OFF_T1}
    s_lshl_b32 s{fOff}, s{sJ}, 11
    s_lshl_b32 s{sT0}, s{sCB}, 6
    s_add_u32 s{fOff}, s{fOff}, s{sT0}
    s_mov_b32 s{fStep}, {512*1024-1024}
    s_lshl_b32 s{fSt}, s{sCB}, 5
    s_add_u32 s{fSt}, s{fSt}, s{sJ}
    s_lshl_b32 s{sFlagOff}, s{fSt}, 2
    s_add_u32 s{sFlagOff}, s{sFlagOff}, {FL_Z1}
    s_lshl_b32 s{fSt}, s{fSt}, 12
    s_add_u32 s{fSt}, s{fSt}, {WS_Z1}
    s_lshl_b32 s{sPollOff}, s{sCB}, 7
    s_add_u32 s{sPollOff}, s{sPollOff}, {FL_Z1}
    s_waitcnt vmcnt(16)
    s_barrier
    """)
    g.stamp("kv chunk0")
    for t in range(2):
        for k in range(2): e(f"ds_read_b128 {vr(K[t]+4*k,4)}, v{vCur} offset:{4096*t+1024*k}")
    for k in range(2): e(f"ds_read_b128 {vr(V[0]+4*k,4)}, v{vCur} offset:{2048+1024*k}")
    e("s_waitcnt lgkmcnt(4)")
    for t in range(2):
        if t == 1: e("s_waitcnt lgkmcnt(2)")
        for qb in range(2):
            s = S[2 * t + qb]
            e(f"v_mfma_f32_32x32x16_bf16 {vr(s,16)}, {vr(K[t],4)}, {vr(Q[qb],4)}, 0")
            e(f"v_mfma_f32_32x32x16_bf16 {vr(s,16)}, {vr(K[t]+4,4)}, {vr(Q[qb]+4,4)}, {vr(s,16)}")
    def maxtree(dst, s, first):
        L = []
        if first:
            L.append(f"v_max3_f32 v{dst}, v{s}, v{s+1}, v{s+2}")
            L += [f"v_max3_f32 v{dst}, v{dst}, v{s+i}, v{s+i+1}" for i in range(3, 15, 2)]
            L.append(f"v_max_f32 v{dst}, v{dst}, v{s+15}")
        else:
            L += [f"v_max3_f32 v{dst}, v{dst}, v{s+i}, v{s+i+1}" for i in range(0, 16, 2)]
        return L
    e("s_nop 5")
    e("\n".join(maxtree(vT0, S[0], True) + maxtree(vT1, S[1], True) + maxtree(vT0, S[2], False) + maxtree(vT1, S[3], False)))
    def finish_max(off):
        e(f"""
        v_mov_b32 v{vT2}, v{vT0}
        v_mov_b32 v{vT3}, v{vT1}
        s_nop 1
        v_permlane32_swap_b32 v{vT0}, v{vT2}
        v_permlane32_swap_b32 v{vT1}, v{vT3}
        v_max_f32 v{vT0}, v{vT0}, v{vT2}
        v_max_f32 v{vT1}, v{vT1}, v{vT3}
        v_sub_f32 v{M[0]}, {hex(f2u(-off)) if off else 0}, v{vT0}
        v_sub_f32 v{M[1]}, {hex(f2u(-off)) if off else 0}, v{vT1}
        """)
        for i in range(1, 16): e(f"v_mov_b32 v{M[0]+i}, v{M[0]}")
        for i in range(1, 16): e(f"v_mov_b32 v{M[1]+i}, v{M[1]}")
    finish_max(opt.off)
    e(f"""
    s_nop 0
    v_mfma_f32_32x32x16_bf16 {vr(S[0],16)}, {vr(K[0],4)}, {vr(Q[0],4)}, {vr(M[0],16)}
    v_mfma_f32_32x32x16_bf16 {vr(S[0],16)}, {vr(K[0]+4,4)}, {vr(Q[0]+4,4)}, {vr(S[0],16)}
    """)
    for i in range(16): e(f"v_mov_b32 v{S[3]+i}, 0")
    g.stamp("attn start")
    def half(n):
        X = n & 1; Y = 1 - X
        se, sp, sq = S[n % 4], S[(n - 1) % 4], S[(n + 1) % 4]
        tq = ((n + 1) // 2) % 2; tv = ((n - 1) // 2) % 2
        E = [f"v_exp_f32 v{se+i}, v{se+i}" for i in range(16)]
        Q1 = f"v_mfma_f32_32x32x16_bf16 {vr(sq,16)}, {vr(K[tq],4)}, {vr(Q[Y],4)}, {vr(M[Y],16)}"
        Q2 = f"v_mfma_f32_32x32x16_bf16 {vr(sq,16)}, {vr(K[tq]+4,4)}, {vr(Q[Y]+4,4)}, {vr(sq,16)}"
        P1 = f"v_smfmac_f32_32x32x32_bf16 {vr(O[Y],16)}, {vr(V[tv],4)}, {vr(sp,8)}, v{IDX}"
        P2 = f"v_smfmac_f32_32x32x32_bf16 {vr(O[Y],16)}, {vr(V[tv]+4,4)}, {vr(sp+8,8)}, v{IDX}"
        L1 = f"v_smfmac_f32_16x16x64_bf16 {vr(Lr[Y],4)}, {vr(ONES,4)}, {vr(sp,8)}, v{IDX}"
        L2 = f"v_smfmac_f32_16x16x64_bf16 {vr(Lr[Y],4)}, {vr(ONES,4)}, {vr(sp+8,8)}, v{IDX}"
        T = n >> 1
        if X == 0:
            tt = T + 2; dst = K[tq]; base = 0
        else:
            tt = T + 1; dst = V[1 - tv]; base = 2048
        av = vCur if tt < 8 else vNext
        D = [f"ds_read_b128 {vr(dst+4*k,4)}, v{av} offset:{(tt&7)*4096+base+1024*k}" for k in range(2)]
        aQ2 = []; aP1 = []; aP2 = []
        if n == 0: aQ2 = [f"s_mov_b32 m0, s{aM0}"]; aP2 = [f"s_add_u32 s{sOff2}, s{aOff}, s{aDOff}"]
        if n == 8: aQ2 = [f"s_add_u32 m0, s{aM0}, s{aDM0}"]
        if X == 0: aP1 = [a_dma(n >> 1)]
        if n == 9: aQ2 = [a_adv[0]]; aP1 = [a_adv[1]]; aP2 = [a_adv[2]]
        if n == 11: aQ2 = [a_adv[3]]; aP1 = [f"s_add_u32 s{sC}, s{sC}, 1"]
        if n == 7: aP2 = [f"s_bitcmp1_b32 0x5b, s{sC}"]
        if n == 15: aP2 = [f"s_cmp_lt_u32 s{sC}, 8"]
        return [Q1, "s_waitcnt lgkmcnt(2)"] + E[0:3] + [Q2] + aQ2 + E[3:6] + [P1] + aP1 + E[6:9] + [L1, D[0]] + E[9:11] + [P2] + aP2 + E[11:14] + [L2, D[1]] + E[14:16]
    e(f"s_mov_b32 s{sC}, 0")
    e(".p2align 3\nLa_loop:")
    e(f"""
    s_waitcnt vmcnt(8)
    s_bitcmp1_b32 0x6c, s{sC}
    s_barrier
    s_cbranch_scc1 La_hb
    La_hb_ret:
    """)
    for n in range(16):
        if n == 8: e("s_cbranch_scc1 La_hm\nLa_hm_ret:")
        e("\n".join(half(n)))
    e(f"""
    v_mov_b32 v{vCur}, v{vNext}
    v_add_u32 v{vNext}, s{sNextB}, v{v16}
    s_cbranch_scc0 La_done
    s_add_u32 s{sNextB}, s{sNextB}, 32768
    s_and_b32 s{sNextB}, s{sNextB}, 0x1ffff
    s_branch La_loop
    """)
    zpoll = f"buffer_load_dword v{vPoll}, v{vP4}, {sr(WS,4)}, s{sPollOff} offen sc1"
    e(f"""
    La_hb:
    s_bitcmp1_b32 0x48, s{sC}
    s_cbranch_scc0 La_hb_flag
    {zpoll}
    s_branch La_hb_ret
    La_hb_flag:
    s_waitcnt vmcnt(4)
    {g.flag(vT0, sFlagOff)}
    s_cmp_eq_u32 s{sC}, 2
    s_cbranch_scc0 La_hb_sw
    """)
    g.copy_srd(FD, WS)
    e(f"""
    v_mov_b32 v{vFG}, v{vZ}
    s_lshl_b32 s{fTab}, s{sJ}, 13
    s_add_u32 s{fTab}, s{fTab}, {TB.OFF_T2}
    s_lshl_b32 s{fOff}, s{sCB}, 17
    s_lshr_b32 s{sT0}, s{sJ}, 4
    s_lshl_b32 s{sT0}, s{sT0}, 11
    s_add_u32 s{fOff}, s{fOff}, s{sT0}
    s_and_b32 s{sT0}, s{sJ}, 15
    s_lshl_b32 s{sT0}, s{sT0}, 5
    s_add_u32 s{fOff}, s{fOff}, s{sT0}
    s_add_u32 s{fOff}, s{fOff}, {WS_Z1}
    s_mov_b32 s{fStep}, {32768-1024}
    s_lshl_b32 s{fSt}, s{sJ}, 5
    s_add_u32 s{fSt}, s{fSt}, s{sCB}
    s_lshl_b32 s{sFlagOff}, s{fSt}, 2
    s_add_u32 s{sFlagOff}, s{sFlagOff}, {FL_Z2}
    s_lshl_b32 s{fSt}, s{fSt}, 12
    s_add_u32 s{fSt}, s{fSt}, {WS_Z2}
    s_branch La_hb_ret
    La_hb_sw:
    """)
    g.srd(AD, 22, 2097152)
    g.copy_srd(GW, AD)
    e(f"""
    s_mov_b32 s{fTab}, {TB.OFF_T3}
    s_lshl_b32 s{fOff}, s{sJ}, 17
    s_lshr_b32 s{sT0}, s{sCB}, 4
    s_lshl_b32 s{sT0}, s{sT0}, 11
    s_add_u32 s{fOff}, s{fOff}, s{sT0}
    s_and_b32 s{sT0}, s{sCB}, 15
    s_lshl_b32 s{sT0}, s{sT0}, 5
    s_add_u32 s{fOff}, s{fOff}, s{sT0}
    s_add_u32 s{fOff}, s{fOff}, {WS_Z2}
    s_lshl_b32 s{sPollOff}, s{sJ}, 7
    s_add_u32 s{sPollOff}, s{sPollOff}, {FL_Z2}
    s_lshl_b32 s{aM0}, s{sW}, 12
    s_movk_i32 s{aDM0}, 16384
    s_lshl_b32 s{aOff}, s{sC0}, 17
    s_lshl_b32 s{sT0}, s{sW}, 15
    s_add_u32 s{aOff}, s{aOff}, s{sT0}
    s_lshl_b32 s{sT0}, s{sG}, 8
    s_add_u32 s{aOff}, s{aOff}, s{sT0}
    s_mov_b32 s{aDOff}, 0x20000
    s_mov_b32 s{aAdv}, 0x40000
    s_mov_b32 s{aMask}, 0x1fffff
    v_mov_b32 v{vAD}, v{vOW}
    v_mov_b32 v{vAD+1}, v{vOW+1}
    v_mov_b32 v{vAD+2}, v{vOW+2}
    v_mov_b32 v{vAD+3}, v{vOW+3}
    s_branch La_hb_ret
    """)
    e(f"""
    La_hm:
    s_bitcmp1_b32 0x12, s{sC}
    s_cbranch_scc1 La_hm_comp
    s_cmp_eq_u32 s{sC}, 0
    s_cbranch_scc1 La_hm_pre
    s_waitcnt vmcnt(4)
    """)
    g.poll_check(1, vPoll, zpoll)
    e(f"""
    La_hm_pre:
    s_lshl_b32 s{sT0}, s{sW}, 12
    s_add_u32 m0, s{sT0}, {L_MISC}
    s_add_u32 s{sT1}, s{fTab}, 4096
    """)
    for n in range(4):
        e(f"buffer_load_dwordx4 v{vFG}, {sr(FD,4)}, s{fOff} offen offset:{1024*n} sc1 lds")
        if n < 3: e(f"s_add_u32 s{fOff}, s{fOff}, s{fStep}")
    for m in range(8):
        e(f"buffer_load_dwordx4 {ar(16+4*m,4)}, v{v16}, {sr(TBL,4)}, s{fTab if m<4 else sT1} offen offset:{1024*(m&3)}")
    e(f"s_cmp_eq_u32 s{sC}, 6\ns_cbranch_scc0 La_hm_ret")
    e(f"s_mov_b32 s{sT0}, {TB.OFF_TW}\ns_mov_b32 s{sT1}, {TB.OFF_TW+4096}\ns_mov_b32 s{sT2}, {TB.OFF_TX}")
    for m in range(8):
        e(f"buffer_load_dwordx4 {vr(vFD+4*m,4)}, v{v16}, {sr(TBL,4)}, s{sT0 if m<4 else sT1} offen offset:{1024*(m&3)}")
    e(f"buffer_load_dwordx4 {ar(48,4)}, v{v16}, {sr(TBL,4)}, s{sT2} offen")
    e("s_branch La_hm_ret")
    e("La_hm_comp:\ns_waitcnt vmcnt(8)")
    for k in range(4):
        for ee in range(2):
            e(f"ds_read_b64_tr_b16 {ar(4*k+2*ee,2)}, v{vFB+(k>>1)} offset:{(k&1)*2048+ee*512}")
    for k in range(4):
        e(f"s_waitcnt lgkmcnt({6-2*k})")
        for nb in range(2):
            d = vr(vFD + 16 * nb, 16)
            e(f"v_mfma_f32_32x32x16_bf16 {d}, {ar(4*k,4)}, {ar(16+16*nb+4*k,4)}, {'0' if k==0 else d}")
    e("s_nop 10")
    for nb in range(2):
        for m_ in range(8):
            e(f"v_cvt_pk_bf16_f32 v{vFD+16*nb+m_}, v{vFD+16*nb+2*m_}, v{vFD+16*nb+2*m_+1}")
        for i in range(2):
            e(f"buffer_store_dwordx4 {vr(vFD+16*nb+4*i,4)}, v{v16}, {sr(WS,4)}, s{fSt} offen offset:{1024*(2*nb+i)} sc1")
    e("s_branch La_hm_ret")
    e(f"""
    La_done:
    v_smfmac_f32_16x16x64_bf16 {vr(Lr[1],4)}, {vr(ONES,4)}, {vr(S[3],8)}, v{IDX}
    v_smfmac_f32_16x16x64_bf16 {vr(Lr[1],4)}, {vr(ONES,4)}, {vr(S[3]+8,8)}, v{IDX}
    v_smfmac_f32_32x32x32_bf16 {vr(O[1],16)}, {vr(V[1],4)}, {vr(S[3],8)}, v{IDX}
    v_smfmac_f32_32x32x32_bf16 {vr(O[1],16)}, {vr(V[1]+4,4)}, {vr(S[3]+8,8)}, v{IDX}
    s_waitcnt lgkmcnt(0)
    s_barrier
    """)
    g.stamp("attn end")
    e(f"""
    s_mov_b32 s{sMode}, 0
    s_lshl_b32 s{sT2}, s{sG}, 2
    s_add_u32 s{sT2}, s{sT2}, s{sW}
    s_lshl_b32 s{sFlagOff}, s{sRB}, 5
    s_add_u32 s{sFlagOff}, s{sFlagOff}, s{sT2}
    s_lshl_b32 s{sFlagOff}, s{sFlagOff}, 2
    s_add_u32 s{sFlagOff}, s{sFlagOff}, {FL_O}
    s_lshl_b32 s{sPollOff}, s{sRB}, 7
    s_add_u32 s{sPollOff}, s{sPollOff}, {FL_O}
    s_lshl_b32 s{sBaseX}, s{sRB}, 17
    s_add_u32 s{sBaseX}, s{sBaseX}, {WS_O}
    s_lshr_b32 s{sT3}, s{sT2}, 1
    s_lshl_b32 s{sT3}, s{sT3}, 13
    s_and_b32 s{sT2}, s{sT2}, 1
    s_lshl_b32 s{sT2}, s{sT2}, 11
    s_add_u32 s{sT3}, s{sT3}, s{sT2}
    s_add_u32 s{sT3}, s{sT3}, s{sBaseX}
    s_add_u32 s{sT4}, s{sT3}, 4096
    La_norm:
    v_rcp_f32 v{vT0}, v{Lr[0]}
    v_rcp_f32 v{vT2}, v{Lr[1]}
    v_maximum3_f32 v{vT4}, v{Lr[0]}, v{Lr[1]}, v{Lr[1]}
    """)
    e(f"v_mov_b32 v0, v{vT0}\nv_mov_b32 v1, v{vT0}\nv_mov_b32 v2, v{vT2}\nv_mov_b32 v3, v{vT2}")
    for qb in range(2):
        for i in range(8):
            e(f"v_pk_mul_f32 {vr(O[qb]+2*i,2)}, {vr(O[qb]+2*i,2)}, {vr(2*qb,2)}")
    e(f"v_maximum3_f32 v4, abs(v{O[0]}), abs(v{O[0]+1}), abs(v{O[0]+2})")
    for i in range(3, 31, 2): e(f"v_maximum3_f32 v4, v4, abs(v{O[0]+i}), abs(v{O[0]+i+1})")
    e(f"""
    v_maximum3_f32 v4, v4, abs(v{O[0]+31}), v{vT4}
    s_mov_b32 s{sT0}, {hex(f2u(2.0**110))}
    v_cmp_nlt_f32 vcc, v4, s{sT0}
    """)
    for qb in range(2):
        for i in range(8):
            e(f"v_cvt_pk_bf16_f32 v{8+8*qb+i}, v{O[qb]+2*i}, v{O[qb]+2*i+1}")
    if opt.force_fb: e("s_mov_b64 vcc, -1")
    e(f"""
    s_cmp_eq_u64 vcc, 0
    s_cselect_b32 s{sT0}, 1, s{sMode}
    s_cmp_eq_u32 s{sT0}, 0
    s_cbranch_scc1 Lfb
    """)
    for qb in range(2):
        for k in range(2):
            e(f"buffer_store_dwordx4 {vr(8+8*qb+4*k,4)}, v{v16}, {sr(WS,4)}, s{sT3+qb} offen offset:{1024*k} sc1")
    g.stamp("o stored")
    pA = 32; pR = 48; pI = 64; pU = 80; pT = 96; pF = 104; pM = 112; pX = 120
    e(f"""
    s_lshl_b32 s{sT0}, s{sCB}, 6
    s_add_u32 s{sRow}, s{sT0}, s{sJ}
    s_sub_u32 s{sT1}, s{sT0}, {1024-32}
    s_cmp_lt_u32 s{sCB}, 16
    s_cselect_b32 s{sT0}, s{sT0}, s{sT1}
    s_cmp_eq_u32 s{sJ}, 0
    s_cselect_b32 s{sRow}, s{sT0}, s{sRow}
    s_waitcnt vmcnt(16)
    v_accvgpr_read_b32 v{pX}, a48
    v_accvgpr_read_b32 v{pX+1}, a49
    v_accvgpr_read_b32 v{pX+2}, a50
    Lp3:
    """)
    for k in range(4):
        for ee in range(2):
            e(f"ds_read_b64_tr_b16 {vr(pA+4*k+2*ee,2)}, v{vFB+(k>>1)} offset:{(k&1)*2048+ee*512}")
    e(f"""
    s_sub_u32 s{sT0}, 2048, s{sRow}
    s_and_b32 s{sT0}, s{sT0}, 2047
    s_lshl_b32 s{sT1}, s{sT0}, 12
    s_lshl_b32 s{sT0}, s{sRow}, 12
    s_and_b32 s{sT2}, s{sRow}, 1023
    s_cmp_lg_u32 s{sT2}, 0
    s_cbranch_scc1 Lp3_mm
    s_waitcnt lgkmcnt(0)
    """)
    for i in range(8): e(f"v_mov_b32 v{pA+8+i}, 0")
    e(f"v_xor_b32 v{vFB}, 16, v{vFB}\ns_nop 0\nLp3_mm:")
    for k in range(4):
        e(f"s_waitcnt lgkmcnt({6-2*k})")
        for nb in range(2):
            d = vr((pR, pI)[nb], 16)
            e(f"v_mfma_f32_32x32x16_bf16 {d}, {vr(pA+4*k,4)}, {ar(16+16*nb+4*k,4)}, {'0' if k==0 else d}")
    e("s_nop 11")
    for i in range(8):
        r, im, c, s_ = pR + 2 * i, pI + 2 * i, vFD + 2 * i, vFD + 16 + 2 * i
        e(f"""
        v_pk_mul_f32 {vr(pT,2)}, {vr(r,2)}, {vr(c,2)}
        v_pk_mul_f32 {vr(pT+2,2)}, {vr(im,2)}, {vr(c,2)}
        v_pk_fma_f32 {vr(pT,2)}, {vr(im,2)}, {vr(s_,2)}, {vr(pT,2)}
        v_pk_fma_f32 {vr(pT+2,2)}, {vr(r,2)}, {vr(s_,2)}, {vr(pT+2,2)} neg_lo:[0,1,0] neg_hi:[0,1,0]
        v_cvt_pk_bf16_f32 v{pU+i}, v{pT}, v{pT+1}
        v_cvt_pk_bf16_f32 v{pU+8+i}, v{pT+2}, v{pT+3}
        """)
    e("s_nop 0")
    for k in range(4):
        src = pU + 4 * k
        e(f"v_mfma_f32_32x32x16_bf16 {vr(pR,16)}, {vr(src,4)}, {ar(16+4*k,4)}, {'0' if k==0 else vr(pR,16)}")
    e(f"s_nop 11\nds_bpermute_b32 v{pR+16}, v{pX}, v{pR}")
    for m_ in range(8): e(f"v_cvt_pk_bf16_f32 v{pF+m_}, v{pR+2*m_}, v{pR+2*m_+1}")
    for m_ in range(1, 8): e(f"v_cvt_pk_bf16_f32 v{pM+m_}, v{pR+16-2*m_}, v{pR+15-2*m_}")
    for i in range(4): e(f"v_permlane16_swap_b32 v{pF+i}, v{pF+4+i}")
    e(f"""
    buffer_store_dwordx4 {vr(pF,4)}, v{pX+1}, {sr(OUT,4)}, s{sT0} offen {opt.out_sc}
    buffer_store_dwordx4 {vr(pF+4,4)}, v{pX+1}, {sr(OUT,4)}, s{sT0} offen offset:512 {opt.out_sc}
    s_waitcnt lgkmcnt(0)
    v_cvt_pk_bf16_f32 v{pM}, v{pR+16}, v{pR+15}
    s_nop 1
    """)
    for i in range(4): e(f"v_permlane16_swap_b32 v{pM+i}, v{pM+4+i}")
    e(f"""
    buffer_store_dwordx4 {vr(pM,4)}, v{pX+2}, {sr(OUT,4)}, s{sT1} offen offset:512 {opt.out_sc}
    buffer_store_dwordx4 {vr(pM+4,4)}, v{pX+2}, {sr(OUT,4)}, s{sT1} offen {opt.out_sc}
    s_cmp_eq_u32 s{sRow}, 0
    s_cbranch_scc0 Lp3_done
    s_movk_i32 s{sRow}, 1024
    s_branch Lp3
    Lp3_done:
    s_waitcnt vmcnt(4)
    {g.flag(0, sFlagOff)}
    {zpoll}
    """)
    g.stamp("p3 done")
    g.copy_srd(GX, WS)
    e(f"""
    s_lshl_b32 s{sT0}, s{sW}, 11
    s_add_u32 s{sBaseX}, s{sBaseX}, s{sT0}
    s_add_u32 s{sM0X}, s{sT0}, {L_X}
    s_lshl_b32 s{sTX}, s{sC0}, 13
    s_movk_i32 s{sStepX}, 8192
    s_mov_b32 s{sMaskX}, 0x1ffff
    s_lshl_b32 s{sM0W}, s{sW}, 12
    s_add_u32 s{sM0W}, s{sM0W}, {5*16384}
    s_sub_u32 s{sOffW}, s{aOff}, 0x20000
    s_and_b32 s{sOffW}, s{sOffW}, 0x1fffff
    s_mov_b32 s{sFlagIt}, 99
    s_mov_b32 s{sSpec}, 0xf007
    s_mov_b32 s{sMode}, 1
    v_mov_b32 v{vOX}, v{v16}
    v_mov_b32 v{vOX+1}, v{v16}
    v_add_u32 v{vB}, {L_X}, v{v16}
    v_add_u32 v{vB+1}, {L_X+1024}, v{v16}
    v_add_u32 v{vB+2}, {L_X+2048}, v{v16}
    v_add_u32 v{vB+3}, {L_X+3072}, v{v16}
    v_and_b32 v{vA}, 0x3fff, v{vA}
    s_waitcnt vmcnt(0)
    """)
    g.poll_check(1, vPoll, zpoll)
    g.stamp("o flags")
    for _ in range(5): e("\n".join(g.issue_X()))
    e("s_waitcnt vmcnt(8)\ns_branch Lgemm")
    e(f"""
    Lout_epi:
    v_and_b32 v32, 31, v{vL}
    v_lshrrev_b32 v33, 5, v{vL}
    v_lshlrev_b32 v32, 12, v32
    v_lshl_or_b32 v32, v33, 5, v32
    s_lshl_b32 s{sT0}, s{sRB}, 18
    s_lshl_b32 s{sT1}, s{sG}, 8
    s_add_u32 s{sT0}, s{sT0}, s{sT1}
    s_lshl_b32 s{sT1}, s{sW}, 6
    s_add_u32 s{sT0}, s{sT0}, s{sT1}
    s_add_u32 s{sT0}, s{sT0}, 2048
    s_add_u32 s{sT1}, s{sT0}, 0x20000
    s_nop 1
    """)
    g.stamp("out gemm done")
    for qb in range(2):
        for i in range(8): e(f"v_cvt_pk_bf16_f32 v{40+8*qb+i}, v{16*qb+2*i}, v{16*qb+2*i+1}")
        for i in range(2):
            e(f"buffer_store_dwordx4 {vr(40+8*qb+4*i,4)}, v32, {sr(OUT,4)}, s{sT0+qb} offen offset:{16*i} {opt.out_sc}")
    if opt.stamps:
        e("s_waitcnt vmcnt(0)")
        g.stamp("end")
    e("Lend:\ns_endpgm")
    e(f"""
    Lfb:
    s_mov_b32 s{sMode}, 1
    v_mov_b32 v{vT0}, 0xff800000
    v_mov_b32 v{vT1}, 0xff800000
    s_mov_b32 s{sC}, 0
    Lfb1:
    buffer_load_dwordx4 {vr(K[0],4)}, v{v16}, {sr(WS,4)}, s{sC} offen sc1
    buffer_load_dwordx4 {vr(K[0]+4,4)}, v{v16}, {sr(WS,4)}, s{sC} offen offset:1024 sc1
    s_waitcnt vmcnt(0)
    """)
    for qb in range(2):
        e(f"v_mfma_f32_32x32x16_bf16 {vr(S[qb],16)}, {vr(K[0],4)}, {vr(Q[qb],4)}, 0")
        e(f"v_mfma_f32_32x32x16_bf16 {vr(S[qb],16)}, {vr(K[0]+4,4)}, {vr(Q[qb]+4,4)}, {vr(S[qb],16)}")
    e("s_nop 15")
    e("\n".join(maxtree(vT0, S[0], False) + maxtree(vT1, S[1], False)))
    e(f"s_add_u32 s{sC}, s{sC}, 4096\ns_cmp_lt_u32 s{sC}, 0x40000\ns_cbranch_scc1 Lfb1")
    finish_max(0.0)
    for i in range(O[0], Lr[1] + 4): e(f"v_mov_b32 v{i}, 0")
    e(f"s_mov_b32 s{sC}, 0\nLfb2:")
    for k in range(2):
        e(f"buffer_load_dwordx4 {vr(K[0]+4*k,4)}, v{v16}, {sr(WS,4)}, s{sC} offen offset:{1024*k} sc1")
        e(f"buffer_load_dwordx4 {vr(V[0]+4*k,4)}, v{v16}, {sr(WS,4)}, s{sC} offen offset:{2048+1024*k} sc1")
    e("s_waitcnt vmcnt(0)")
    for qb in range(2):
        e(f"v_mfma_f32_32x32x16_bf16 {vr(S[qb],16)}, {vr(K[0],4)}, {vr(Q[qb],4)}, {vr(M[qb],16)}")
        e(f"v_mfma_f32_32x32x16_bf16 {vr(S[qb],16)}, {vr(K[0]+4,4)}, {vr(Q[qb]+4,4)}, {vr(S[qb],16)}")
    e("s_nop 15")
    for i in range(32): e(f"v_exp_f32 v{i}, v{i}")
    e("s_nop 1")
    for qb in range(2):
        for u in range(2):
            e(f"v_smfmac_f32_32x32x32_bf16 {vr(O[qb],16)}, {vr(V[0]+4*u,4)}, {vr(S[qb]+8*u,8)}, v{IDX}")
            e(f"v_smfmac_f32_16x16x64_bf16 {vr(Lr[qb],4)}, {vr(ONES,4)}, {vr(S[qb]+8*u,8)}, v{IDX}")
    e(f"""
    s_add_u32 s{sC}, s{sC}, 4096
    s_cmp_lt_u32 s{sC}, 0x40000
    s_cbranch_scc1 Lfb2
    s_nop 15
    s_branch La_norm
    Lcode_end:
    """)
    return g.o

def table_text():
    b = TB.blob(); L = []
    for i in range(0, len(b), 64):
        ch = b[i:i + 64]
        L.append(".octa " + ",".join("0x%x" % int.from_bytes(ch[j:j + 16], "little") for j in range(0, 64, 16)))
    return "\n".join(L)

def build(opt):
    ref = open(f"cdna_kernels/{NAME}.s.ref").read().split("\n")
    head = [l for l in ref if l.startswith(";") and "@launch" not in l]
    s = "\n".join(head) + "\n; @launch grid=(256,1,1) block=(256,1,1) lds=163840\n"
    s += f""".amdgcn_target "amdgcn-amd-amdhsa--gfx950"
.text
.globl {NAME}_kernel
.p2align 8
.type {NAME}_kernel,@function
"""
    s += "\n".join(gen(opt)) + "\n"
    s += f""".fill 256, 4, 0xbf800000
s_endpgm
.section .rodata,"a"
.p2align 6
.amdhsa_kernel {NAME}_kernel
  .amdhsa_next_free_vgpr 512
  .amdhsa_next_free_sgpr 102
  .amdhsa_accum_offset 256
  .amdhsa_group_segment_fixed_size 0
  .amdhsa_kernarg_size 104
  .amdhsa_user_sgpr_count 2
  .amdhsa_user_sgpr_kernarg_segment_ptr 1
  .amdhsa_system_sgpr_workgroup_id_x 1
.end_amdhsa_kernel
.p2align 8
fn_tables:
"""
    s += table_text() + "\n"
    return s

if __name__ == "__main__":
    opt = Opt()
    out = f"cdna_kernels/{NAME}.s"
    for a in sys.argv[1:]:
        if a.startswith("-o"): out = a[2:]
        else:
            k, v = a.split("=")
            cur = getattr(opt, k)
            setattr(opt, k, type(cur)(int(v)) if isinstance(cur, (bool, int)) else type(cur)(v))
    s = build(opt)
    open(out, "w").write(s)
    if opt.stamps: open(out + ".names", "w").write("\n".join(opt.names))
    print(out, len(s), "bytes")
```

```python
import sys, struct
import tables as TB

NAME = "concat_heads__spectral_fnet__grouped_kv_mqa__prompt"

class Opt:
    stamps = False
    dbg = False
    codepf = True
    spin = 1 << 20
    out_sc = ""
    force_fb = False
    off = 90.0
    exp = 0
    xsc = ''
    fine = False
    mapA = True
    kvb = 11
    nofft = False
    oflag = 0

def f2u(x): return struct.unpack("<I", struct.pack("<f", x))[0]
def vr(b, n): return f"v[{b}:{b+n-1}]"
def ar(b, n): return f"a[{b}:{b+n-1}]"
def sr(b, n): return f"s[{b}:{b+n-1}]"

WS_FL = 0x40000
FL_EPOCH = WS_FL
FL_KV = WS_FL + 0x1000
FL_Z1 = WS_FL + 0x2000
FL_Z2 = WS_FL + 0x3000
FL_O = WS_FL + 0x4000
WS_O = 0x100000
WS_Z1 = 0x800000
WS_Z2 = 0xC00000
WS_ST = 0x1000000
L_X = 96 * 1024; L_MISC = 144 * 1024
KB = [65536, 0, 32768, 98304]
sW, sX, sJ, sRB, sG, sC0 = 30, 31, 32, 33, 34, 35
GX, GW, WS, OUT, XA, TBL, KW = 36, 40, 44, 48, 52, 56, 60
sTAG, sOffW, sTX, sWb, sXb = 64, 65, 66, 67, 68
sRB2, sG2, sC2 = 69, 70, 71
sKV, sKV2, sMisc = 72, 73, 74
sF1, sSt1, sFl1, sPo1, sTab2, sF2, sSt2, sFl2, sPo2, sF3, sRow = 75, 76, 77, 78, 79, 86, 87, 88, 89, 90, 91
sT0, sT1, sT2, sT3, sT4, sT5 = 80, 81, 82, 83, 84, 85
sOst, sOst2, sFlO, sPoO, sOffW2, sFlKV, sCB, sMode, sSpin, sTb = 92, 93, 94, 95, 96, 97, 98, 99, 100, 101
sC = 16
S = [0, 16, 32, 48]; O = [64, 80]; Lr = [96, 100]; M = [104, 120]; Q = [136, 144]; K = [152, 160]; V = [168, 176]
ONES = 184; IDX = 188; vKlo = 230; vKhi = 189
vFD = 196
vFB = 228
v16 = 230; vP1 = 231; vZ = 232; vA = 233; vB = 235; vOW = 238; vOX = 242
vPoll = 244; vP4 = 245; vOne = 237
vDummy = 246
vL = 250; vT0 = 251; vT1 = 252; vT2 = 253; vT3 = 254; vT4 = 255
aD, aT1, aT2, aT3, aTX, aTW = 0, 16, 48, 80, 112, 116

class I:
    def __init__(s, t, kind=None, tag=None): s.t, s.kind, s.tag = t, kind, tag
class Wt:
    def __init__(s, vm=None, lg=None, must=False): s.vm, s.lg, s.must = vm, lg, must
def VM(t, tag=None): return I(t, "vm", tag)
def LG(t, tag=None): return I(t, "lg", tag)

class G:
    def __init__(self, opt):
        self.o = []; self.opt = opt; self.nst = 0; self.uid = 0; self.tail = []
    def e(self, s):
        if isinstance(s, (list, tuple)):
            for x in s: self.e(x)
        elif isinstance(s, (I, Wt)): self.o.append(s)
        elif s:
            for l in s.strip("\n").split("\n"):
                l = l.strip()
                if l: self.o.append(I(l))
    def lab(self, p):
        self.uid += 1; return f"{p}_{self.uid}"
    def text(self):
        out = []; vq = []; lq = []
        def cnt(q, tags, mx):
            tags = tags if isinstance(tags, (list, tuple)) else [tags]
            idx = max([i for i, t in enumerate(q) if t in tags], default=-1)
            if idx < 0: return None
            n = min(len(q) - 1 - idx, mx)
            del q[:len(q) - n]
            return n
        for x in self.o:
            if isinstance(x, Wt):
                p = []
                if x.vm is not None:
                    if x.vm == "all": p.append("vmcnt(0)"); vq.clear()
                    else:
                        n = cnt(vq, x.vm, 63)
                        if n is not None: p.append(f"vmcnt({n})")
                if x.lg is not None:
                    if x.lg == "all": p.append("lgkmcnt(0)"); lq.clear()
                    else:
                        n = cnt(lq, x.lg, 15)
                        if n is not None: p.append(f"lgkmcnt({n})")
                if p: out.append(" s_waitcnt " + " ".join(p))
                elif x.must: out.append(" s_nop 0")
            else:
                if x.kind == "vm": vq.append(x.tag)
                if x.kind == "lg": lq.append(x.tag)
                out.append(x.t if x.t.endswith(":") else " " + x.t)
        return out
    def stamp(self, name, cyc=False):
        if not self.opt.stamps or cyc: return
        k = self.nst; self.nst += 1
        self.opt.names.append(("CYC " if cyc else "") + name)
        if self.opt.dbg:
            lb = self.lab("Lnost")
            self.e(f"""
            s_cmp_lg_u32 s9, 0
            s_cbranch_scc1 {lb}
            s_memrealtime s[6:7]
            s_waitcnt lgkmcnt(0)
            v_mov_b32 v195, s6
            s_mov_b64 exec, 1
            buffer_atomic_umax v195, off, s[12:15], 0 offset:{4*k}
            s_mov_b64 exec, -1
            {lb}:
            """)
            return
        self.e(f"""
        s_memrealtime s[6:7]
        s_memtime s[12:13]
        s_waitcnt lgkmcnt(0)
        v_mov_b32 v194, s6
        v_mov_b32 v195, s12
        buffer_store_dwordx2 v[194:195], off, {sr(WS,4)}, s8 offset:{8*k}
        """)
    def stampl(self, name):
        save = self.o; self.o = []; self.stamp(name); r = self.o; self.o = save; return r
    def srd(self, d, lo, size):
        return [f"s_mov_b32 s{d}, s{lo}", f"s_and_b32 s{d+1}, s{lo+1}, 0xffff", f"s_mov_b32 s{d+2}, {size}", f"s_mov_b32 s{d+3}, 0x20000"]
    def flag(self, tmp, soff):
        return [f"v_mov_b32 v{tmp}, s{sTAG}", f"buffer_store_dword v{tmp}, v{vOne}, {sr(WS,4)}, s{soff} offen sc1"]
    def check(self, nreg, reg, load):
        lr = self.lab("Lretry"); lb = self.lab("Lback")
        cmp = [f"v_cmp_ne_u32 vcc, s{sTAG}, v{reg}"]
        for i in range(1, nreg):
            cmp += [f"v_cmp_ne_u32 s[10:11], s{sTAG}, v{reg+i}", "s_or_b64 vcc, vcc, s[10:11]"]
        self.tail += [f"{lr}:", f"s_mov_b32 s{sSpin}, {self.opt.spin}", f"{lr}_l:", "s_sleep 1", load, "s_waitcnt vmcnt(0)"] + cmp + [
            "s_cmp_eq_u64 vcc, 0", f"s_cbranch_scc1 {lb}", f"s_sub_u32 s{sSpin}, s{sSpin}, 1", f"s_cbranch_scc0 {lr}_l",
            f"v_mov_b32 v{vDummy}, {self.uid}", f"v_mov_b32 v{vDummy+1}, 0",
            f"global_store_dword v{vDummy+1}, v{vDummy}, s[26:27] offset:60", f"s_branch {lb}"]
        return cmp + ["s_cmp_eq_u64 vcc, 0", f"s_cbranch_scc0 {lr}", f"{lb}:"]

def dmaW(c, soff=sOffW):
    pre = [f"s_add_u32 m0, s{sWb}, {(c%6)*16384}"]
    ops = [VM(f"buffer_load_dwordx4 v{vOW+n}, {sr(GW,4)}, s{soff} offen offset:{1024*n} lds", f"W{c}") for n in range(4)]
    post = [f"s_add_u32 s{soff}, s{soff}, 0x20000", f"s_and_b32 s{soff}, s{soff}, 0x1fffff"]
    return pre, ops, post
XSC = ['sc1']
def dmaX(c, step, mask):
    pre = [f"s_add_u32 m0, s{sXb}, {(c%6)*8192}"]
    ops = [VM(f"buffer_load_dwordx4 v{vOX+n}, {sr(GX,4)}, s{sTX} offen offset:{1024*n} {'sc1' if step > 128 else XSC[0]} lds", f"X{c}") for n in range(2)]
    post = [f"s_add_u32 s{sTX}, s{sTX}, {step}", f"s_and_b32 s{sTX}, s{sTX}, {mask}"]
    return pre, ops, post
def burst(p):
    pre, ops, post = p
    return pre + ["s_nop 0"] + ops + post
def dmaKV(ch, hf):
    so = sKV2 if hf else sKV
    pre = [f"s_add_u32 m0, s{sWb}, {KB[ch%4]+16384*hf}"]
    ops = [VM(f"buffer_load_dwordx4 v{v16}, {sr(WS,4)}, s{so} offen offset:{1024*n} sc1 lds", f"KV{ch}{'ab'[hf]}") for n in range(4)]
    post = [f"s_add_u32 s{so}, s{so}, 32768", f"s_and_b32 s{so}, s{so}, 0x3ffff"]
    return pre, ops, post

FA = [32, 44, 152]; FBq = [36, 48, 156]
def gemm(g, pfx, xstep, xmask, firstW, gaps, after_bar):
    e = g.e
    def rdA(t):
        c, u, k = t >> 2, (t >> 1) & 1, t & 1; sl = c % 6
        return [LG(f"ds_read_b64_tr_b16 {vr(FA[t%3]+2*ee,2)}, v{vA+sl//3} offset:{(sl%3)*16384+u*8192+k*2048+ee*1024}", f"{pfx}r{t}") for ee in range(2)]
    def rdB(t):
        c, u, k = t >> 2, (t >> 1) & 1, t & 1; sl = c % 6
        return [LG(f"ds_read_b128 {vr(FBq[t%3]+4*qb,4)}, v{vB+k} offset:{sl*8192+u*4096+qb*2048}", f"{pfx}r{t}") for qb in range(2)]
    e(Wt(vm=["W0", "X0"])); e("s_barrier")
    for t in range(2): e(rdA(t) + rdB(t))
    extra = {i: list(v) for i, v in gaps.items()}
    def put(i, l): extra.setdefault(i, []).extend(l)
    for c in range(16):
        groups = []
        if c + 5 < 16:
            if c + 5 >= firstW and not (g.opt.exp == 1 and pfx == "q"): groups.append(dmaW(c + 5))
            if not (g.opt.exp == 2 and pfx == "q"): groups.append(dmaX(c + 5, xstep, xmask))
        groups += after_bar.get(c, [])
        i = 8 * c + 4
        for pre, ops, post in groups:
            put(i, pre)
            for op in ops:
                i += 1; put(i, [op])
            put(i, post)
    for i in range(128):
        t, qb = i >> 1, i & 1
        if qb == 0: e(Wt(lg=f"{pfx}r{t}"))
        cc = "0" if t == 0 else vr(16 * qb, 16)
        e(f"v_mfma_f32_32x32x16_bf16 {vr(16*qb,16)}, {vr(FA[t%3],4)}, {vr(FBq[t%3]+4*qb,4)}, {cc}")
        if i % 8 == 4:
            c = i >> 3
            if c < 15: e(Wt(vm=[f"W{c+1}", f"X{c+1}"]))
            if c < 15 or c in after_bar: e("s_barrier")
        if t + 2 < 64: e(rdA(t + 2) if qb == 0 else rdB(t + 2))
        e(extra.pop(i, []))
    rest = []
    for i in sorted(extra): rest += extra[i]
    return rest

def gen(opt):
    g = G(opt); e = g.e
    opt.names = []
    XSC[0] = opt.xsc
    e(f"{NAME}_kernel:")
    if opt.stamps: e("s_memrealtime s[60:61]")
    e(f"""
    s_cmp_ge_u32 s2, 256
    s_cbranch_scc1 Lend
    s_load_dwordx16 s[4:19], s[0:1], 0
    s_load_dwordx8 s[20:27], s[0:1], 64
    s_load_dwordx2 s[28:29], s[0:1], 96
    v_lshrrev_b32 v1, 6, v0
    v_and_b32 v{vL}, 63, v0
    v_readfirstlane_b32 s{sW}, v1
    v_lshlrev_b32 v{v16}, 4, v{vL}
    s_and_b32 s{sX}, s2, 7
    s_lshr_b32 s{sJ}, s2, 3
    """)
    if opt.codepf:
        e(f"""
        s_lshl_b32 s{sT0}, s{sJ}, 2
        s_add_u32 s{sT0}, s{sT0}, s{sW}
        s_lshl_b32 s{sT0}, s{sT0}, 10
        s_cmp_ge_u32 s{sT0}, Lcode_end-Lpc1
        s_cbranch_scc1 Lnopf
        s_getpc_b64 s[{sT2}:{sT3}]
        Lpc1:
        v_add_u32 v13, s{sT0}, v{v16}
        global_load_dwordx4 {vr(vDummy,4)}, v13, s[{sT2}:{sT3}]
        Lnopf:
        """)
    e(f"""
    s_and_b32 s{sT0}, s{sJ}, 3
    s_lshl2_add_u32 s{sRB2}, s{sX}, s{sT0}
    s_lshr_b32 s{sG2}, s{sJ}, 2
    s_lshl1_add_u32 s{sT0}, s{sT0}, s{sG2}
    s_lshl_b32 s{sT0}, s{sT0}, 1
    s_and_b32 s{sC2}, s{sT0}, 15
    s_lshl2_add_u32 s{sCB}, s{sX}, s{sW}
    """)
    if opt.mapA:
        e(f"""
        s_and_b32 s{sT0}, s{sJ}, 7
        s_lshr_b32 s{sT1}, s{sX}, 1
        s_lshl3_add_u32 s{sRB}, s{sT1}, s{sT0}
        s_lshr_b32 s{sT1}, s{sJ}, 3
        s_and_b32 s{sT2}, s{sX}, 1
        s_lshl2_add_u32 s{sG}, s{sT2}, s{sT1}
        s_lshl1_add_u32 s{sT0}, s{sT1}, s{sT0}
        s_lshl_b32 s{sT0}, s{sT0}, 1
        s_and_b32 s{sC0}, s{sT0}, 15
        """)
    else:
        e(f"s_mov_b32 s{sRB}, s{sRB2}\ns_mov_b32 s{sG}, s{sG2}\ns_mov_b32 s{sC0}, s{sC2}")
    if opt.exp == 3: e(f"s_mov_b32 s{sC0}, 0")
    e(f"""
    v_lshrrev_b32 v1, 5, v{vL}
    v_lshrrev_b32 v2, 4, v{vL}
    v_and_b32 v7, 31, v{vL}
    v_and_b32 v9, 15, v{vL}
    v_xor_b32 v8, v7, v1
    v_lshlrev_b32 v8, 4, v8
    v_lshl_or_b32 v128, v1, 11, v8
    """)
    for n in range(1, 8):
        e(f"v_xor_b32 v{128+n}, {32*n}, v128\nv_add_u32 v{128+n}, {n*4096-1024*(n&3)}, v{128+n}")
    e(f"""
    s_lshl_b32 s{sT2}, s{sW}, 13
    s_add_u32 s{sT2}, s{sT2}, {112*1024}
    s_mov_b32 s{sT3}, {48*1024}
    s_cmp_eq_u32 s{sW}, 1
    s_cselect_b32 s{sT3}, {144*1024}, s{sT3}
    s_cmp_eq_u32 s{sW}, 2
    s_cselect_b32 s{sT3}, {80*1024}, s{sT3}
    s_cmp_eq_u32 s{sW}, 3
    s_cselect_b32 s{sT3}, {64*1024}, s{sT3}
    s_lshr_b32 s{sT0}, s{sG}, 1
    s_lshl2_add_u32 s{sT0}, s{sRB}, s{sT0}
    s_lshl_b32 s{sT4}, s{sT0}, 15
    s_lshl_b32 s{sT0}, s{sW}, 9
    s_add_u32 s{sT4}, s{sT4}, s{sT0}
    s_lshl_b32 s{sT5}, s{sW}, 14
    s_mov_b32 m0, s{sT2}
    s_mov_b32 s{sT1}, {FL_EPOCH}
    s_waitcnt lgkmcnt(0)
    """)
    if opt.stamps: e("s_mov_b32 s3, s60")
    e(g.srd(GX, 14, 4194304))
    kvx = [VM(f"buffer_load_dwordx4 v{128+n}, {sr(GX,4)}, s{sT4} offen offset:{1024*(n&3)} lds", "kv") for n in range(8)]
    e(kvx[0])
    e(g.srd(WS, 28, 0x10000000))
    e(VM(f"buffer_load_dword v143, off, {sr(WS,4)}, s{sT1} sc1", "kv"))
    fill = []
    fill.append([f"s_bitcmp1_b32 s{sG}, 0", f"s_cselect_b32 s{KW}, s20, s18", f"s_cselect_b32 s{KW+1}, s21, s19",
                 f"s_and_b32 s{KW+1}, s{KW+1}, 0xffff", f"s_mov_b32 s{KW+2}, 65536", f"s_mov_b32 s{KW+3}, 0x20000"])
    fill.append(g.srd(GW, 16, 2097152))
    fill.append(f"""
    v_bfe_u32 v3, v{vL}, 2, 2
    v_and_b32 v4, 1, v{vL}
    v_bfe_u32 v5, v{vL}, 1, 1
    v_and_b32 v6, 1, v2
    v_lshlrev_b32 v{vP4}, 2, v7
    v_lshrrev_b32 v11, 3, v{vL}
    """)
    fill.append(f"""
    v_lshlrev_b32 v10, 2, v2
    v_xor_b32 v10, v10, v9
    v_lshlrev_b32 v10, 4, v10
    v_lshl_or_b32 v{vOW}, v2, 11, v10
    v_add_u32 v{vOW+1}, 7168, v{vOW}
    v_add_u32 v{vOW+2}, 14336, v{vOW}
    v_add_u32 v{vOW+3}, 21504, v{vOW}
    """)
    fill.append(f"""
    s_and_b32 s{sT0}, s{sW}, 1
    s_lshl1_add_u32 s{sT0}, s{sRB}, s{sT0}
    s_lshl_b32 s{sT0}, s{sT0}, 16
    s_lshr_b32 s{sT1}, s{sW}, 1
    s_lshl_b32 s{sT1}, s{sT1}, 6
    s_add_u32 s{sT0}, s{sT0}, s{sT1}
    v_lshrrev_b32 v12, 2, v{vL}
    v_and_b32 v13, 3, v{vL}
    v_xor_b32 v14, v13, v2
    v_lshlrev_b32 v14, 4, v14
    v_lshl_or_b32 v14, v12, 11, v14
    v_add_u32 v{vOX}, s{sT0}, v14
    v_add_u32 v{vOX+1}, {32768-1024}, v{vOX}
    """)
    fill.append(f"""
    s_lshl_b32 s{sWb}, s{sW}, 12
    s_lshl_b32 s{sXb}, s{sW}, 11
    s_add_u32 s{sXb}, s{sXb}, {L_X}
    s_lshl2_add_u32 s{sT0}, s{sC0}, s{sW}
    s_lshl_b32 s{sT0}, s{sT0}, 7
    s_add_u32 s{sT0}, s{sT0}, s{sG}
    s_lshl_b32 s{sOffW}, s{sT0}, 8
    s_lshl_b32 s{sTX}, s{sC0}, 7
    """)
    fill.append([f"s_add_u32 m0, s{sT3}, 0"])
    for n in range(1, 8):
        if n == 4: e(f"s_add_u32 m0, s{sT2}, 4096\ns_nop 0")
        e(kvx[n]); e(fill.pop(0))
    assert not fill
    fill.append(f"""
    v_xor_b32 v13, v2, v9
    v_lshlrev_b32 v13, 4, v13
    v_lshl_or_b32 v13, v9, 9, v13
    v_add_u32 v136, s{sT2}, v13
    v_xor_b32 v14, 64, v13
    v_add_u32 v137, s{sT2}, v14
    v_xor_b32 v14, 128, v13
    v_add_u32 v138, s{sT2}, v14
    v_xor_b32 v14, 192, v13
    v_add_u32 v139, s{sT2}, v14
    """)
    fill.append(f"""
    v_lshl_add_u32 v13, v2, 3, v3
    v_lshlrev_b32 v13, 6, v13
    v_add_u32 v13, s{sT3}, v13
    v_and_b32 v14, 3, v{vL}
    v_lshlrev_b32 v14, 4, v14
    v_lshlrev_b32 v15, 5, v4
    v_lshl_or_b32 v15, v5, 3, v15
    s_bitcmp1_b32 s{sG}, 0
    s_cselect_b64 vcc, -1, 0
    s_cselect_b32 s{sT1}, 16, 8
    v_cndmask_b32 v14, v14, v15, vcc
    v_add_u32 v140, v13, v14
    v_add_u32 v141, s{sT1}, v140
    """)
    fill.append(f"""
    v_lshl_add_u32 v14, v1, 5, v9
    v_lshlrev_b32 v14, 4, v14
    v_lshl_or_b32 v14, v6, 10, v14
    v_cndmask_b32 v142, v14, v{v16}, vcc
    v_add_u32 v{vKhi}, 65536, v{v16}
    v_min_u32 v{vOne}, 1, v{vL}
    v_lshlrev_b32 v{vOne}, 28, v{vOne}
    """)
    fill.append(f"""
    v_lshl_add_u32 v13, v1, 4, v3
    v_xor_b32 v14, s{sW}, v3
    v_lshlrev_b32 v14, 1, v14
    v_add_u32 v14, v14, v4
    v_lshl_add_u32 v14, v14, 1, v6
    v_lshl_add_u32 v14, v14, 1, v5
    v_lshlrev_b32 v14, 3, v14
    v_lshl_or_b32 v{vA}, v13, 8, v14
    v_add_u32 v{vA+1}, 49152, v{vA}
    """)
    fill.append(f"""
    v_lshlrev_b32 v14, 1, v1
    v_xor_b32 v13, v3, v14
    v_lshlrev_b32 v13, 4, v13
    v_lshl_or_b32 v13, v7, 6, v13
    v_add_u32 v{vB}, {L_X}, v13
    v_xor_b32 v{vB+1}, 16, v{vB}
    """)
    fill.append(f"""
    v_lshl_add_u32 v13, v1, 3, v3
    v_lshl_add_u32 v14, v6, 1, v4
    v_lshrrev_b32 v15, 1, v3
    v_lshl_add_u32 v14, v14, 1, v15
    v_lshl_add_u32 v14, v14, 1, v5
    v_lshlrev_b32 v14, 3, v14
    v_lshl_or_b32 v13, v13, 7, v14
    s_add_u32 s{sMisc}, s{sWb}, {L_MISC}
    v_add_u32 v{vFB}, s{sMisc}, v13
    v_xor_b32 v{vFB+1}, 16, v{vFB}
    """)
    fill.append(f"""
    v_xor_b32 v13, v4, v6
    v_bfe_u32 v14, v{vL}, 1, 2
    v_lshlrev_b32 v15, 4, v14
    v_lshl_or_b32 v15, v11, 16, v15
    v_lshl_or_b32 v{vP1}, v13, 21, v15
    v_lshlrev_b32 v15, 9, v14
    v_lshl_or_b32 v15, v11, 12, v15
    v_lshl_or_b32 v{vZ}, v13, 4, v15
    """)
    fill.append(g.srd(OUT, 24, 8388608) + g.srd(XA, 4, 4194304))
    fill.append(f"""
    s_getpc_b64 s[{TBL}:{TBL+1}]
    s_add_u32 s{TBL}, s{TBL}, fn_tables@rel32@lo+4
    s_addc_u32 s{TBL+1}, s{TBL+1}, fn_tables@rel32@hi+12
    s_and_b32 s{TBL+1}, s{TBL+1}, 0xffff
    s_mov_b32 s{TBL+2}, {TB.TBL_SIZE}
    s_mov_b32 s{TBL+3}, 0x20000
    """)
    fill.append(f"""
    s_lshl3_add_u32 s{sFlKV}, s{sRB}, s{sG}
    s_lshl_b32 s{sFlKV}, s{sFlKV}, 2
    s_add_u32 s{sFlKV}, s{sFlKV}, {FL_KV}
    s_lshl_b32 s{sKV}, s{sX}, 15
    s_add_u32 s{sKV}, s{sKV}, s{sWb}
    s_add_u32 s{sKV2}, s{sKV}, 16384
    s_lshl_b32 s{sF1}, s{sJ}, 5
    s_add_u32 s{sF1}, s{sF1}, s{sCB}
    s_lshl_b32 s{sFl2}, s{sF1}, 2
    s_add_u32 s{sFl2}, s{sFl2}, {FL_Z2}
    s_lshl_b32 s{sSt2}, s{sF1}, 12
    s_add_u32 s{sSt2}, s{sSt2}, {WS_Z2}
    s_lshl_b32 s{sF1}, s{sF1}, 6
    """)
    fill.append(f"""
    s_lshl_b32 s{sSt1}, s{sCB}, 5
    s_add_u32 s{sSt1}, s{sSt1}, s{sJ}
    s_lshl_b32 s{sFl1}, s{sSt1}, 2
    s_add_u32 s{sFl1}, s{sFl1}, {FL_Z1}
    s_lshl_b32 s{sSt1}, s{sSt1}, 12
    s_add_u32 s{sSt1}, s{sSt1}, {WS_Z1}
    s_lshl_b32 s{sPo1}, s{sCB}, 7
    s_add_u32 s{sPo1}, s{sPo1}, {FL_Z1}
    s_lshl_b32 s{sPo2}, s{sJ}, 7
    s_add_u32 s{sPo2}, s{sPo2}, {FL_Z2}
    s_lshl_b32 s{sTab2}, s{sJ}, 13
    s_add_u32 s{sTab2}, s{sTab2}, {TB.OFF_T2}
    """)
    def zoff(dst, hi, lo, base):
        return f"""
        s_lshl_b32 s{dst}, s{hi}, 17
        s_lshr_b32 s{sT1}, s{lo}, 4
        s_lshl_b32 s{sT1}, s{sT1}, 11
        s_add_u32 s{dst}, s{dst}, s{sT1}
        s_and_b32 s{sT1}, s{lo}, 15
        s_lshl_b32 s{sT1}, s{sT1}, 5
        s_add_u32 s{dst}, s{dst}, s{sT1}
        s_add_u32 s{dst}, s{dst}, {base}
        """
    fill.append(zoff(sF2, sCB, sJ, WS_Z1))
    fill.append(zoff(sF3, sJ, sCB, WS_Z2))
    fill.append(f"""
    s_lshl_b32 s{sT1}, s{sCB}, 6
    s_add_u32 s{sRow}, s{sT1}, s{sJ}
    s_sub_u32 s{sTb}, s{sT1}, {1024-32}
    s_cmp_lt_u32 s{sCB}, 16
    s_cselect_b32 s{sT1}, s{sT1}, s{sTb}
    s_cmp_eq_u32 s{sJ}, 0
    s_cselect_b32 s{sRow}, s{sT1}, s{sRow}
    s_lshl2_add_u32 s{sT1}, s{sG}, s{sW}
    s_lshl_b32 s{sOst}, s{sRB}, 5
    s_add_u32 s{sOst}, s{sOst}, s{sT1}
    s_lshl_b32 s{sFlO}, s{sOst}, 2
    s_add_u32 s{sFlO}, s{sFlO}, {FL_O}
    s_lshl_b32 s{sOst}, s{sOst}, 12
    s_add_u32 s{sOst}, s{sOst}, {WS_O}
    """)
    fill.append(f"""
    s_lshl_b32 s{sPoO}, s{sRB2}, 7
    s_add_u32 s{sPoO}, s{sPoO}, {FL_O}
    s_lshl2_add_u32 s{sT1}, s{sC2}, s{sW}
    s_lshl_b32 s{sT1}, s{sT1}, 7
    s_add_u32 s{sT1}, s{sT1}, s{sG2}
    s_lshl_b32 s{sOffW2}, s{sT1}, 8
    """)
    for q in range(4):
        if q: e(f"s_add_u32 m0, s{sT3}, {4096*q}")
        e(f"s_add_u32 s{sT0}, s{sT5}, {4096*q}")
        for n in range(4):
            e(VM(f"buffer_load_dwordx4 v{v16}, {sr(KW,4)}, s{sT0} offen offset:{1024*n} lds", "kv"))
            if fill: e(fill.pop(0))
    assert not fill
    XS, XM = 128, 2047
    if opt.fine: e("s_memrealtime s[18:19]")
    e(burst(dmaW(0))); e(burst(dmaX(0, XS, XM)))
    if opt.stamps:
        e(f"s_lshl2_add_u32 s8, s2, s{sW}\ns_lshl_b32 s8, s8, 8\ns_add_u32 s8, s8, {WS_ST}")
        opt.names.append("entry"); g.nst += 1
        if opt.dbg:
            e(g.srd(12, 26, 256))
            e(f"""
            s_or_b32 s9, s{sW}, s{sJ}
            s_cmp_lg_u32 s9, 0
            s_cbranch_scc1 Lnost0
            v_not_b32 v195, s3
            s_mov_b64 exec, 1
            buffer_atomic_umax v195, off, s[12:15], 0
            s_mov_b64 exec, -1
            Lnost0:
            """)
        else:
            e(f"v_mov_b32 v195, s3\nbuffer_store_dword v195, off, {sr(WS,4)}, s8")
            if opt.fine:
                opt.names.append("kv issued"); g.nst += 1
                e(f"s_waitcnt lgkmcnt(0)\nv_mov_b32 v195, s18\nbuffer_store_dword v195, off, {sr(WS,4)}, s8 offset:8")
    e(Wt(vm="kv"))
    g.stamp("kv landed")
    later = burst(dmaW(1)) + burst(dmaX(1, XS, XM)) + burst(dmaW(2))
    def take_vm(lst):
        out = []
        while lst:
            x = lst.pop(0); out.append(x)
            if isinstance(x, I) and x.kind == "vm": break
        return out
    for ks in range(8):
        e(LG(f"ds_read_b128 {vr(4*ks,4)}, v{136+(ks&3)} offset:{256*(ks>>2)}", f"k{ks}"))
        for b in range(2):
            for ee in range(2):
                e(LG(f"ds_read_b64_tr_b16 {vr(64+8*ks+4*b+2*ee,2)}, v{140+b} offset:{2048*ks+256*ee}", f"k{ks}"))
        if ks == 0: e(f"v_readfirstlane_b32 s{sTAG}, v143")
        if ks == 1: e(f"s_mul_i32 s{sTAG}, s{sTAG}, 0x9e3779b1\ns_add_u32 s{sTAG}, s{sTAG}, 0x7f4a7c15")
        if ks >= 2: e(take_vm(later))
    e(Wt(lg="k4"))
    e(f"s_bitcmp1_b32 s{sG}, 0\ns_cbranch_scc1 Lkv_v")
    for var in range(2):
        if var == 1: e("Lkv_v:")
        for ks in range(8):
            if ks == 5: e("s_waitcnt lgkmcnt(0)")
            for b in range(2):
                w = vr(64 + 8 * ks + 4 * b, 4); x = vr(4 * ks, 4); d = vr(32 + 4 * b, 4)
                c = "0" if ks == 0 else d
                e(f"v_mfma_f32_16x16x32_bf16 {d}, {w}, {x}, {c}" if var == 0 else f"v_mfma_f32_16x16x32_bf16 {d}, {x}, {w}, {c}")
        if var == 0: e("s_branch Lkv_j")
    e("Lkv_j:")
    e(Wt(lg="all"))
    e(f"""
    s_cmp_eq_u32 s{sW}, 3
    s_cselect_b32 s{sT1}, s{sT2}, s{sT3}
    v_add_u32 v13, s{sT1}, v{v16}
    """)
    e(take_vm(later)); e(take_vm(later))
    e(f"""
    s_cmp_eq_u32 s{sW}, 0
    s_cbranch_scc1 Lkv_nw
    s_nop 1
    ds_write_b128 v13, v[32:35]
    ds_write_b128 v13, v[36:39] offset:1024
    s_waitcnt lgkmcnt(0)
    Lkv_nw:
    s_barrier
    s_cmp_lg_u32 s{sW}, 0
    s_cbranch_scc1 Lkv_done
    v_add_u32 v13, {80*1024}, v{v16}
    v_add_u32 v14, {136*1024}, v{v16}
    ds_read_b128 v[40:43], v13
    ds_read_b128 v[44:47], v13 offset:1024
    ds_read_b128 v[48:51], v14
    ds_read_b128 v[52:55], v14 offset:1024
    ds_read_b128 v[56:59], v14 offset:8192
    ds_read_b128 v[60:63], v14 offset:9216
    s_lshr_b32 s{sT1}, s{sG}, 2
    s_lshl1_add_u32 s{sT0}, s{sRB}, s{sT1}
    s_lshl_b32 s{sT0}, s{sT0}, 12
    s_bfe_u32 s{sT1}, s{sG}, 0x10001
    s_lshl_b32 s{sT2}, s{sT1}, 8
    s_lshl_b32 s{sT1}, s{sT1}, 10
    s_add_u32 s{sT1}, s{sT1}, 2048
    s_bitcmp1_b32 s{sG}, 0
    s_cselect_b32 s{sT1}, s{sT1}, s{sT2}
    s_cselect_b32 s{sT2}, 1.0, {hex(f2u(1.4426950408889634/32**0.5))}
    s_mov_b32 s{sT3}, s{sT2}
    s_add_u32 s{sT0}, s{sT0}, s{sT1}
    """)
    for p in range(3):
        e(f"s_waitcnt lgkmcnt({4-2*p})")
        for i in range(4):
            e(f"v_pk_add_f32 {vr(32+2*i,2)}, {vr(32+2*i,2)}, {vr(40+8*p+2*i,2)}")
    for i in range(4): e(f"v_pk_mul_f32 {vr(32+2*i,2)}, {vr(32+2*i,2)}, s[{sT2}:{sT3}]")
    for i in range(4): e(f"v_cvt_pk_bf16_f32 v{40+i}, v{32+2*i}, v{33+2*i}")
    e(f"""
    s_bitcmp1_b32 s{sG}, 0
    s_cbranch_scc0 Lkv_st
    v_permlane16_swap_b32 v40, v42
    v_permlane16_swap_b32 v41, v43
    Lkv_st:
    buffer_store_dwordx4 v[40:43], v142, {sr(WS,4)}, s{sT0} offen sc1
    Lkv_done:
    """)
    e(later)
    for p in (dmaX(2, XS, XM), dmaW(3), dmaX(3, XS, XM), dmaW(4), dmaX(4, XS, XM)): e(burst(p))
    g.stamp("kv done")
    gaps = {}
    g.tail += ["Lkvflag:"] + g.flag(56, sFlKV) + ["s_branch Lkvflag_b"]
    gaps[13] = [f"s_cmp_eq_u32 s{sW}, 0", "s_cbranch_scc1 Lkvflag", "Lkvflag_b:"]
    init = [f"v_mov_b64 {vr(i,2)}, 0" for i in range(O[0], Lr[1] + 4, 2)]
    init += [f"v_mov_b32 v{IDX}, 0xdddddddd", "v_mov_b32 v60, 0x3f803f80", f"v_and_b32 v61, 7, v{vL}", "v_cmp_eq_u32 vcc, 0, v61",
             "v_cmp_eq_u32 s[10:11], 4, v61", "s_nop 1"]
    init += [f"v_cndmask_b32 v{ONES}, 0, v60, vcc", f"v_cndmask_b32 v{ONES+1}, 0, v60, vcc",
             f"v_cndmask_b32 v{ONES+2}, 0, v60, s[10:11]", f"v_cndmask_b32 v{ONES+3}, 0, v60, s[10:11]"]
    for n, x in enumerate(init): gaps.setdefault(18 + 2 * n, []).append(x)
    kvpoll = f"buffer_load_dwordx4 v[56:59], v{v16}, {sr(WS,4)}, s{sT5} offen sc1"
    b0 = opt.kvb
    gaps.setdefault(8 * b0 - 5, []).extend([f"s_mov_b32 s{sT5}, {FL_KV}", VM(kvpoll, "kvpoll")])
    if opt.fine:
        gaps.setdefault(5, []).extend(g.stampl("q c0"))
        gaps.setdefault(45, []).extend(g.stampl("q c5"))
        gaps.setdefault(8 * b0 + 2, []).extend(g.stampl("q prechk"))
    gaps.setdefault(8 * b0 + 3, []).extend([Wt(vm="kvpoll")] + g.check(4, 56, kvpoll) + (g.stampl("q postchk") if opt.fine else []))
    halves = [(0, 0), (0, 1), (1, 0), (1, 1), (2, 0), (2, 1), (3, 0), (3, 1)]
    ab = {}
    for c in range(b0, 16):
        ab[c] = []
        while halves and len(ab[c]) < (2 if c > 11 else 1) and (8 - len(halves)) <= c - 11:
            ab[c].append(dmaKV(*halves.pop(0)))
    rest = gemm(g, "q", XS, XM, 0, gaps, ab)
    g.stamp("q gemm done")
    g.tail += ["Lepoch:", f"s_mov_b32 s{sT0}, {FL_EPOCH}"] + g.flag(56, sT0) + ["s_branch Lepoch_b"]
    e(rest)
    e(f"s_or_b32 s{sT0}, s2, s{sW}\ns_cbranch_scc0 Lepoch\nLepoch_b:")
    e(Wt(vm=["KV0a", "KV0b", "KV1a"], lg="all"))
    e("s_barrier")
    def kvaddr(T, frag):
        a = KB[(T >> 3) % 4] + (T & 7) * 4096 + frag * 1024
        return (vKlo, a) if a < 65536 else (vKhi, a - 65536)
    def rdKV(dst, T, frag, tag):
        r, o = kvaddr(T, frag); return LG(f"ds_read_b128 {vr(dst,4)}, v{r} offset:{o}", tag)
    for t in range(2):
        for k in range(2): e(rdKV(K[t] + 4 * k, t, k, f"pk{t}"))
    for k in range(2): e(rdKV(V[0] + 4 * k, 0, 2 + k, "pv"))
    e("s_nop 1")
    for i in range(16): e(f"v_cvt_pk_bf16_f32 v{Q[0]+i}, v{2*i}, v{2*i+1}")
    for t in range(2):
        e(Wt(lg=f"pk{t}", must=True))
        for qb in range(2):
            s = S[2 * t + qb]
            e(f"v_mfma_f32_32x32x16_bf16 {vr(s,16)}, {vr(K[t],4)}, {vr(Q[qb],4)}, 0")
            e(f"v_mfma_f32_32x32x16_bf16 {vr(s,16)}, {vr(K[t]+4,4)}, {vr(Q[qb]+4,4)}, {vr(s,16)}")
    def maxtree(dst, s, first):
        L = []
        if first:
            L.append(f"v_max3_f32 v{dst}, v{s}, v{s+1}, v{s+2}")
            L += [f"v_max3_f32 v{dst}, v{dst}, v{s+i}, v{s+i+1}" for i in range(3, 15, 2)]
            L.append(f"v_max_f32 v{dst}, v{dst}, v{s+15}")
        else:
            L += [f"v_max3_f32 v{dst}, v{dst}, v{s+i}, v{s+i+1}" for i in range(0, 16, 2)]
        return L
    e("s_nop 5")
    e(maxtree(vT0, S[0], True) + maxtree(vT1, S[1], True) + maxtree(vT0, S[2], False) + maxtree(vT1, S[3], False))
    def finish_max(off, mid):
        lit = hex(f2u(-off)) if off else 0
        e(f"""
        v_mov_b32 v{vT2}, v{vT0}
        v_mov_b32 v{vT3}, v{vT1}
        s_nop 0
        v_permlane32_swap_b32 v{vT0}, v{vT2}
        v_permlane32_swap_b32 v{vT1}, v{vT3}
        v_max_f32 v{vT0}, v{vT0}, v{vT2}
        v_max_f32 v{vT1}, v{vT1}, v{vT3}
        v_sub_f32 v{M[0]}, {lit}, v{vT0}
        v_sub_f32 v{M[0]+1}, {lit}, v{vT0}
        """)
        for i in range(2, 16, 2): e(f"v_mov_b64 {vr(M[0]+i,2)}, {vr(M[0],2)}")
        e(f"v_sub_f32 v{M[1]}, {lit}, v{vT1}\nv_sub_f32 v{M[1]+1}, {lit}, v{vT1}")
        e(mid)
        for i in range(2, 16, 2): e(f"v_mov_b64 {vr(M[1]+i,2)}, {vr(M[1],2)}")
    finish_max(opt.off, [f"v_mfma_f32_32x32x16_bf16 {vr(S[0],16)}, {vr(K[0],4)}, {vr(Q[0],4)}, {vr(M[0],16)}",
                         f"v_mfma_f32_32x32x16_bf16 {vr(S[0],16)}, {vr(K[0]+4,4)}, {vr(Q[0]+4,4)}, {vr(S[0],16)}"])
    e("s_nop 3")
    g.stamp("attn start"); g.stamp("attn start", True)
    sl = {k: {} for k in ("q1", "q2", "p1", "p2", "x", "va", "top")}
    def put(kind, n, l): sl[kind].setdefault(n, []).extend(l if isinstance(l, list) else [l])
    def put_group(grp, n0, kind="p1"):
        pre, ops, post = grp
        put("q2", n0, pre)
        for i, op in enumerate(ops): put(kind, n0 + i, op)
        n1 = n0 + len(ops) - 1
        for i, x in enumerate(post): put("p2" if i == 0 else "q1", n1 + i, x)
        return n0 + len(ops)
    def tabload(dst, off, sreg, n, tag):
        L = []
        for m in range(n):
            L.append(VM(f"buffer_load_dwordx4 {dst(m)}, v{v16}, {sr(TBL,4)}, s{sreg+(m>>2)} offen offset:{1024*(m&3)}", tag))
        return L
    def fftdata(srd, voff, sreg, step, n0, tag):
        put("q2", n0, f"s_mov_b32 m0, s{sMisc}")
        for n in range(4):
            put("p1", n0 + n, VM(f"buffer_load_dwordx4 v{voff}, {sr(srd,4)}, s{sreg} offen offset:{1024*n} sc1 lds", tag))
            if n < 3: put("q1", n0 + n + 1, f"s_add_u32 s{sreg}, s{sreg}, {step}")
    def comp(n0, aT, sst, dtag, ttag, stag):
        put("q2", n0, Wt(vm=[dtag, ttag]))
        for k in range(4):
            for ee in range(2):
                put("p2", n0 + k, LG(f"ds_read_b64_tr_b16 {ar(aD+4*k+2*ee,2)}, v{vFB+(k>>1)} offset:{(k&1)*2048+ee*512}", f"{stag}r{k}"))
        for i in range(8):
            k, nb = i >> 1, i & 1; d = vr(vFD + 16 * nb, 16)
            put("q2", n0 + 4 + i, Wt(lg=f"{stag}r{k}"))
            put("x", n0 + 4 + i, f"v_mfma_f32_32x32x16_bf16 {d}, {ar(aD+4*k,4)}, {ar(aT+16*nb+4*k,4)}, {'0' if k==0 else d}")
        for q in range(4):
            nb, i = q >> 1, q & 1
            for m_ in range(4 * i, 4 * i + 4):
                put("va", n0 + 13 + q, f"v_cvt_pk_bf16_f32 v{vFD+16*nb+m_}, v{vFD+16*nb+2*m_}, v{vFD+16*nb+2*m_+1}")
            put("p1", n0 + 14 + q, VM(f"buffer_store_dwordx4 {vr(vFD+16*nb+4*i,4)}, v{v16}, {sr(WS,4)}, s{sst} offen offset:{1024*q} sc1", stag))
    def putflag(n, sfl, stag):
        put("q2", n, Wt(vm=stag)); put("va", n, f"v_mov_b32 v{vT0}, s{sTAG}")
        put("p2", n, VM(f"buffer_store_dword v{vT0}, v{vOne}, {sr(WS,4)}, s{sfl} offen sc1"))
    def putpoll(n, nchk, spo, tag):
        ld = f"buffer_load_dword v{vPoll}, v{vP4}, {sr(WS,4)}, s{spo} offen sc1"
        put("p2", n, VM(ld, tag))
        put("q1", nchk, Wt(vm=tag)); put("top2" if False else "q2", nchk, g.check(1, vPoll, ld))
    n = 8
    for hv in halves: n = put_group(dmaKV(*hv), n)
    assert n <= 24
    n = max(n, 17)
    for hf in range(2): n = put_group(dmaKV(4, hf), n)
    assert n <= 28
    for ch in (5, 6, 7):
        n = 16 * (ch - 3)
        for hf in range(2): n = put_group(dmaKV(ch, hf), n)
    put("q1", 70, [f"s_mov_b32 s{GW}, s22"]); put("q1", 71, [f"s_and_b32 s{GW+1}, s23, 0xffff"])
    put("q1", 72, f"s_add_u32 s{sOffW}, s{sOffW2}, 0x80000"); put("q1", 73, f"s_and_b32 s{sOffW}, s{sOffW}, 0x1fffff")
    n = put_group(dmaW(4), 80); put_group(dmaW(5), n)
    n = 96
    for c in range(2): n = put_group(dmaW(c, sOffW2), n)
    n = 112
    for c in range(2, 4): n = put_group(dmaW(c, sOffW2), n)
    if not opt.nofft:
        fftdata(XA, vP1, sF1, 512 * 1024 - 1024, 0, "d1")
        e(f"s_mov_b32 s{sT0}, {TB.OFF_T1}\ns_mov_b32 s{sT1}, {TB.OFF_T1+4096}")
        for m, op in enumerate(tabload(lambda m: ar(aT1 + 4 * m, 4), 0, sT0, 8, "t1")): put("p2" if m < 4 else "p1", m, op)
        comp(14, aT1, sSt1, "d1", "t1", "s1")
        putflag(41, sFl1, "s1")
        put("q1", 38, f"s_mov_b32 s{sT0}, s{sTab2}"); put("q1", 39, f"s_add_u32 s{sT1}, s{sTab2}, 4096")
        for m, op in enumerate(tabload(lambda m: ar(aT2 + 4 * m, 4), 0, sT0, 8, "t2")): put("p1", 40 + m, op)
        putpoll(56, 59, sPo1, "po1")
        fftdata(WS, vZ, sF2, 32768 - 1024, 60, "d2")
        put("q1", 68, f"s_mov_b32 s{sT0}, {TB.OFF_T3}"); put("q1", 69, f"s_mov_b32 s{sT1}, {TB.OFF_T3+4096}")
        for m, op in enumerate(tabload(lambda m: ar(aT3 + 4 * m, 4), 0, sT0, 6, "t3")): put("p1", 72 + m, op)
        put("q1", 74, f"s_mov_b32 s{sT2}, {TB.OFF_TX}")
        put("p1", 78, tabload(lambda m: ar(aTX, 4), 0, sT2, 1, "t3"))
        comp(74, aT2, sSt2, "d2", "t2", "s2")
        put("q1", 90, f"s_mov_b32 s{sT0}, {TB.OFF_TW}"); put("q1", 91, f"s_mov_b32 s{sT1}, {TB.OFF_TW+4096}")
        for m, op in enumerate(tabload(lambda m: ar(aTW + 4 * m, 4), 0, sT0, 8, "t3")): put("p1", (92 + m) if m < 4 else (100 + m), op)
        putflag(101, sFl2, "s2")
        putpoll(117, 120, sPo2, "po2")
        fftdata(WS, vZ, sF3, 32768 - 1024, 121, "d3")
    for k in ("p1",):
        for n_, l in sl[k].items(): assert len(l) <= 1, (k, n_, l)
    for n in range(128):
        X = n & 1; Y = 1 - X
        se, sp, sq = S[n % 4], S[(n - 1) % 4], S[(n + 1) % 4]
        tq = ((n + 1) // 2) % 2; tv = ((n - 1) // 2) % 2
        E = [f"v_exp_f32 v{se+i}, v{se+i}" for i in range(16)]
        Q1 = f"v_mfma_f32_32x32x16_bf16 {vr(sq,16)}, {vr(K[tq],4)}, {vr(Q[Y],4)}, {vr(M[Y],16)}"
        Q2 = f"v_mfma_f32_32x32x16_bf16 {vr(sq,16)}, {vr(K[tq]+4,4)}, {vr(Q[Y]+4,4)}, {vr(sq,16)}"
        P1 = f"v_smfmac_f32_32x32x32_bf16 {vr(O[Y],16)}, {vr(V[tv],4)}, {vr(sp,8)}, v{IDX}"
        P2 = f"v_smfmac_f32_32x32x32_bf16 {vr(O[Y],16)}, {vr(V[tv]+4,4)}, {vr(sp+8,8)}, v{IDX}"
        L1 = f"v_smfmac_f32_16x16x64_bf16 {vr(Lr[Y],4)}, {vr(ONES,4)}, {vr(sp,8)}, v{IDX}"
        L2 = f"v_smfmac_f32_16x16x64_bf16 {vr(Lr[Y],4)}, {vr(ONES,4)}, {vr(sp+8,8)}, v{IDX}"
        if n == 0: P1 = P2 = L1 = L2 = None
        if n == 127: Q1 = Q2 = None
        T = n >> 1
        if X == 0: D = [rdKV(K[tq] + 4 * k, T + 2, k, f"h{n}") for k in range(2)] if T + 2 < 64 else [None, None]
        else: D = [rdKV(V[1 - tv] + 4 * k, T + 1, 2 + k, f"h{n}") for k in range(2)] if T + 1 < 64 else [None, None]
        if n % 16 == 0 and n:
            c = n >> 4
            e(Wt(vm=[f"KV{c}b", f"KV{c+1}a"])); e("s_barrier")
        w = Wt(lg=[f"h{n-2}", "pv"])
        gq = lambda k: sl[k].get(n, [])
        xm = gq("x")
        if xm: a, b, c_, d_ = 8, 9, 12, 13
        else: a, b, c_, d_ = 9, 11, 14, 16
        e([Q1, w] + gq("q1") + E[0:3] + [Q2] + gq("q2") + E[3:6] + [P1] + gq("p1") + E[6:a] + [L1, D[0]] + E[a:b] + gq("va") +
          [P2] + gq("p2") + E[b:c_] + [L2, D[1]] + E[c_:d_] + xm + E[d_:16])
    e(f"""
    v_rcp_f32 v{vT0}, v{Lr[0]}
    v_smfmac_f32_16x16x64_bf16 {vr(Lr[1],4)}, {vr(ONES,4)}, {vr(S[3],8)}, v{IDX}
    v_smfmac_f32_16x16x64_bf16 {vr(Lr[1],4)}, {vr(ONES,4)}, {vr(S[3]+8,8)}, v{IDX}
    v_smfmac_f32_32x32x32_bf16 {vr(O[1],16)}, {vr(V[1],4)}, {vr(S[3],8)}, v{IDX}
    v_smfmac_f32_32x32x32_bf16 {vr(O[1],16)}, {vr(V[1]+4,4)}, {vr(S[3]+8,8)}, v{IDX}
    s_mov_b32 s{sMode}, 0
    """.replace(f"v_rcp_f32 v{vT0}, v{Lr[0]}\n", "s_nop 0\n"))
    g.stamp("attn end"); g.stamp("attn end", True)
    e("s_nop 2\nLa_norm:")
    for qb in range(2):
        e(f"v_rcp_f32 v{2*qb}, v{Lr[qb]}\ns_nop 0\nv_mov_b32 v{2*qb+1}, v{2*qb}")
        for i in range(8): e(f"v_pk_mul_f32 {vr(O[qb]+2*i,2)}, {vr(O[qb]+2*i,2)}, {vr(2*qb,2)}")
        for i in range(8): e(f"v_cvt_pk_bf16_f32 v{8+8*qb+i}, v{O[qb]+2*i}, v{O[qb]+2*i+1}")
        for k in range(2):
            e(VM(f"buffer_store_dwordx4 {vr(8+8*qb+4*k,4)}, v{v16}, {sr(WS,4)}, s{sOst} offen offset:{2048*qb+1024*k} sc1", "ost"))
    e(f"v_maximum3_f32 v4, v{Lr[0]}, v{Lr[1]}, abs(v{O[0]})")
    for i in range(1, 31, 2): e(f"v_maximum3_f32 v4, v4, abs(v{O[0]+i}), abs(v{O[0]+i+1})")
    e(f"""
    v_maximum3_f32 v4, v4, abs(v{O[0]+31}), v4
    s_mov_b32 s{sT0}, {hex(f2u(2.0**110))}
    v_cmp_nlt_f32 vcc, v4, s{sT0}
    """)
    if opt.force_fb: e("s_nop 1\ns_mov_b64 vcc, -1")
    e(f"""
    s_cmp_eq_u64 vcc, 0
    s_cselect_b32 s{sT0}, 1, s{sMode}
    s_cmp_eq_u32 s{sT0}, 0
    s_cbranch_scc1 Lfb
    """)
    g.stamp("o stored")
    pA = 32; pR = 48; pI = 64; pU = 80; pT = 96; pF = 104; pM = 112; pX = 120; pW = 128
    oflag = [Wt(vm="ost")] + g.flag(0, sFlO)
    e(Wt(vm=["d3", "t3"]))
    e("Lp3:")
    for k in range(4):
        for ee in range(2):
            e(f"ds_read_b64_tr_b16 {vr(pA+4*k+2*ee,2)}, v{vFB+(k>>1)} offset:{(k&1)*2048+ee*512}")
    e(f"""
    s_sub_u32 s{sT0}, 2048, s{sRow}
    s_and_b32 s{sT0}, s{sT0}, 2047
    s_lshl_b32 s{sT1}, s{sT0}, 12
    s_lshl_b32 s{sT0}, s{sRow}, 12
    s_and_b32 s{sT2}, s{sRow}, 1023
    s_cbranch_scc0 Lp3_real
    Lp3_mm:
    """)
    g.tail += ["Lp3_real:", "s_waitcnt lgkmcnt(0)"] + [f"v_mov_b64 {vr(pA+8+i,2)}, 0" for i in range(0, 8, 2)] + [
        f"v_xor_b32 v{vFB}, 16, v{vFB}", "s_branch Lp3_mm"]
    acc = [f"v_accvgpr_read_b32 v{pW+i}, a{aTW+i}" for i in range(32)] + [f"v_accvgpr_read_b32 v{pX+i}, a{aTX+i}" for i in range(3)]
    for k in range(4):
        e(f"s_waitcnt lgkmcnt({6-2*k})")
        for nb in range(2):
            d = vr((pR, pI)[nb], 16)
            tb = aT3 + (4 * k if nb == 0 else (16 + 4 * k if k < 2 else 4 * (k - 2)))
            e(f"v_mfma_f32_32x32x16_bf16 {d}, {vr(pA+4*k,4)}, {ar(tb,4)}, {'0' if k==0 else d}")
            for _ in range(3): e(acc.pop(0))
    e(acc); e("s_nop 0")
    if opt.oflag == 0: e(oflag)
    for i in range(8):
        r, im, c, s_ = pR + 2 * i, pI + 2 * i, pW + 2 * i, pW + 16 + 2 * i
        e(f"""
        v_pk_mul_f32 {vr(pT,2)}, {vr(r,2)}, {vr(c,2)}
        v_pk_mul_f32 {vr(pT+2,2)}, {vr(im,2)}, {vr(c,2)}
        v_pk_fma_f32 {vr(pT,2)}, {vr(im,2)}, {vr(s_,2)}, {vr(pT,2)}
        v_pk_fma_f32 {vr(pT+2,2)}, {vr(r,2)}, {vr(s_,2)}, {vr(pT+2,2)} neg_lo:[0,1,0] neg_hi:[0,1,0]
        v_cvt_pk_bf16_f32 v{pU+i}, v{pT}, v{pT+1}
        v_cvt_pk_bf16_f32 v{pU+8+i}, v{pT+2}, v{pT+3}
        """)
    e("s_nop 0")
    for k in range(4):
        e(f"v_mfma_f32_32x32x16_bf16 {vr(pR,16)}, {vr(pU+4*k,4)}, {ar(aT3+4*k,4)}, {'0' if k==0 else vr(pR,16)}")
    if opt.oflag == 1: e(oflag)
    e(f"""
    s_mov_b64 s[{GX}:{GX+1}], s[{WS}:{WS+1}]
    s_mov_b32 s{GX+2}, 0x10000000
    s_lshl_b32 s{sT2}, s{sRB2}, 6
    s_add_u32 s{sT2}, s{sT2}, s{sW}
    s_lshl_b32 s{sT2}, s{sT2}, 11
    s_add_u32 s{sT2}, s{sT2}, {WS_O}
    s_lshl_b32 s{sTX}, s{sC2}, 13
    v_add_u32 v{vOX}, s{sT2}, v{v16}
    v_add_u32 v{vOX+1}, s{sT2}, v{v16}
    v_add_u32 v{vB}, {L_X}, v{v16}
    v_add_u32 v{vB+1}, {L_X+1024}, v{v16}
    s_nop 0
    ds_bpermute_b32 v{pR+16}, v{pX}, v{pR}
    """)
    for m_ in range(8): e(f"v_cvt_pk_bf16_f32 v{pF+m_}, v{pR+2*m_}, v{pR+2*m_+1}")
    for m_ in range(1, 8): e(f"v_cvt_pk_bf16_f32 v{pM+m_}, v{pR+16-2*m_}, v{pR+15-2*m_}")
    for i in range(4): e(f"v_permlane16_swap_b32 v{pF+i}, v{pF+4+i}")
    e(VM(f"buffer_store_dwordx4 {vr(pF,4)}, v{pX+1}, {sr(OUT,4)}, s{sT0} offen {opt.out_sc}"))
    e(VM(f"buffer_store_dwordx4 {vr(pF+4,4)}, v{pX+1}, {sr(OUT,4)}, s{sT0} offen offset:512 {opt.out_sc}"))
    e(f"s_waitcnt lgkmcnt(0)\nv_cvt_pk_bf16_f32 v{pM}, v{pR+16}, v{pR+15}\ns_nop 1")
    for i in range(4): e(f"v_permlane16_swap_b32 v{pM+i}, v{pM+4+i}")
    e(VM(f"buffer_store_dwordx4 {vr(pM,4)}, v{pX+2}, {sr(OUT,4)}, s{sT1} offen offset:512 {opt.out_sc}"))
    e(VM(f"buffer_store_dwordx4 {vr(pM+4,4)}, v{pX+2}, {sr(OUT,4)}, s{sT1} offen {opt.out_sc}"))
    if opt.oflag == 2: e(oflag)
    e(f"s_cmp_eq_u32 s{sRow}, 0\ns_cbranch_scc1 Lp3_again")
    g.tail += ["Lp3_again:", f"s_movk_i32 s{sRow}, 1024", "s_branch Lp3"]
    opoll = f"buffer_load_dword v{vPoll}, v{vP4}, {sr(WS,4)}, s{sPoO} offen sc1"
    e(opoll)
    g.stamp("p3 done")
    e(Wt(vm="all"))
    e("s_barrier")
    e(g.check(1, vPoll, opoll))
    g.stamp("o flags")
    for c in range(5): e(burst(dmaX(c, 8192, 0x1ffff)))
    og = {}
    if opt.fine:
        og[1] = g.stampl("o first"); og[45] = g.stampl("o c5"); og[85] = g.stampl("o c10")
    rest = gemm(g, "o", 8192, 0x1ffff, 6, og, {})
    assert not rest
    e(f"""
    v_and_b32 v32, 31, v{vL}
    v_lshrrev_b32 v33, 5, v{vL}
    v_lshlrev_b32 v32, 12, v32
    v_lshl_or_b32 v32, v33, 5, v32
    s_lshl_b32 s{sT0}, s{sRB2}, 18
    s_lshl2_add_u32 s{sT1}, s{sG2}, s{sW}
    s_lshl_b32 s{sT1}, s{sT1}, 6
    s_add_u32 s{sT0}, s{sT0}, s{sT1}
    s_add_u32 s{sT0}, s{sT0}, 2048
    s_add_u32 s{sT1}, s{sT0}, 0x20000
    s_nop 1
    """)
    g.stamp("out gemm done")
    for qb in range(2):
        for i in range(8): e(f"v_cvt_pk_bf16_f32 v{40+8*qb+i}, v{16*qb+2*i}, v{16*qb+2*i+1}")
        for i in range(2):
            e(f"buffer_store_dwordx4 {vr(40+8*qb+4*i,4)}, v32, {sr(OUT,4)}, s{sT0+qb} offen offset:{16*i} {opt.out_sc}")
    if opt.stamps:
        e("s_waitcnt vmcnt(0)")
        g.stamp("end")
    e("Lend:\ns_endpgm")
    e(g.tail)
    e(f"""
    Lfb:
    s_mov_b32 s{sMode}, 1
    v_mov_b32 v{vT0}, 0xff800000
    v_mov_b32 v{vT1}, 0xff800000
    s_mov_b32 s{sC}, 0
    Lfb1:
    buffer_load_dwordx4 {vr(K[0],4)}, v{v16}, {sr(WS,4)}, s{sC} offen sc1
    buffer_load_dwordx4 {vr(K[0]+4,4)}, v{v16}, {sr(WS,4)}, s{sC} offen offset:1024 sc1
    s_waitcnt vmcnt(0)
    """)
    for qb in range(2):
        e(f"v_mfma_f32_32x32x16_bf16 {vr(S[qb],16)}, {vr(K[0],4)}, {vr(Q[qb],4)}, 0")
        e(f"v_mfma_f32_32x32x16_bf16 {vr(S[qb],16)}, {vr(K[0]+4,4)}, {vr(Q[qb]+4,4)}, {vr(S[qb],16)}")
    e("s_nop 15")
    e(maxtree(vT0, S[0], False) + maxtree(vT1, S[1], False))
    e(f"s_add_u32 s{sC}, s{sC}, 4096\ns_cmp_lt_u32 s{sC}, 0x40000\ns_cbranch_scc1 Lfb1")
    finish_max(0.0, [])
    for i in range(O[0], Lr[1] + 4, 2): e(f"v_mov_b64 {vr(i,2)}, 0")
    e(f"s_mov_b32 s{sC}, 0\nLfb2:")
    for k in range(2):
        e(f"buffer_load_dwordx4 {vr(K[0]+4*k,4)}, v{v16}, {sr(WS,4)}, s{sC} offen offset:{1024*k} sc1")
        e(f"buffer_load_dwordx4 {vr(V[0]+4*k,4)}, v{v16}, {sr(WS,4)}, s{sC} offen offset:{2048+1024*k} sc1")
    e("s_waitcnt vmcnt(0)")
    for qb in range(2):
        e(f"v_mfma_f32_32x32x16_bf16 {vr(S[qb],16)}, {vr(K[0],4)}, {vr(Q[qb],4)}, {vr(M[qb],16)}")
        e(f"v_mfma_f32_32x32x16_bf16 {vr(S[qb],16)}, {vr(K[0]+4,4)}, {vr(Q[qb]+4,4)}, {vr(S[qb],16)}")
    e("s_nop 15")
    for i in range(32): e(f"v_exp_f32 v{i}, v{i}")
    e("s_nop 1")
    for qb in range(2):
        for u in range(2):
            e(f"v_smfmac_f32_32x32x32_bf16 {vr(O[qb],16)}, {vr(V[0]+4*u,4)}, {vr(S[qb]+8*u,8)}, v{IDX}")
            e(f"v_smfmac_f32_16x16x64_bf16 {vr(Lr[qb],4)}, {vr(ONES,4)}, {vr(S[qb]+8*u,8)}, v{IDX}")
    e(f"""
    s_add_u32 s{sC}, s{sC}, 4096
    s_cmp_lt_u32 s{sC}, 0x40000
    s_cbranch_scc1 Lfb2
    s_nop 15
    s_branch La_norm
    Lcode_end:
    """)
    return g.text()

def table_text():
    b = TB.blob(); L = []
    for i in range(0, len(b), 128):
        ch = b[i:i + 128]
        L.append(".octa " + ",".join("0x%x" % int.from_bytes(ch[j:j + 16], "little") for j in range(0, 128, 16)))
    return "\n".join(L)

def build(opt):
    ref = open(f"cdna_kernels/{NAME}.s.ref").read().split("\n")
    head = [l for l in ref if l.startswith(";") and "@launch" not in l]
    s = "\n".join(head) + "\n; @launch grid=(256,1,1) block=(256,1,1) lds=163840\n"
    s += f""".amdgcn_target "amdgcn-amd-amdhsa--gfx950"
.text
.globl {NAME}_kernel
.p2align 8
.type {NAME}_kernel,@function
"""
    s += "\n".join(gen(opt)) + "\n"
    s += f""".fill 256, 4, 0xbf800000
s_endpgm
.section .rodata,"a"
.p2align 6
.amdhsa_kernel {NAME}_kernel
  .amdhsa_next_free_vgpr 512
  .amdhsa_next_free_sgpr 102
  .amdhsa_accum_offset 256
  .amdhsa_group_segment_fixed_size 0
  .amdhsa_kernarg_size 104
  .amdhsa_user_sgpr_count 2
  .amdhsa_user_sgpr_kernarg_segment_ptr 1
  .amdhsa_system_sgpr_workgroup_id_x 1
.end_amdhsa_kernel
.p2align 8
fn_tables:
"""
    s += table_text() + "\n"
    return s

if __name__ == "__main__":
    opt = Opt()
    out = f"cdna_kernels/{NAME}.s"
    for a in sys.argv[1:]:
        if a.startswith("-o"): out = a[2:]
        else:
            k, v = a.split("=")
            cur = getattr(opt, k)
            setattr(opt, k, type(cur)(int(v)) if isinstance(cur, (bool, int)) else type(cur)(v))
    s = build(opt)
    open(out, "w").write(s)
    if opt.stamps: open(out + ".names", "w").write("\n".join(opt.names))
    print(out, len(s), "bytes")
```

```python
import sys, struct
import tables as TB

NAME = "concat_heads__spectral_fnet__grouped_kv_mqa__prompt"

class Opt:
    stamps = False
    dbg = False
    codepf = True
    spin = 1 << 20
    out_sc = "nt"
    force_fb = False
    off = 90.0
    dpos = 93
    w0n = 0
    poll1 = True
    wgflag = True
    defer = True
    fsp = 2
    slp = 1
    pre1 = 2
    echo = ''
    warm = False
    p3_sc = 'nt'
    d1_sc = ''
    ppos = 21
    afine = False
    exp = 0
    xsc = ''
    fine = False
    mapA = True
    kvb = 11
    nofft = False
    oflag = 0

def f2u(x): return struct.unpack("<I", struct.pack("<f", x))[0]
def vr(b, n): return f"v[{b}:{b+n-1}]"
def ar(b, n): return f"a[{b}:{b+n-1}]"
def sr(b, n): return f"s[{b}:{b+n-1}]"

WS_FL = 0x40000
FL_EPOCH = WS_FL
FL_KV = WS_FL + 0x1000
FL_Z1 = WS_FL + 0x2000
FL_Z2 = WS_FL + 0x3000
FL_O = WS_FL + 0x8000
WS_O = 0x100000
WS_Z1 = 0x800000
WS_Z2 = 0xC00000
WS_ST = 0x1000000
L_X = 96 * 1024; L_MISC = 144 * 1024
KB = [65536, 0, 32768, 98304]
sW, sX, sJ, sRB, sG, sC0 = 30, 31, 32, 33, 34, 35
GX, GW, WS, OUT, XA, TBL, KW = 36, 40, 44, 48, 52, 56, 60
sTAG, sOffW, sTX, sWb, sXb = 64, 65, 66, 67, 68
sRB2, sG2, sC2 = 69, 70, 71
sKV, sKV2, sMisc = 72, 73, 74
sF1, sSt1, sFl1, sPo1, sTab2, sF2, sSt2, sFl2, sPo2, sF3, sRow = 75, 76, 77, 78, 79, 86, 87, 88, 89, 90, 91
sT0, sT1, sT2, sT3, sT4, sT5 = 80, 81, 82, 83, 84, 85
sOst, sOst2, sFlO, sPoO, sOffW2, sFlKV, sCB, sMode, sSpin, sTb = 92, 93, 94, 95, 96, 97, 98, 99, 100, 101
sC = 16
S = [0, 16, 32, 48]; O = [64, 80]; Lr = [96, 100]; M = [104, 120]; Q = [136, 144]; K = [152, 160]; V = [168, 176]
ONES = 184; IDX = 188; vKlo = 230; vKhi = 189
vFD = 196
vFB = 228
v16 = 230; vP1 = 231; vZ = 232; vA = 233; vB = 235; vOW = 238; vOX = 242
vPoll = 244; vP4 = 245; vOne = 237
vDummy = 246
vL = 250; vT0 = 251; vT1 = 252; vT2 = 253; vT3 = 254; vT4 = 255
aD, aT1, aT2, aT3, aTX, aTW = 0, 16, 48, 80, 112, 116

class I:
    def __init__(s, t, kind=None, tag=None): s.t, s.kind, s.tag = t, kind, tag
class Wt:
    def __init__(s, vm=None, lg=None, must=False): s.vm, s.lg, s.must = vm, lg, must
def VM(t, tag=None): return I(t, "vm", tag)
def LG(t, tag=None): return I(t, "lg", tag)

class G:
    def __init__(self, opt):
        self.o = []; self.opt = opt; self.nst = 0; self.uid = 0; self.tail = []
    def e(self, s):
        if isinstance(s, (list, tuple)):
            for x in s: self.e(x)
        elif isinstance(s, (I, Wt)): self.o.append(s)
        elif s:
            for l in s.strip("\n").split("\n"):
                l = l.strip()
                if l: self.o.append(I(l))
    def lab(self, p):
        self.uid += 1; return f"{p}_{self.uid}"
    def text(self):
        out = []; vq = []; lq = []; seen = set(); waited = set()
        alltags = {x.tag for x in self.o if isinstance(x, I) and x.kind}
        def cnt(q, tags, mx):
            tags = tags if isinstance(tags, (list, tuple)) else [tags]
            for t in tags:
                assert t in seen or t not in alltags, ("wait before issue", t)
                waited.add(t)
            idx = max([i for i, t in enumerate(q) if t in tags], default=-1)
            if idx < 0: return None
            n = min(len(q) - 1 - idx, mx)
            del q[:len(q) - n]
            return n
        for x in self.o:
            if isinstance(x, Wt):
                p = []
                if x.vm is not None:
                    if x.vm == "all": p.append("vmcnt(0)"); vq.clear()
                    else:
                        n = cnt(vq, x.vm, 63)
                        if n is not None: p.append(f"vmcnt({n})")
                if x.lg is not None:
                    if x.lg == "all": p.append("lgkmcnt(0)"); lq.clear()
                    else:
                        n = cnt(lq, x.lg, 15)
                        if n is not None: p.append(f"lgkmcnt({n})")
                if p: out.append(" s_waitcnt " + " ".join(p))
                elif x.must: out.append(" s_nop 0")
            else:
                if x.kind:
                    assert x.tag is None or x.tag not in waited, ("issue after wait", x.tag)
                    seen.add(x.tag)
                if x.kind == "vm": vq.append(x.tag)
                if x.kind == "lg": lq.append(x.tag)
                out.append(x.t if x.t.endswith(":") else " " + x.t)
        return out
    def stamp(self, name, cyc=False):
        if self.opt.echo == name and not cyc:
            self.e("s_memrealtime s[6:7]\ns_waitcnt lgkmcnt(0)\ns_sub_u32 s9, s6, s3")
        if not self.opt.stamps or cyc: return
        k = self.nst; self.nst += 1
        self.opt.names.append(("CYC " if cyc else "") + name)
        if self.opt.dbg:
            lb = self.lab("Lnost")
            self.e(f"""
            s_cmp_lg_u32 s9, 0
            s_cbranch_scc1 {lb}
            s_memrealtime s[6:7]
            s_waitcnt lgkmcnt(0)
            v_mov_b32 v195, s6
            s_mov_b64 exec, 1
            buffer_atomic_umax v195, off, s[12:15], 0 offset:{4*k}
            s_mov_b64 exec, -1
            {lb}:
            """)
            return
        self.e(f"""
        s_memrealtime s[6:7]
        s_memtime s[12:13]
        s_waitcnt lgkmcnt(0)
        v_mov_b32 v194, s6
        v_mov_b32 v195, s12
        buffer_store_dwordx2 v[194:195], off, {sr(WS,4)}, s8 offset:{8*k}
        """)
    def stampl(self, name):
        save = self.o; self.o = []; self.stamp(name); r = self.o; self.o = save; return r
    def srd(self, d, lo, size):
        return [f"s_mov_b32 s{d}, s{lo}", f"s_and_b32 s{d+1}, s{lo+1}, 0xffff", f"s_mov_b32 s{d+2}, {size}", f"s_mov_b32 s{d+3}, 0x20000"]
    def flag(self, tmp, soff):
        return [f"v_mov_b32 v{tmp}, s{sTAG}", f"buffer_store_dword v{tmp}, v{vOne}, {sr(WS,4)}, s{soff} offen sc1"]
    def check(self, nreg, reg, load):
        lr = self.lab("Lretry"); lb = self.lab("Lback")
        cmp = [f"v_cmp_ne_u32 vcc, s{sTAG}, v{reg}"]
        for i in range(1, nreg):
            cmp += [f"v_cmp_ne_u32 s[10:11], s{sTAG}, v{reg+i}", "s_or_b64 vcc, vcc, s[10:11]"]
        self.tail += [f"{lr}:", f"s_mov_b32 s{sSpin}, {self.opt.spin}", f"{lr}_l:", f"s_sleep {self.opt.slp}", load, "s_waitcnt vmcnt(0)"] + cmp + [
            "s_cmp_eq_u64 vcc, 0", f"s_cbranch_scc1 {lb}", f"s_sub_u32 s{sSpin}, s{sSpin}, 1", f"s_cbranch_scc0 {lr}_l",
            f"v_mov_b32 v{vDummy}, {self.uid}", f"v_mov_b32 v{vDummy+1}, 0",
            f"global_store_dword v{vDummy+1}, v{vDummy}, s[26:27] offset:60", f"s_branch {lb}"]
        return cmp + ["s_cmp_eq_u64 vcc, 0", f"s_cbranch_scc0 {lr}", f"{lb}:"]

def dmaW(c, soff=sOffW, p=""):
    pre = [f"s_add_u32 m0, s{sWb}, {(c%6)*16384}"]
    ops = [VM(f"buffer_load_dwordx4 v{vOW+n}, {sr(GW,4)}, s{soff} offen offset:{1024*n} lds", f"{p}W{c}") for n in range(4)]
    post = [f"s_add_u32 s{soff}, s{soff}, 0x20000", f"s_and_b32 s{soff}, s{soff}, 0x1fffff"]
    return pre, ops, post
def dmaX(c, step, mask, adv=1, p=""):
    pre = [f"s_add_u32 m0, s{sXb}, {(c%6)*8192}"]
    ops = [VM(f"buffer_load_dwordx4 v{vOX+n}, {sr(GX,4)}, s{sTX} offen offset:{1024*n} {'sc1' if step > 128 else ''} lds", f"{p}X{c}") for n in range(2)]
    post = [f"s_add_u32 s{sTX}, s{sTX}, {(adv*step)&mask}", f"s_and_b32 s{sTX}, s{sTX}, {mask}"]
    return pre, ops, post
def burst(p):
    pre, ops, post = p
    return pre + ["s_nop 0"] + ops + post
def dmaKV(ch, hf):
    so = sKV2 if hf else sKV
    pre = [f"s_add_u32 m0, s{sWb}, {KB[ch%4]+16384*hf}"]
    ops = [VM(f"buffer_load_dwordx4 v{v16}, {sr(WS,4)}, s{so} offen offset:{1024*n} sc1 lds", f"KV{ch}{'ab'[hf]}") for n in range(4)]
    post = [f"s_add_u32 s{so}, s{so}, 32768", f"s_and_b32 s{so}, s{so}, 0x3ffff"]
    return pre, ops, post

FA = [32, 44, 152]; FBq = [36, 48, 156]
def gemm(g, pfx, mkW, mkX, firstW, gaps, after_bar):
    e = g.e
    def rdA(t):
        c, u, k = t >> 2, (t >> 1) & 1, t & 1; sl = c % 6
        return [LG(f"ds_read_b64_tr_b16 {vr(FA[t%3]+2*ee,2)}, v{vA+sl//3} offset:{(sl%3)*16384+u*8192+k*2048+ee*1024}", f"{pfx}r{t}") for ee in range(2)]
    def rdB(t):
        c, u, k = t >> 2, (t >> 1) & 1, t & 1; sl = c % 6
        return [LG(f"ds_read_b128 {vr(FBq[t%3]+4*qb,4)}, v{vB+k} offset:{sl*8192+u*4096+qb*2048}", f"{pfx}r{t}") for qb in range(2)]
    tp = "o" if pfx == "o" else ""
    e(Wt(vm=[tp + "W0", tp + "X0"])); e("s_barrier")
    for t in range(2): e(rdA(t) + rdB(t))
    extra = {i: list(v) for i, v in gaps.items()}
    e(extra.pop(-1, []))
    def put(i, l): extra.setdefault(i, []).extend(l)
    for c in range(16):
        groups = []
        if c + 5 < 16:
            if c + 5 >= firstW: groups.append(mkW(c + 5))
            groups.append(mkX(c + 5))
        groups += after_bar.get(c, [])
        i = 8 * c + 4
        for pre, ops, post in groups:
            put(i, pre)
            for op in ops:
                i += 1; put(i, [op])
            put(i, post)
    for i in range(128):
        t, qb = i >> 1, i & 1
        if qb == 0: e(Wt(lg=f"{pfx}r{t}"))
        cc = "0" if t == 0 else vr(16 * qb, 16)
        e(f"v_mfma_f32_32x32x16_bf16 {vr(16*qb,16)}, {vr(FA[t%3],4)}, {vr(FBq[t%3]+4*qb,4)}, {cc}")
        if i % 8 == 4:
            c = i >> 3
            if c < 15: e(Wt(vm=[f"{tp}W{c+1}", f"{tp}X{c+1}"]))
            if c < 15 or c in after_bar: e("s_barrier")
        if t + 2 < 64: e(rdA(t + 2) if qb == 0 else rdB(t + 2))
        e(extra.pop(i, []))
    rest = []
    for i in sorted(extra): rest += extra[i]
    return rest

def gen(opt):
    g = G(opt); e = g.e
    opt.names = []
    e(f"{NAME}_kernel:")
    if opt.stamps or opt.echo: e("s_memrealtime s[60:61]")
    e(f"""
    s_cmp_ge_u32 s2, 256
    s_cbranch_scc1 Lend
    s_load_dwordx16 s[4:19], s[0:1], 0
    s_load_dwordx8 s[20:27], s[0:1], 64
    s_load_dwordx2 s[28:29], s[0:1], 96
    v_lshrrev_b32 v1, 6, v0
    v_and_b32 v{vL}, 63, v0
    v_readfirstlane_b32 s{sW}, v1
    v_lshlrev_b32 v{v16}, 4, v{vL}
    s_and_b32 s{sX}, s2, 7
    s_lshr_b32 s{sJ}, s2, 3
    """)
    if opt.codepf:
        e(f"""
        s_lshl_b32 s{sT0}, s{sJ}, 2
        s_add_u32 s{sT0}, s{sT0}, s{sW}
        s_lshl_b32 s{sT0}, s{sT0}, 10
        s_cmp_ge_u32 s{sT0}, Lcode_end-Lpc1
        s_cbranch_scc1 Lnopf
        s_getpc_b64 s[{sT2}:{sT3}]
        Lpc1:
        v_add_u32 v13, s{sT0}, v{v16}
        global_load_dwordx4 {vr(vDummy,4)}, v13, s[{sT2}:{sT3}]
        Lnopf:
        """)
    e(f"""
    s_and_b32 s{sT0}, s{sJ}, 3
    s_lshl2_add_u32 s{sRB2}, s{sX}, s{sT0}
    s_lshr_b32 s{sG2}, s{sJ}, 2
    s_lshl1_add_u32 s{sT0}, s{sT0}, s{sG2}
    s_lshl_b32 s{sT0}, s{sT0}, 1
    s_and_b32 s{sC2}, s{sT0}, 15
    s_lshl2_add_u32 s{sCB}, s{sX}, s{sW}
    """)
    if opt.mapA:
        e(f"""
        s_and_b32 s{sT0}, s{sJ}, 7
        s_lshr_b32 s{sT1}, s{sX}, 1
        s_lshl3_add_u32 s{sRB}, s{sT1}, s{sT0}
        s_lshr_b32 s{sT1}, s{sJ}, 3
        s_and_b32 s{sT2}, s{sX}, 1
        s_lshl2_add_u32 s{sG}, s{sT2}, s{sT1}
        s_lshl1_add_u32 s{sT0}, s{sT1}, s{sT0}
        s_lshl_b32 s{sT0}, s{sT0}, 1
        s_and_b32 s{sC0}, s{sT0}, 15
        """)
    else:
        e(f"s_mov_b32 s{sRB}, s{sRB2}\ns_mov_b32 s{sG}, s{sG2}\ns_mov_b32 s{sC0}, s{sC2}")
    if opt.exp == 3: e(f"s_mov_b32 s{sC0}, 0")
    e(f"""
    v_lshrrev_b32 v1, 5, v{vL}
    v_lshrrev_b32 v2, 4, v{vL}
    v_and_b32 v7, 31, v{vL}
    v_and_b32 v9, 15, v{vL}
    v_xor_b32 v8, v7, v1
    v_lshlrev_b32 v8, 4, v8
    v_lshl_or_b32 v128, v1, 11, v8
    """)
    for n in range(1, 8):
        e(f"v_xor_b32 v{128+n}, {32*n}, v128\nv_add_u32 v{128+n}, {n*4096-1024*(n&3)}, v{128+n}")
    e(f"""
    s_lshl_b32 s{sT2}, s{sW}, 13
    s_add_u32 s{sT2}, s{sT2}, {112*1024}
    s_mov_b32 s{sT3}, {48*1024}
    s_cmp_eq_u32 s{sW}, 1
    s_cselect_b32 s{sT3}, {144*1024}, s{sT3}
    s_cmp_eq_u32 s{sW}, 2
    s_cselect_b32 s{sT3}, {80*1024}, s{sT3}
    s_cmp_eq_u32 s{sW}, 3
    s_cselect_b32 s{sT3}, {64*1024}, s{sT3}
    s_lshr_b32 s{sT0}, s{sG}, 1
    s_lshl2_add_u32 s{sT0}, s{sRB}, s{sT0}
    s_lshl_b32 s{sT4}, s{sT0}, 15
    s_lshl_b32 s{sT0}, s{sW}, 9
    s_add_u32 s{sT4}, s{sT4}, s{sT0}
    s_lshl_b32 s{sT5}, s{sW}, 14
    """)
    e(f"""
    v_lshlrev_b32 v10, 2, v2
    v_xor_b32 v10, v10, v9
    v_lshlrev_b32 v10, 4, v10
    v_lshl_or_b32 v{vOW}, v2, 11, v10
    v_add_u32 v{vOW+1}, 7168, v{vOW}
    v_add_u32 v{vOW+2}, 14336, v{vOW}
    v_add_u32 v{vOW+3}, 21504, v{vOW}
    """)
    e(f"""
    s_lshl_b32 s{sWb}, s{sW}, 12
    s_lshl_b32 s{sXb}, s{sW}, 11
    s_add_u32 s{sXb}, s{sXb}, {L_X}
    s_lshl2_add_u32 s{sT0}, s{sC0}, s{sW}
    s_lshl_b32 s{sT0}, s{sT0}, 7
    s_add_u32 s{sT0}, s{sT0}, s{sG}
    s_lshl_b32 s{sOffW}, s{sT0}, 8
    s_lshl_b32 s{sTX}, s{sC0}, 7
    """)
    e(f"""
    s_and_b32 s{sTb}, s{sJ}, 7
    s_lshr_b32 s{sT0}, s{sJ}, 4
    s_lshl3_add_u32 s{sTb}, s{sT0}, s{sTb}
    s_lshl_b32 s{sTb}, s{sTb}, 10
    """)
    e("s_waitcnt lgkmcnt(0)")
    if opt.stamps or opt.echo: e("s_mov_b32 s3, s60")
    e([f"s_bitcmp1_b32 s{sG}, 0", f"s_cselect_b32 s{KW}, s20, s18", f"s_cselect_b32 s{KW+1}, s21, s19",
       f"s_and_b32 s{KW+1}, s{KW+1}, 0xffff", f"s_mov_b32 s{KW+2}, 65536", f"s_mov_b32 s{KW+3}, 0x20000"])
    def kvw1():
        return [f"s_add_u32 m0, s{sT3}, s{sTb}", f"s_add_u32 s{sOst2}, s{sT5}, s{sTb}",
                VM(f"buffer_load_dwordx4 v{v16}, {sr(KW,4)}, s{sOst2} offen lds", "kv"),
                f"s_add_u32 s{sTb}, s{sTb}, 1024", f"s_and_b32 s{sTb}, s{sTb}, 0x3fff"]
    e(kvw1())
    e(g.srd(GX, 14, 4194304))
    kvx = [VM(f"buffer_load_dwordx4 v{128+n}, {sr(GX,4)}, s{sT4} offen offset:{1024*(n&3)} lds", "kv") for n in range(8)]
    fill = [g.srd(GW, 16, 2097152), g.srd(WS, 28, 0x10000000) + [f"s_mov_b32 s{sMode}, {FL_EPOCH}"]]
    fill.append(f"""
    v_bfe_u32 v3, v{vL}, 2, 2
    v_and_b32 v4, 1, v{vL}
    v_bfe_u32 v5, v{vL}, 1, 1
    v_and_b32 v6, 1, v2
    v_lshlrev_b32 v{vP4}, 2, v7
    v_lshrrev_b32 v11, 3, v{vL}
    """)
    fill.append(f"""
    s_and_b32 s{sT0}, s{sW}, 1
    s_lshl1_add_u32 s{sT0}, s{sRB}, s{sT0}
    s_lshl_b32 s{sT0}, s{sT0}, 16
    s_lshr_b32 s{sT1}, s{sW}, 1
    s_lshl_b32 s{sT1}, s{sT1}, 6
    s_add_u32 s{sT0}, s{sT0}, s{sT1}
    v_lshrrev_b32 v12, 2, v{vL}
    v_and_b32 v13, 3, v{vL}
    v_xor_b32 v14, v13, v2
    v_lshlrev_b32 v14, 4, v14
    v_lshl_or_b32 v14, v12, 11, v14
    v_add_u32 v{vOX}, s{sT0}, v14
    v_add_u32 v{vOX+1}, {32768-1024}, v{vOX}
    """)
    fill.append(f"""
    v_xor_b32 v13, v2, v9
    v_lshlrev_b32 v13, 4, v13
    v_lshl_or_b32 v13, v9, 9, v13
    v_add_u32 v136, s{sT2}, v13
    v_xor_b32 v14, 64, v13
    v_add_u32 v137, s{sT2}, v14
    v_xor_b32 v14, 128, v13
    v_add_u32 v138, s{sT2}, v14
    v_xor_b32 v14, 192, v13
    v_add_u32 v139, s{sT2}, v14
    """)
    fill.append(f"""
    v_lshl_add_u32 v13, v2, 3, v3
    v_lshlrev_b32 v13, 6, v13
    v_add_u32 v13, s{sT3}, v13
    v_and_b32 v14, 3, v{vL}
    v_lshlrev_b32 v14, 4, v14
    v_lshlrev_b32 v15, 5, v4
    v_lshl_or_b32 v15, v5, 3, v15
    s_bitcmp1_b32 s{sG}, 0
    s_cselect_b64 vcc, -1, 0
    s_cselect_b32 s{sT1}, 16, 8
    v_cndmask_b32 v14, v14, v15, vcc
    v_add_u32 v140, v13, v14
    v_add_u32 v141, s{sT1}, v140
    """)
    fill.append(f"""
    v_lshl_add_u32 v14, v1, 5, v9
    v_lshlrev_b32 v14, 4, v14
    v_lshl_or_b32 v14, v6, 10, v14
    v_cndmask_b32 v142, v14, v{v16}, vcc
    v_add_u32 v{vKhi}, 65536, v{v16}
    v_min_u32 v{vOne}, 1, v{vL}
    v_lshlrev_b32 v{vOne}, 28, v{vOne}
    """)
    fill.append(f"""
    v_lshl_add_u32 v13, v1, 4, v3
    v_xor_b32 v14, s{sW}, v3
    v_lshlrev_b32 v14, 1, v14
    v_add_u32 v14, v14, v4
    v_lshl_add_u32 v14, v14, 1, v6
    v_lshl_add_u32 v14, v14, 1, v5
    v_lshlrev_b32 v14, 3, v14
    v_lshl_or_b32 v{vA}, v13, 8, v14
    v_add_u32 v{vA+1}, 49152, v{vA}
    """)
    fill.append(f"""
    v_lshlrev_b32 v14, 1, v1
    v_xor_b32 v13, v3, v14
    v_lshlrev_b32 v13, 4, v13
    v_lshl_or_b32 v13, v7, 6, v13
    v_add_u32 v{vB}, {L_X}, v13
    v_xor_b32 v{vB+1}, 16, v{vB}
    """)
    fill.append(f"""
    v_lshl_add_u32 v13, v1, 3, v3
    v_lshl_add_u32 v14, v6, 1, v4
    v_lshrrev_b32 v15, 1, v3
    v_lshl_add_u32 v14, v14, 1, v15
    v_lshl_add_u32 v14, v14, 1, v5
    v_lshlrev_b32 v14, 3, v14
    v_lshl_or_b32 v13, v13, 7, v14
    s_add_u32 s{sMisc}, s{sWb}, {L_MISC}
    v_add_u32 v{vFB}, s{sMisc}, v13
    v_xor_b32 v{vFB+1}, 16, v{vFB}
    """)
    fill.append(f"""
    v_xor_b32 v13, v4, v6
    v_bfe_u32 v14, v{vL}, 1, 2
    v_lshlrev_b32 v15, 4, v14
    v_lshl_or_b32 v15, v11, 16, v15
    v_lshl_or_b32 v{vP1}, v13, 21, v15
    v_lshlrev_b32 v15, 9, v14
    v_lshl_or_b32 v15, v11, 12, v15
    v_lshl_or_b32 v{vZ}, v13, 4, v15
    """)
    fill.append(g.srd(OUT, 24, 8388608) + g.srd(XA, 4, 4194304))
    fill.append(f"""
    s_getpc_b64 s[{TBL}:{TBL+1}]
    s_add_u32 s{TBL}, s{TBL}, fn_tables@rel32@lo+4
    s_addc_u32 s{TBL+1}, s{TBL+1}, fn_tables@rel32@hi+12
    s_and_b32 s{TBL+1}, s{TBL+1}, 0xffff
    s_mov_b32 s{TBL+2}, {TB.TBL_SIZE}
    s_mov_b32 s{TBL+3}, 0x20000
    """)
    fill.append(f"""
    s_lshl3_add_u32 s{sFlKV}, s{sRB}, s{sG}
    s_lshl_b32 s{sFlKV}, s{sFlKV}, 2
    s_add_u32 s{sFlKV}, s{sFlKV}, {FL_KV}
    s_lshl_b32 s{sKV}, s{sX}, 15
    s_add_u32 s{sKV}, s{sKV}, s{sWb}
    s_add_u32 s{sKV2}, s{sKV}, 16384
    s_lshl_b32 s{sF1}, s{sJ}, 5
    s_add_u32 s{sF1}, s{sF1}, s{sCB}
    s_lshl_b32 s{sFl2}, s{sF1}, 2
    s_add_u32 s{sFl2}, s{sFl2}, {FL_Z2}
    s_lshl_b32 s{sSt2}, s{sF1}, 12
    s_add_u32 s{sSt2}, s{sSt2}, {WS_Z2}
    s_lshl_b32 s{sF1}, s{sF1}, 6
    """)
    fill.append(f"""
    s_lshl_b32 s{sSt1}, s{sCB}, 5
    s_add_u32 s{sSt1}, s{sSt1}, s{sJ}
    s_lshl_b32 s{sFl1}, s{sSt1}, 2
    s_add_u32 s{sFl1}, s{sFl1}, {FL_Z1}
    s_lshl_b32 s{sSt1}, s{sSt1}, 12
    s_add_u32 s{sSt1}, s{sSt1}, {WS_Z1}
    s_lshl_b32 s{sPo1}, s{sCB}, 7
    s_add_u32 s{sPo1}, s{sPo1}, {FL_Z1}
    s_lshl_b32 s{sPo2}, s{sJ}, 7
    s_add_u32 s{sPo2}, s{sPo2}, {FL_Z2}
    s_lshl_b32 s{sTab2}, s{sJ}, 13
    s_add_u32 s{sTab2}, s{sTab2}, {TB.OFF_T2}
    """)
    def zoff(dst, hi, lo, base):
        return f"""
        s_lshl_b32 s{dst}, s{hi}, 17
        s_lshr_b32 s{sT1}, s{lo}, 4
        s_lshl_b32 s{sT1}, s{sT1}, 11
        s_add_u32 s{dst}, s{dst}, s{sT1}
        s_and_b32 s{sT1}, s{lo}, 15
        s_lshl_b32 s{sT1}, s{sT1}, 5
        s_add_u32 s{dst}, s{dst}, s{sT1}
        s_add_u32 s{dst}, s{dst}, {base}
        """
    fill.append(zoff(sF2, sCB, sJ, WS_Z1))
    fill.append(zoff(sF3, sJ, sCB, WS_Z2))
    fill.append(f"""
    s_lshl_b32 s{sT1}, s{sCB}, 6
    s_add_u32 s{sRow}, s{sT1}, s{sJ}
    s_sub_u32 s{sOst}, s{sT1}, {1024-32}
    s_cmp_lt_u32 s{sCB}, 16
    s_cselect_b32 s{sT1}, s{sT1}, s{sOst}
    s_cmp_eq_u32 s{sJ}, 0
    s_cselect_b32 s{sRow}, s{sT1}, s{sRow}
    s_lshl2_add_u32 s{sT1}, s{sG}, s{sW}
    s_lshl_b32 s{sOst}, s{sRB}, 5
    s_add_u32 s{sOst}, s{sOst}, s{sT1}
    s_lshl_b32 s{sFlO}, s{sOst}, {opt.fsp}
    s_add_u32 s{sFlO}, s{sFlO}, {FL_O}
    s_lshl_b32 s{sOst}, s{sOst}, 12
    s_add_u32 s{sOst}, s{sOst}, {WS_O}
    """)
    fill.append(f"""
    s_lshl_b32 s{sPoO}, s{sRB2}, {5+opt.fsp}
    s_add_u32 s{sPoO}, s{sPoO}, {FL_O}
    s_lshl2_add_u32 s{sT1}, s{sC2}, s{sW}
    s_lshl_b32 s{sT1}, s{sT1}, 7
    s_add_u32 s{sT1}, s{sT1}, s{sG2}
    s_lshl_b32 s{sOffW2}, s{sT1}, 8
    """)
    XS, XM = 128, 2047
    def take_vm(lst, n=1):
        out = []
        while lst and n:
            x = lst.pop(0); out.append(x)
            if isinstance(x, I) and x.kind == "vm": n -= 1
        return out
    for n in range(8):
        if n % 4 == 0: e(f"s_add_u32 m0, s{sT2}, {1024*n}\ns_nop 0")
        e(kvx[n]); e(fill.pop(0))
    w0 = dmaW(0)
    e(w0[0] + ["s_nop 0"])
    for n in range(opt.w0n): e(w0[1][n]); e(fill.pop(0))
    e(VM(f"buffer_load_dword v143, off, {sr(WS,4)}, s{sMode} sc1", "kv"))
    for n in range(15):
        e(kvw1())
        if fill: e(fill.pop(0))
    assert not fill
    if opt.fine: e("s_memrealtime s[18:19]")
    later = w0[0] + ["s_nop 0"] + w0[1][opt.w0n:] + w0[2] + burst(dmaX(0, XS, XM)) + burst(dmaW(1)) + burst(dmaX(1, XS, XM)) + burst(dmaW(2))
    e(take_vm(later, opt.pre1))
    if opt.stamps:
        e(f"s_lshl2_add_u32 s8, s2, s{sW}\ns_lshl_b32 s8, s8, 8\ns_add_u32 s8, s8, {WS_ST}")
        opt.names.append("entry"); g.nst += 1
        if opt.dbg:
            e(g.srd(12, 26, 256))
            e(f"""
            s_or_b32 s9, s{sW}, s{sJ}
            s_cmp_lg_u32 s9, 0
            s_cbranch_scc1 Lnost0
            v_not_b32 v195, s3
            s_mov_b64 exec, 1
            buffer_atomic_umax v195, off, s[12:15], 0
            s_mov_b64 exec, -1
            Lnost0:
            """)
        else:
            e(f"v_mov_b32 v195, s3\nbuffer_store_dword v195, off, {sr(WS,4)}, s8")
            if opt.fine:
                opt.names.append("kv issued"); g.nst += 1
                e(f"s_waitcnt lgkmcnt(0)\nv_mov_b32 v195, s18\nbuffer_store_dword v195, off, {sr(WS,4)}, s8 offset:8")
    e(Wt(vm="kv"))
    g.stamp("kv landed")
    for ks in range(8):
        e(LG(f"ds_read_b128 {vr(4*ks,4)}, v{136+(ks&3)} offset:{256*(ks>>2)}", f"k{ks}"))
        for b in range(2):
            for ee in range(2):
                e(LG(f"ds_read_b64_tr_b16 {vr(64+8*ks+4*b+2*ee,2)}, v{140+b} offset:{2048*ks+256*ee}", f"k{ks}"))
        if ks == 0: e(f"v_readfirstlane_b32 s{sTAG}, v143")
        if ks == 1: e(f"s_mul_i32 s{sTAG}, s{sTAG}, 0x9e3779b1\ns_add_u32 s{sTAG}, s{sTAG}, 0x7f4a7c15")
        e(take_vm(later))
    e(Wt(lg="k4"))
    e(f"s_bitcmp1_b32 s{sG}, 0\ns_cbranch_scc1 Lkv_v")
    mid = [take_vm(later) for _ in range(4)]
    for var in range(2):
        if var == 1: e("Lkv_v:")
        for ks in range(8):
            if ks == 5: e("s_waitcnt lgkmcnt(0)")
            for b in range(2):
                w = vr(64 + 8 * ks + 4 * b, 4); x = vr(4 * ks, 4); d = vr(32 + 4 * b, 4)
                c = "0" if ks == 0 else d
                e(f"v_mfma_f32_16x16x32_bf16 {d}, {w}, {x}, {c}" if var == 0 else f"v_mfma_f32_16x16x32_bf16 {d}, {x}, {w}, {c}")
            if ks % 2 == 0: e(mid[ks >> 1] if var == 0 else [x.t if isinstance(x, I) else x for x in mid[ks >> 1]])
        if var == 0: e("s_branch Lkv_j")
    e("Lkv_j:")
    e(Wt(lg="all"))
    e(f"""
    s_cmp_eq_u32 s{sW}, 3
    s_cselect_b32 s{sT1}, s{sT2}, s{sT3}
    v_add_u32 v13, s{sT1}, v{v16}
    """)
    e(later); later = []
    e(f"""
    s_cmp_eq_u32 s{sW}, 0
    s_cbranch_scc1 Lkv_nw
    s_nop 3
    ds_write_b128 v13, v[32:35]
    ds_write_b128 v13, v[36:39] offset:1024
    s_waitcnt lgkmcnt(0)
    Lkv_nw:
    s_barrier
    s_cmp_lg_u32 s{sW}, 0
    s_cbranch_scc1 Lkv_done
    v_add_u32 v13, {80*1024}, v{v16}
    v_add_u32 v14, {136*1024}, v{v16}
    ds_read_b128 v[40:43], v13
    ds_read_b128 v[44:47], v13 offset:1024
    ds_read_b128 v[48:51], v14
    ds_read_b128 v[52:55], v14 offset:1024
    ds_read_b128 v[56:59], v14 offset:8192
    ds_read_b128 v[60:63], v14 offset:9216
    s_lshr_b32 s{sT1}, s{sG}, 2
    s_lshl1_add_u32 s{sT0}, s{sRB}, s{sT1}
    s_lshl_b32 s{sT0}, s{sT0}, 12
    s_bfe_u32 s{sT1}, s{sG}, 0x10001
    s_lshl_b32 s{sT2}, s{sT1}, 8
    s_lshl_b32 s{sT1}, s{sT1}, 10
    s_add_u32 s{sT1}, s{sT1}, 2048
    s_bitcmp1_b32 s{sG}, 0
    s_cselect_b32 s{sT1}, s{sT1}, s{sT2}
    s_cselect_b32 s{sT2}, 1.0, {hex(f2u(1.4426950408889634/32**0.5))}
    s_mov_b32 s{sT3}, s{sT2}
    s_add_u32 s{sT0}, s{sT0}, s{sT1}
    """)
    for p in range(3):
        e(f"s_waitcnt lgkmcnt({4-2*p})")
        for i in range(4):
            e(f"v_pk_add_f32 {vr(32+2*i,2)}, {vr(32+2*i,2)}, {vr(40+8*p+2*i,2)}")
    for i in range(4): e(f"v_pk_mul_f32 {vr(32+2*i,2)}, {vr(32+2*i,2)}, s[{sT2}:{sT3}]")
    for i in range(4): e(f"v_cvt_pk_bf16_f32 v{40+i}, v{32+2*i}, v{33+2*i}")
    e(f"""
    s_bitcmp1_b32 s{sG}, 0
    s_cbranch_scc0 Lkv_st
    v_permlane16_swap_b32 v40, v42
    v_permlane16_swap_b32 v41, v43
    Lkv_st:
    buffer_store_dwordx4 v[40:43], v142, {sr(WS,4)}, s{sT0} offen sc1
    Lkv_done:
    """)
    for p in (dmaX(2, XS, XM), dmaW(3), dmaX(3, XS, XM)): e(burst(p))
    g.stamp("kv done")
    lead = burst(dmaW(4)) + burst(dmaX(4, XS, XM))
    gaps = {-1: take_vm(lead, 2)}
    for i in range(4): gaps[i] = take_vm(lead)
    gaps[3] += lead
    g.tail += ["Lkvflag:", "KVFLAGWAIT"] + g.flag(56, sFlKV) + ["s_branch Lkvflag_b"]
    gaps[3] += [f"s_cmp_eq_u32 s{sW}, 0", "s_cbranch_scc1 Lkvflag", "Lkvflag_b:"]
    init = [f"v_mov_b64 {vr(i,2)}, 0" for i in range(O[0], Lr[1] + 4, 2)]
    init += [f"v_mov_b32 v{IDX}, 0xdddddddd", "v_mov_b32 v60, 0x3f803f80", f"v_and_b32 v61, 7, v{vL}", "v_cmp_eq_u32 vcc, 0, v61",
             "v_cmp_eq_u32 s[10:11], 4, v61", "s_nop 1"]
    init += [f"v_cndmask_b32 v{ONES}, 0, v60, vcc", f"v_cndmask_b32 v{ONES+1}, 0, v60, vcc",
             f"v_cndmask_b32 v{ONES+2}, 0, v60, s[10:11]", f"v_cndmask_b32 v{ONES+3}, 0, v60, s[10:11]"]
    for n, x in enumerate(init): gaps.setdefault(18 + 2 * n, []).append(x)
    kvpoll = f"buffer_load_dwordx4 v[56:59], v{v16}, {sr(WS,4)}, s{sT5} offen sc1"
    b0 = opt.kvb
    gaps.setdefault(8 * b0 - opt.ppos, []).extend([f"s_mov_b32 s{sT5}, {FL_KV}", VM(kvpoll, "kvpoll")])
    if opt.fine:
        gaps.setdefault(5, []).extend(g.stampl("q c0"))
        gaps.setdefault(45, []).extend(g.stampl("q c5"))
        gaps.setdefault(8 * b0 + 2, []).extend(g.stampl("q prechk"))
    gaps.setdefault(8 * b0 + 3, []).extend([Wt(vm="kvpoll")] + g.check(4, 56, kvpoll) + (g.stampl("q postchk") if opt.fine else []))
    halves = [(0, 0), (0, 1), (1, 0), (1, 1), (2, 0), (2, 1), (3, 0), (3, 1)]
    ab = {}
    for c in range(b0, 16):
        ab[c] = []
        while halves and len(ab[c]) < (2 if c > 11 else 1) and (8 - len(halves)) <= c - 11:
            ab[c].append(dmaKV(*halves.pop(0)))
    rest = gemm(g, "q", dmaW, lambda c: dmaX(c, XS, XM), 0, gaps, ab)
    g.stamp("q gemm done")
    g.tail += ["Lepoch:", f"s_mov_b32 s{sT0}, {FL_EPOCH}"] + g.flag(56, sT0) + ["s_branch Lepoch_b"]
    e(rest)
    e(f"s_or_b32 s{sT0}, s2, s{sW}\ns_cbranch_scc0 Lepoch\nLepoch_b:")
    if opt.exp == 4:
        e(f"s_getpc_b64 s[{sT2}:{sT3}]\ns_lshl_b32 s{sT0}, s{sW}, 13\nv_add_u32 v60, s{sT0}, v{v16}\nv_add_u32 v61, 4096, v60")
        for n in range(8): e(f"global_load_dwordx4 {vr(vDummy,4)}, v{60+(n>>2)}, s[{sT2}:{sT3}] offset:{1024*(n&3)}")
    e(Wt(vm=["KV0a", "KV0b", "KV1a"], lg="all"))
    e("s_barrier")
    def kvaddr(T, frag):
        a = KB[(T >> 3) % 4] + (T & 7) * 4096 + frag * 1024
        return (vKlo, a) if a < 65536 else (vKhi, a - 65536)
    def rdKV(dst, T, frag, tag):
        r, o = kvaddr(T, frag); return LG(f"ds_read_b128 {vr(dst,4)}, v{r} offset:{o}", tag)
    def maxtree(dst, s, first):
        L = []
        if first:
            L.append(f"v_max3_f32 v{dst}, v{s}, v{s+1}, v{s+2}")
            L += [f"v_max3_f32 v{dst}, v{dst}, v{s+i}, v{s+i+1}" for i in range(3, 15, 2)]
            L.append(f"v_max_f32 v{dst}, v{dst}, v{s+15}")
        else:
            L += [f"v_max3_f32 v{dst}, v{dst}, v{s+i}, v{s+i+1}" for i in range(0, 16, 2)]
        return L
    def tabload(dst, sreg, n, tag):
        return [VM(f"buffer_load_dwordx4 {dst(m)}, v{v16}, {sr(TBL,4)}, s{sreg+(m>>2)} offen offset:{1024*(m&3)}", tag) for m in range(n)]
    for t in range(2):
        for k in range(2): e(rdKV(K[t] + 4 * k, t, k, f"pk{t}"))
    for k in range(2): e(rdKV(V[0] + 4 * k, 0, 2 + k, "pv"))
    p1 = []
    if not opt.nofft:
        e(f"s_mov_b32 m0, s{sMisc}\ns_nop 0")
        for n in range(4):
            p1 += [[VM(f"buffer_load_dwordx4 v{vP1}, {sr(XA,4)}, s{sF1} offen offset:{1024*n} {opt.d1_sc} lds", "d1")] +
                   ([f"s_add_u32 s{sF1}, s{sF1}, {512*1024-1024}"] if n < 3 else []), []]
    else: e("s_nop 1")
    nx = lambda: p1.pop(0) if p1 else []
    cv = [f"v_cvt_pk_bf16_f32 v{Q[0]+i}, v{2*i}, v{2*i+1}" for i in range(16)]
    def qk0(t, qb, k, s):
        return f"v_mfma_f32_32x32x16_bf16 {vr(s,16)}, {vr(K[t]+4*k,4)}, {vr(Q[qb]+4*k,4)}, {vr(s,16) if k else 0}"
    tA = maxtree(vT0, S[2], True); tB = maxtree(vT0, S[3], False); tC = maxtree(vT1, S[0], True); tD = maxtree(vT1, S[1], False)
    e(cv[:8] + nx() + [Wt(lg="pk0", must=True), qk0(0, 0, 0, S[2])] + cv[8:12] + nx() + [qk0(0, 0, 1, S[2])] + cv[12:] + nx())
    e([Wt(lg="pk1"), qk0(1, 0, 0, S[3])] + nx() + [qk0(1, 0, 1, S[3])] + nx() + [qk0(0, 1, 0, S[0])] + nx() + ["s_nop 3"] + tA[:2])
    e([qk0(0, 1, 1, S[0])] + tA[2:] + [qk0(1, 1, 0, S[1])] + ["s_nop 0"] + nx() + tB[:4] + [qk0(1, 1, 1, S[1])] + tB[4:] + tC + tD)
    def finish_max(off, mid):
        lit = hex(f2u(-off)) if off else 0
        e(f"""
        v_mov_b32 v{vT2}, v{vT0}
        v_mov_b32 v{vT3}, v{vT1}
        s_nop 0
        v_permlane32_swap_b32 v{vT0}, v{vT2}
        v_permlane32_swap_b32 v{vT1}, v{vT3}
        v_max_f32 v{vT0}, v{vT0}, v{vT2}
        v_max_f32 v{vT1}, v{vT1}, v{vT3}
        v_sub_f32 v{M[0]}, {lit}, v{vT0}
        v_sub_f32 v{M[0]+1}, {lit}, v{vT0}
        """)
        for i in range(2, 16, 2): e(f"v_mov_b64 {vr(M[0]+i,2)}, {vr(M[0],2)}")
        e(f"v_sub_f32 v{M[1]}, {lit}, v{vT1}\nv_sub_f32 v{M[1]+1}, {lit}, v{vT1}")
        e(mid)
        for i in range(2, 16, 2): e(f"v_mov_b64 {vr(M[1]+i,2)}, {vr(M[1],2)}")
    finish_max(opt.off, [f"v_mfma_f32_32x32x16_bf16 {vr(S[0],16)}, {vr(K[0],4)}, {vr(Q[0],4)}, {vr(M[0],16)}",
                         f"v_mfma_f32_32x32x16_bf16 {vr(S[0],16)}, {vr(K[0]+4,4)}, {vr(Q[0]+4,4)}, {vr(S[0],16)}"])
    e("s_nop 3")
    g.stamp("attn start"); g.stamp("attn start", True)
    sl = {k: {} for k in ("q1", "q2", "p1", "p2", "x", "va", "top")}
    def put(kind, n, l): sl[kind].setdefault(n, []).extend(l if isinstance(l, list) else [l])
    def put_group(grp, n0, kind="p1"):
        pre, ops, post = grp
        put("q2", n0, pre)
        for i, op in enumerate(ops): put(kind, n0 + i, op)
        n1 = n0 + len(ops) - 1
        for i, x in enumerate(post): put("p2" if i == 0 else "q1", n1 + i, x)
        return n0 + len(ops)
    def fftdata(srd, voff, sreg, step, n0, tag):
        put("q2", n0, f"s_mov_b32 m0, s{sMisc}")
        for n in range(4):
            put("p1", n0 + n, VM(f"buffer_load_dwordx4 v{voff}, {sr(srd,4)}, s{sreg} offen offset:{1024*n} sc1 lds", tag))
            if n < 3: put("q1", n0 + n + 1, f"s_add_u32 s{sreg}, s{sreg}, {step}")
    def comp(n0, aT, sst, dtag, ttag, stag):
        put("q2", n0, Wt(vm=dtag)); put("q1", n0 + 4, Wt(vm=ttag))
        for k in range(4):
            for ee in range(2):
                put("p2", n0 + k, LG(f"ds_read_b64_tr_b16 {ar(aD+4*k+2*ee,2)}, v{vFB+(k>>1)} offset:{(k&1)*2048+ee*512}", f"{stag}r{k}"))
        for i in range(8):
            k, nb = i >> 1, i & 1; d = vr(vFD + 16 * nb, 16)
            put("q2", n0 + 4 + i, Wt(lg=f"{stag}r{k}"))
            put("x", n0 + 4 + i, f"v_mfma_f32_32x32x16_bf16 {d}, {ar(aD+4*k,4)}, {ar(aT+16*nb+4*k,4)}, {'0' if k==0 else d}")
        for q in range(4):
            nb, i = q >> 1, q & 1
            for m_ in range(4 * i, 4 * i + 4):
                put("va", n0 + 13 + q, f"v_cvt_pk_bf16_f32 v{vFD+16*nb+m_}, v{vFD+16*nb+2*m_}, v{vFD+16*nb+2*m_+1}")
            put("p1", n0 + 14 + q, VM(f"buffer_store_dwordx4 {vr(vFD+16*nb+4*i,4)}, v{v16}, {sr(WS,4)}, s{sst} offen offset:{1024*q} sc1", stag))
    def putflag(n, sfl, stag):
        put("q2", n, Wt(vm=stag)); put("va", n, f"v_mov_b32 v{vT0}, s{sTAG}")
        put("p2", n, VM(f"buffer_store_dword v{vT0}, v{vOne}, {sr(WS,4)}, s{sfl} offen sc1"))
    def putpoll(n, nchk, spo, tag):
        ld = f"buffer_load_dword v{vPoll}, v{vP4}, {sr(WS,4)}, s{spo} offen sc1"
        put("p2", n, VM(ld, tag))
        put("q1", nchk, Wt(vm=tag)); put("top2" if False else "q2", nchk, g.check(1, vPoll, ld))
    n = 8
    for hv in halves: n = put_group(dmaKV(*hv), n)
    assert n == 20
    for (ch, hf), n in {(4, 0): 20, (4, 1): 30, (5, 0): 34, (5, 1): 38, (6, 0): 48, (6, 1): 52, (7, 0): 64, (7, 1): 68}.items():
        put_group(dmaKV(ch, hf), n)
    put("q1", 70, [f"s_mov_b32 s{GW}, s22"]); put("q1", 71, [f"s_and_b32 s{GW+1}, s23, 0xffff"])
    for c, n in ((4, 84), (5, 88), (0, 96), (1, 100), (2, 120), (3, 124)): put_group(dmaW(c, sOffW2, p="o"), n)
    if not opt.nofft:
        e(f"s_mov_b32 s{sT0}, {TB.OFF_T1}\ns_mov_b32 s{sT1}, {TB.OFF_T1+4096}")
        for m, op in enumerate(tabload(lambda m: ar(aT1 + 4 * m, 4), sT0, 8, "t1")): put("p1", m, op)
        comp(12, aT1, sSt1, "d1", "t1", "s1")
        putflag(37, sFl1, "s1")
        put("q1", 22, f"s_mov_b32 s{sT0}, s{sTab2}"); put("q1", 23, f"s_add_u32 s{sT1}, s{sTab2}, 4096")
        for m, op in enumerate(tabload(lambda m: ar(aT2 + 4 * m, 4), sT0, 8, "t2")): put("p1", 24 + m if m < 2 else 40 + m, op)
        putpoll(51, 55, sPo1, "po1")
        fftdata(WS, vZ, sF2, 32768 - 1024, 56, "d2")
        put("q1", 53, f"s_mov_b32 s{sT0}, {TB.OFF_T3}"); put("q1", 54, f"s_mov_b32 s{sT1}, {TB.OFF_T3+4096}")
        for m, op in enumerate(tabload(lambda m: ar(aT3 + 4 * m, 4), sT0, 6, "t3")): put("p1", 60 + m if m < 4 else 68 + m, op)
        put("q1", 61, f"s_mov_b32 s{sT2}, {TB.OFF_TX}")
        put("p1", 74, tabload(lambda m: ar(aTX, 4), sT2, 1, "t3"))
        comp(66, aT2, sSt2, "d2", "t2", "s2")
        putflag(91, sFl2, "s2")
        put("q1", 74, f"s_mov_b32 s{sT0}, {TB.OFF_TW}"); put("q1", 75, f"s_mov_b32 s{sT1}, {TB.OFF_TW+4096}")
        for m, op in enumerate(tabload(lambda m: ar(aTW + 4 * m, 4), sT0, 8, "t3")): put("p1", 75 + m if m < 5 else 105 + m, op)
        putpoll(104, 115, sPo2, "po2")
        fftdata(WS, vZ, sF3, 32768 - 1024, 116, "d3")
    for k in ("p1",):
        for n_, l in sl[k].items(): assert len(l) <= 1, (k, n_, l)
    for n in range(128):
        X = n & 1; Y = 1 - X
        se, sp, sq = S[n % 4], S[(n - 1) % 4], S[(n + 1) % 4]
        tq = ((n + 1) // 2) % 2; tv = ((n - 1) // 2) % 2
        E = [f"v_exp_f32 v{se+i}, v{se+i}" for i in range(16)]
        Q1 = f"v_mfma_f32_32x32x16_bf16 {vr(sq,16)}, {vr(K[tq],4)}, {vr(Q[Y],4)}, {vr(M[Y],16)}"
        Q2 = f"v_mfma_f32_32x32x16_bf16 {vr(sq,16)}, {vr(K[tq]+4,4)}, {vr(Q[Y]+4,4)}, {vr(sq,16)}"
        P1 = f"v_smfmac_f32_32x32x32_bf16 {vr(O[Y],16)}, {vr(V[tv],4)}, {vr(sp,8)}, v{IDX}"
        P2 = f"v_smfmac_f32_32x32x32_bf16 {vr(O[Y],16)}, {vr(V[tv]+4,4)}, {vr(sp+8,8)}, v{IDX}"
        L1 = f"v_smfmac_f32_16x16x64_bf16 {vr(Lr[Y],4)}, {vr(ONES,4)}, {vr(sp,8)}, v{IDX}"
        L2 = f"v_smfmac_f32_16x16x64_bf16 {vr(Lr[Y],4)}, {vr(ONES,4)}, {vr(sp+8,8)}, v{IDX}"
        if n == 0: P1 = P2 = L1 = L2 = None
        if n == 127: Q1 = Q2 = None
        T = n >> 1
        if X == 0: D = [rdKV(K[tq] + 4 * k, T + 2, k, f"h{n}") for k in range(2)] if T + 2 < 64 else [None, None]
        else: D = [rdKV(V[1 - tv] + 4 * k, T + 1, 2 + k, f"h{n}") for k in range(2)] if T + 1 < 64 else [None, None]
        if n % 16 == 0 and n:
            c = n >> 4
            e(Wt(vm=[f"KV{c}b", f"KV{c+1}a"])); e("s_barrier")
        if opt.afine and n % 8 == 0 and n: g.stamp(f"a{n}")
        w = Wt(lg=[f"h{n-2}", "pv"])
        gq = lambda k: sl[k].get(n, [])
        xm = gq("x")
        if xm: a, b, c_, d_ = 8, 9, 12, 13
        else: a, b, c_, d_ = 9, 11, 14, 16
        e([Q1, w] + gq("q1") + E[0:3] + [Q2] + gq("q2") + E[3:6] + [P1] + gq("p1") + E[6:a] + [L1, D[0]] + E[a:b] + gq("va") +
          [P2] + gq("p2") + E[b:c_] + [L2, D[1]] + E[c_:d_] + xm + E[d_:16])
    e(sl["q1"].get(128, []))
    e(f"""
    v_rcp_f32 v{vT0}, v{Lr[0]}
    v_smfmac_f32_16x16x64_bf16 {vr(Lr[1],4)}, {vr(ONES,4)}, {vr(S[3],8)}, v{IDX}
    v_smfmac_f32_16x16x64_bf16 {vr(Lr[1],4)}, {vr(ONES,4)}, {vr(S[3]+8,8)}, v{IDX}
    v_smfmac_f32_32x32x32_bf16 {vr(O[1],16)}, {vr(V[1],4)}, {vr(S[3],8)}, v{IDX}
    v_smfmac_f32_32x32x32_bf16 {vr(O[1],16)}, {vr(V[1]+4,4)}, {vr(S[3]+8,8)}, v{IDX}
    s_mov_b32 s{sMode}, 0
    """.replace(f"v_rcp_f32 v{vT0}, v{Lr[0]}\n", "s_nop 0\n"))
    g.stamp("attn end"); g.stamp("attn end", True)
    e("s_nop 2\nLa_norm:")
    for qb in range(2):
        e(f"v_rcp_f32 v{2*qb}, v{Lr[qb]}\ns_nop 0\nv_mov_b32 v{2*qb+1}, v{2*qb}")
        for i in range(8): e(f"v_pk_mul_f32 {vr(O[qb]+2*i,2)}, {vr(O[qb]+2*i,2)}, {vr(2*qb,2)}")
        for i in range(8): e(f"v_cvt_pk_bf16_f32 v{8+8*qb+i}, v{O[qb]+2*i}, v{O[qb]+2*i+1}")
        for k in range(2):
            e(VM(f"buffer_store_dwordx4 {vr(8+8*qb+4*k,4)}, v{v16}, {sr(WS,4)}, s{sOst} offen offset:{2048*qb+1024*k} sc1", "ost"))
    e(f"v_maximum3_f32 v4, v{Lr[0]}, v{Lr[1]}, abs(v{O[0]})")
    for i in range(1, 31, 2): e(f"v_maximum3_f32 v4, v4, abs(v{O[0]+i}), abs(v{O[0]+i+1})")
    e(f"""
    v_maximum3_f32 v4, v4, abs(v{O[0]+31}), v4
    s_mov_b32 s{sT0}, {hex(f2u(2.0**110))}
    v_cmp_nlt_f32 vcc, v4, s{sT0}
    """)
    if opt.force_fb: e("s_nop 1\ns_mov_b64 vcc, -1")
    e(f"""
    s_cmp_eq_u64 vcc, 0
    s_cselect_b32 s{sT0}, 1, s{sMode}
    s_cmp_eq_u32 s{sT0}, 0
    s_cbranch_scc1 Lfb
    """)
    g.stamp("o stored")
    pA = 32; pR = 48; pI = 64; pU = 80; pT = 96; pF = 104; pM = 112; pX = 120; pW = 128
    oflag = [Wt(vm="ost")] + g.flag(0, sFlO)
    if opt.wgflag:
        oflag = [Wt(vm="ost"), f"s_cmp_eq_u32 s{sRow}, 1024", "s_cbranch_scc1 Lnoofl", "s_barrier", f"s_cmp_lg_u32 s{sW}, 1", "s_cbranch_scc1 Lnoofl"] + g.flag(0, sFlO) + ["Lnoofl:"]
    e(Wt(vm=["d3", "t3"]))
    if opt.afine: g.stamp("d3 ok")
    e("Lp3:")
    for k in range(4):
        for ee in range(2):
            e(f"ds_read_b64_tr_b16 {vr(pA+4*k+2*ee,2)}, v{vFB+(k>>1)} offset:{(k&1)*2048+ee*512}")
    e(f"""
    s_sub_u32 s{sF2}, 2048, s{sRow}
    s_and_b32 s{sF2}, s{sF2}, 2047
    s_lshl_b32 s{sF2}, s{sF2}, 12
    s_lshl_b32 s{sF1}, s{sRow}, 12
    s_and_b32 s{sT2}, s{sRow}, 1023
    s_cbranch_scc0 Lp3_real
    Lp3_mm:
    """)
    g.tail += ["Lp3_real:", "s_waitcnt lgkmcnt(0)"] + [f"v_mov_b64 {vr(pA+8+i,2)}, 0" for i in range(0, 8, 2)] + [
        f"v_xor_b32 v{vFB}, 16, v{vFB}", "s_branch Lp3_mm"]
    acc = [f"v_accvgpr_read_b32 v{pW+i}, a{aTW+i}" for i in range(32)] + [f"v_accvgpr_read_b32 v{pX+i}, a{aTX+i}" for i in range(3)]
    for k in range(4):
        e(f"s_waitcnt lgkmcnt({6-2*k})")
        for nb in range(2):
            d = vr((pR, pI)[nb], 16)
            tb = aT3 + (4 * k if nb == 0 else (16 + 4 * k if k < 2 else 4 * (k - 2)))
            e(f"v_mfma_f32_32x32x16_bf16 {d}, {vr(pA+4*k,4)}, {ar(tb,4)}, {'0' if k==0 else d}")
            for _ in range(3): e(acc.pop(0))
    e(acc); e("s_nop 0")
    if opt.afine: g.stamp("beta")
    if opt.oflag == 0: e(oflag)
    if opt.afine: g.stamp("oflag")
    for i in range(8):
        r, im, c, s_ = pR + 2 * i, pI + 2 * i, pW + 2 * i, pW + 16 + 2 * i
        e(f"""
        v_pk_mul_f32 {vr(pT,2)}, {vr(r,2)}, {vr(c,2)}
        v_pk_mul_f32 {vr(pT+2,2)}, {vr(im,2)}, {vr(c,2)}
        v_pk_fma_f32 {vr(pT,2)}, {vr(im,2)}, {vr(s_,2)}, {vr(pT,2)}
        v_pk_fma_f32 {vr(pT+2,2)}, {vr(r,2)}, {vr(s_,2)}, {vr(pT+2,2)} neg_lo:[0,1,0] neg_hi:[0,1,0]
        v_cvt_pk_bf16_f32 v{pU+i}, v{pT}, v{pT+1}
        v_cvt_pk_bf16_f32 v{pU+8+i}, v{pT+2}, v{pT+3}
        """)
    e("s_nop 0")
    for k in range(4):
        e(f"v_mfma_f32_32x32x16_bf16 {vr(pR,16)}, {vr(pU+4*k,4)}, {ar(aT3+4*k,4)}, {'0' if k==0 else vr(pR,16)}")
    if opt.oflag == 1: e(oflag)
    e(f"""
    s_mov_b64 s[{GX}:{GX+1}], s[{WS}:{WS+1}]
    s_mov_b32 s{GX+2}, 0x10000000
    s_lshl_b32 s{sT2}, s{sRB2}, 6
    s_add_u32 s{sT2}, s{sT2}, s{sW}
    s_lshl_b32 s{sT2}, s{sT2}, 11
    s_add_u32 s{sT2}, s{sT2}, {WS_O}
    s_add_u32 s{sTX}, s{sC2}, 2
    s_and_b32 s{sTX}, s{sTX}, 15
    s_lshl_b32 s{sTX}, s{sTX}, 13
    v_add_u32 v{vOX}, s{sT2}, v{v16}
    v_add_u32 v{vOX+1}, s{sT2}, v{v16}
    v_add_u32 v{vB}, {L_X}, v{v16}
    v_add_u32 v{vB+1}, {L_X+1024}, v{v16}
    ds_bpermute_b32 v{pR+16}, v{pX}, v{pR}
    """)
    for m_ in range(8): e(f"v_cvt_pk_bf16_f32 v{pF+m_}, v{pR+2*m_}, v{pR+2*m_+1}")
    for m_ in range(1, 8): e(f"v_cvt_pk_bf16_f32 v{pM+m_}, v{pR+16-2*m_}, v{pR+15-2*m_}")
    vPO = 7
    if opt.wgflag: e(f"v_and_b32 v{vPO}, 7, v{vL}\nv_lshl_or_b32 v{vPO}, v{vPO}, 2, 1\nv_lshlrev_b32 v{vPO}, {opt.fsp}, v{vPO}")
    else: e(f"v_lshlrev_b32 v{vPO}, {opt.fsp-2}, v{vP4}")
    opoll = f"buffer_load_dword v{vPoll}, v{vPO}, {sr(WS,4)}, s{sPoO} offen sc1"
    if not opt.poll1: e(VM(opoll, "opoll"))
    for i in range(4): e(f"v_permlane16_swap_b32 v{pF+i}, v{pF+4+i}")
    p3st = [f"buffer_store_dwordx4 {vr(pF,4)}, v{pX+1}, {sr(OUT,4)}, s{sF1} offen {opt.p3_sc}",
            f"buffer_store_dwordx4 {vr(pF+4,4)}, v{pX+1}, {sr(OUT,4)}, s{sF1} offen offset:512 {opt.p3_sc}",
            f"buffer_store_dwordx4 {vr(pM,4)}, v{pX+2}, {sr(OUT,4)}, s{sF2} offen offset:512 {opt.p3_sc}",
            f"buffer_store_dwordx4 {vr(pM+4,4)}, v{pX+2}, {sr(OUT,4)}, s{sF2} offen {opt.p3_sc}"]
    if not opt.defer: e([VM(x) for x in p3st[:2]])
    e(f"s_waitcnt lgkmcnt(0)\nv_cvt_pk_bf16_f32 v{pM}, v{pR+16}, v{pR+15}\ns_nop 1")
    for i in range(4): e(f"v_permlane16_swap_b32 v{pM+i}, v{pM+4+i}")
    if not opt.defer: e([VM(x) for x in p3st[2:]])
    if opt.oflag == 2: e(oflag)
    e(f"s_cmp_eq_u32 s{sRow}, 0\ns_cbranch_scc1 Lp3_again")
    g.tail += ["Lp3_again:"] + (p3st if opt.defer else []) + [f"s_movk_i32 s{sRow}, 1024", "s_branch Lp3"]
    g.stamp("p3 done")
    if opt.poll1:
        e(Wt(vm=["oW3"]))
        e([f"s_cmp_lg_u32 s{sW}, 3", "s_cbranch_scc1 Lnopoll", opoll, "s_waitcnt vmcnt(0)"] + g.check(1, vPoll, opoll) + ["Lnopoll:", "s_barrier"])
    else:
        e(Wt(vm="opoll"))
        e("s_barrier")
        e(g.check(1, vPoll, opoll))
    g.stamp("o flags")
    mkX = lambda c: dmaX(c, 8192, 0x1ffff, {3: -5, 5: 5}.get(c, 1), p="o")
    for c in range(5): e(burst(mkX(c)))
    og = {}
    if opt.fine:
        og[1] = g.stampl("o first"); og[45] = g.stampl("o c5"); og[85] = g.stampl("o c10")
    epi = f"""
    v_and_b32 v56, 31, v{vL}
    v_lshrrev_b32 v57, 5, v{vL}
    v_bfe_u32 v58, v{vL}, 1, 2
    v_lshlrev_b32 v57, 1, v57
    v_xor_b32 v57, v57, v58
    v_lshlrev_b32 v57, 4, v57
    v_lshl_or_b32 v56, v56, 6, v57
    v_add_u32 v56, s{sWb}, v56
    v_xor_b32 v57, 16, v56
    v_lshrrev_b32 v58, 2, v{vL}
    v_bfe_u32 v59, v{vL}, 3, 2
    v_and_b32 v60, 3, v{vL}
    v_xor_b32 v59, v59, v60
    v_lshlrev_b32 v59, 4, v59
    v_lshl_or_b32 v59, v58, 6, v59
    v_add_u32 v59, s{sWb}, v59
    v_lshlrev_b32 v60, 4, v60
    v_lshl_or_b32 v58, v58, 12, v60
    s_lshl_b32 s{sT0}, s{sRB2}, 18
    s_lshl2_add_u32 s{sT1}, s{sG2}, s{sW}
    s_lshl_b32 s{sT1}, s{sT1}, 6
    s_add_u32 s{sT0}, s{sT0}, s{sT1}
    s_add_u32 s{sT0}, s{sT0}, 2048
    s_add_u32 s{sT1}, s{sT0}, 0x10000
    s_add_u32 s{sT2}, s{sT0}, 0x20000
    s_add_u32 s{sT3}, s{sT0}, 0x30000
    """.strip().split("\n")
    for n, x in enumerate(epi): og.setdefault(96 + n, []).append(x.strip())
    if opt.defer:
        for n, x in enumerate(p3st): og.setdefault(opt.dpos + 4 * n, []).append(VM(x))
    rest = gemm(g, "o", lambda c: dmaW(c, sOffW2, p="o"), mkX, 6, og, {})
    assert not rest
    g.stamp("out gemm done")
    e("s_nop 9")
    for qb in range(2):
        for i in range(8): e(f"v_cvt_pk_bf16_f32 v{64+8*qb+i}, v{16*qb+2*i}, v{16*qb+2*i+1}")
        for i in range(2): e(LG(f"ds_write_b128 v{56+i}, {vr(64+8*qb+4*i,4)} offset:{2048*qb}", f"ew{qb}"))
    for n in range(4):
        if n % 2 == 0: e(Wt(lg=f"ew{n>>1}"))
        e(LG(f"ds_read_b128 {vr(80+4*n,4)}, v59 offset:{1024*n}", f"er{n}"))
    for n in range(4):
        e(Wt(lg=f"er{n}"))
        e(f"buffer_store_dwordx4 {vr(80+4*n,4)}, v58, {sr(OUT,4)}, s{sT0+n} offen {opt.out_sc}")
    if opt.stamps:
        e("s_waitcnt vmcnt(0)")
        g.stamp("end")
    if opt.echo:
        e("s_waitcnt vmcnt(0)")
        g.stamp("fin")
        e("""
        s_memrealtime s[6:7]
        s_waitcnt lgkmcnt(0)
        s_lshl_b32 s9, s9, 2
        s_add_u32 s9, s9, s6
        Lecho:
        s_sleep 2
        s_memrealtime s[6:7]
        s_waitcnt lgkmcnt(0)
        s_sub_u32 s10, s6, s9
        s_cmp_lt_i32 s10, 0
        s_cbranch_scc1 Lecho
        """)
    e("Lend:\ns_endpgm")
    e(g.tail)
    e(f"""
    Lfb:
    s_mov_b32 s{sMode}, 1
    v_mov_b32 v{vT0}, 0xff800000
    v_mov_b32 v{vT1}, 0xff800000
    s_mov_b32 s{sC}, 0
    Lfb1:
    buffer_load_dwordx4 {vr(K[0],4)}, v{v16}, {sr(WS,4)}, s{sC} offen sc1
    buffer_load_dwordx4 {vr(K[0]+4,4)}, v{v16}, {sr(WS,4)}, s{sC} offen offset:1024 sc1
    s_waitcnt vmcnt(0)
    """)
    for qb in range(2):
        e(f"v_mfma_f32_32x32x16_bf16 {vr(S[qb],16)}, {vr(K[0],4)}, {vr(Q[qb],4)}, 0")
        e(f"v_mfma_f32_32x32x16_bf16 {vr(S[qb],16)}, {vr(K[0]+4,4)}, {vr(Q[qb]+4,4)}, {vr(S[qb],16)}")
    e("s_nop 15")
    e(maxtree(vT0, S[0], False) + maxtree(vT1, S[1], False))
    e(f"s_add_u32 s{sC}, s{sC}, 4096\ns_cmp_lt_u32 s{sC}, 0x40000\ns_cbranch_scc1 Lfb1")
    finish_max(0.0, [])
    for i in range(O[0], Lr[1] + 4, 2): e(f"v_mov_b64 {vr(i,2)}, 0")
    e(f"s_mov_b32 s{sC}, 0\nLfb2:")
    for k in range(2):
        e(f"buffer_load_dwordx4 {vr(K[0]+4*k,4)}, v{v16}, {sr(WS,4)}, s{sC} offen offset:{1024*k} sc1")
        e(f"buffer_load_dwordx4 {vr(V[0]+4*k,4)}, v{v16}, {sr(WS,4)}, s{sC} offen offset:{2048+1024*k} sc1")
    e("s_waitcnt vmcnt(0)")
    for qb in range(2):
        e(f"v_mfma_f32_32x32x16_bf16 {vr(S[qb],16)}, {vr(K[0],4)}, {vr(Q[qb],4)}, {vr(M[qb],16)}")
        e(f"v_mfma_f32_32x32x16_bf16 {vr(S[qb],16)}, {vr(K[0]+4,4)}, {vr(Q[qb]+4,4)}, {vr(S[qb],16)}")
    e("s_nop 15")
    for i in range(32): e(f"v_exp_f32 v{i}, v{i}")
    e("s_nop 1")
    for qb in range(2):
        for u in range(2):
            e(f"v_smfmac_f32_32x32x32_bf16 {vr(O[qb],16)}, {vr(V[0]+4*u,4)}, {vr(S[qb]+8*u,8)}, v{IDX}")
            e(f"v_smfmac_f32_16x16x64_bf16 {vr(Lr[qb],4)}, {vr(ONES,4)}, {vr(S[qb]+8*u,8)}, v{IDX}")
    e(f"""
    s_add_u32 s{sC}, s{sC}, 4096
    s_cmp_lt_u32 s{sC}, 0x40000
    s_cbranch_scc1 Lfb2
    s_nop 15
    s_branch La_norm
    Lcode_end:
    """)
    txt = g.text()
    a = txt.index("Lkv_done:"); b = txt.index("Lkvflag_b:")
    nld = sum(1 for l in txt[a:b] if l.startswith(" buffer_load"))
    txt[txt.index(" KVFLAGWAIT")] = f" s_waitcnt vmcnt({nld})"
    return txt

def table_text():
    b = TB.blob(); L = []
    for i in range(0, len(b), 128):
        ch = b[i:i + 128]
        L.append(".octa " + ",".join("0x%x" % int.from_bytes(ch[j:j + 16], "little") for j in range(0, 128, 16)))
    return "\n".join(L)

def build(opt):
    ref = open(f"cdna_kernels/{NAME}.s.ref").read().split("\n")
    head = [l for l in ref if l.startswith(";") and "@launch" not in l]
    s = "\n".join(head) + "\n; @launch grid=(256,1,1) block=(256,1,1) lds=163840\n"
    s += f""".amdgcn_target "amdgcn-amd-amdhsa--gfx950"
.text
.globl {NAME}_kernel
.p2align 8
.type {NAME}_kernel,@function
"""
    s += "\n".join(gen(opt)) + "\n"
    s += f""".fill {2048 if opt.exp==4 else 256}, 4, 0xbf800000
s_endpgm
.section .rodata,"a"
.p2align 6
.amdhsa_kernel {NAME}_kernel
  .amdhsa_next_free_vgpr 512
  .amdhsa_next_free_sgpr 102
  .amdhsa_accum_offset 256
  .amdhsa_group_segment_fixed_size 0
  .amdhsa_kernarg_size 104
  .amdhsa_user_sgpr_count 2
  .amdhsa_user_sgpr_kernarg_segment_ptr 1
  .amdhsa_system_sgpr_workgroup_id_x 1
.end_amdhsa_kernel
.p2align 8
fn_tables:
"""
    s += table_text() + "\n"
    return s

if __name__ == "__main__":
    opt = Opt()
    out = f"cdna_kernels/{NAME}.s"
    for a in sys.argv[1:]:
        if a.startswith("-o"): out = a[2:]
        else:
            k, v = a.split("=")
            cur = getattr(opt, k)
            setattr(opt, k, type(cur)(int(v)) if isinstance(cur, (bool, int)) else type(cur)(v))
    s = build(opt)
    open(out, "w").write(s)
    if opt.stamps: open(out + ".names", "w").write("\n".join(opt.names))
    print(out, len(s), "bytes")
```

```python
import sys, struct
import tables as TB

NAME = "concat_heads__spectral_fnet__grouped_kv_mqa__prompt"

class Opt:
    stamps = False
    dbg = False
    codepf = True
    spin = 1 << 20
    out_sc = "nt"
    force_fb = False
    off = 90.0
    lead = 5
    nkv = 5
    fgap = 3
    rot = '4821'
    nt = ''
    ntf = 'nt'
    dpos = 101
    xpre = 2
    nwin = 0
    w0n = 0
    poll1 = True
    wgflag = True
    defer = True
    fsp = 2
    slp = 1
    pre1 = 2
    echo = ''
    warm = False
    p3_sc = 'nt'
    d1_sc = ''
    ppos = 21
    afine = False
    exp = 0
    xsc = ''
    fine = False
    mapA = True
    kvb = 11
    nofft = False
    oflag = 0

def f2u(x): return struct.unpack("<I", struct.pack("<f", x))[0]
def vr(b, n): return f"v[{b}:{b+n-1}]"
def ar(b, n): return f"a[{b}:{b+n-1}]"
def sr(b, n): return f"s[{b}:{b+n-1}]"

WS_FL = 0x40000
FL_EPOCH = WS_FL
FL_KV = WS_FL + 0x1000
FL_Z1 = WS_FL + 0x2000
FL_Z2 = WS_FL + 0x3000
FL_O = WS_FL + 0x8000
WS_O = 0x100000
WS_Z1 = 0x800000
WS_Z2 = 0xC00000
WS_ST = 0x1000000
L_X = 96 * 1024; L_MISC = 144 * 1024
KB = [65536, 0, 32768, 98304]
sW, sX, sJ, sRB, sG, sC0 = 30, 31, 32, 33, 34, 35
GX, GW, WS, OUT, XA, TBL, KW = 36, 40, 44, 48, 52, 56, 60
sTAG, sOffW, sTX, sWb, sXb = 64, 65, 66, 67, 68
sRB2, sG2, sC2 = 69, 70, 71
sKV, sKV2, sMisc = 72, 73, 74
sF1, sSt1, sFl1, sPo1, sTab2, sF2, sSt2, sFl2, sPo2, sF3, sRow = 75, 76, 77, 78, 79, 86, 87, 88, 89, 90, 91
sT0, sT1, sT2, sT3, sT4, sT5 = 80, 81, 82, 83, 84, 85
sOst, sOst2, sFlO, sPoO, sOffW2, sFlKV, sCB, sMode, sSpin, sTb = 92, 93, 94, 95, 96, 97, 98, 99, 100, 101
sC = 16
sLow = 69; sOwn = [70, 71]
sIdx = [4, 5, 14, 15, 18, 19, 20, 21, 24, 25, 28, 29, 35, 17]
def idx(c): return sOwn[c] if c < 2 else sIdx[c - 2]
ASL = {2: 65536, 3: 81920, 0: 131072, 1: 0, 4: 16384, 5: 32768, 6: 49152}
def aW(c): return 16 * c if c < 5 else 148 + 16 * (c - 5)
L_XO = 80 * 1024
WSL = {7: 0, 8: 1, 9: 4, 10: 2, 11: 3, 12: 0, 13: 1, 14: 4, 15: 2}
S = [0, 16, 32, 48]; O = [64, 80]; Lr = [96, 100]; M = [104, 120]; Q = [136, 144]; K = [152, 160]; V = [168, 176]
ONES = 184; IDX = 188; vKlo = 230; vKhi = 189
vFD = 196
vFB = 228
v16 = 230; vP1 = 231; vZ = 232; vA = 233; vB = 235; vOW = 238; vOX = 242
vPoll = 244; vP4 = 245; vOne = 237
vDummy = 246
vL = 250; vT0 = 251; vT1 = 252; vT2 = 253; vT3 = 254; vT4 = 255
aD, aT1, aT2, aT3, aTX, aTW = 0, 16, 48, 80, 112, 116

NT = {'w': '', 'x': '', 'o': ''}
class I:
    def __init__(s, t, kind=None, tag=None): s.t, s.kind, s.tag = t, kind, tag
class Wt:
    def __init__(s, vm=None, lg=None, must=False): s.vm, s.lg, s.must = vm, lg, must
def VM(t, tag=None): return I(t, "vm", tag)
def LG(t, tag=None): return I(t, "lg", tag)

class G:
    def __init__(self, opt):
        self.o = []; self.opt = opt; self.nst = 0; self.uid = 0; self.tail = []
    def e(self, s):
        if isinstance(s, (list, tuple)):
            for x in s: self.e(x)
        elif isinstance(s, (I, Wt)): self.o.append(s)
        elif s:
            for l in s.strip("\n").split("\n"):
                l = l.strip()
                if l: self.o.append(I(l))
    def lab(self, p):
        self.uid += 1; return f"{p}_{self.uid}"
    def text(self):
        out = []; vq = []; lq = []; seen = set(); waited = set()
        alltags = {x.tag for x in self.o if isinstance(x, I) and x.kind}
        def cnt(q, tags, mx):
            tags = tags if isinstance(tags, (list, tuple)) else [tags]
            for t in tags:
                assert t in seen or t not in alltags, ("wait before issue", t)
                waited.add(t)
            idx = max([i for i, t in enumerate(q) if t in tags], default=-1)
            if idx < 0: return None
            n = min(len(q) - 1 - idx, mx)
            del q[:len(q) - n]
            return n
        for x in self.o:
            if isinstance(x, Wt):
                p = []
                if x.vm is not None:
                    if x.vm == "all": p.append("vmcnt(0)"); vq.clear()
                    else:
                        n = cnt(vq, x.vm, 63)
                        if n is not None: p.append(f"vmcnt({n})")
                if x.lg is not None:
                    if x.lg == "all": p.append("lgkmcnt(0)"); lq.clear()
                    else:
                        n = cnt(lq, x.lg, 15)
                        if n is not None: p.append(f"lgkmcnt({n})")
                if p: out.append(" s_waitcnt " + " ".join(p))
                elif x.must: out.append(" s_nop 0")
            else:
                if x.kind:
                    assert x.tag is None or x.tag not in waited, ("issue after wait", x.tag)
                    seen.add(x.tag)
                if x.kind == "vm": vq.append(x.tag)
                if x.kind == "lg": lq.append(x.tag)
                out.append(x.t if x.t.endswith(":") else " " + x.t)
        return out
    def stamp(self, name, cyc=False):
        if self.opt.echo == name and not cyc:
            self.e("s_memrealtime s[6:7]\ns_waitcnt lgkmcnt(0)\ns_sub_u32 s9, s6, s3")
        if not self.opt.stamps or cyc: return
        k = self.nst; self.nst += 1
        self.opt.names.append(("CYC " if cyc else "") + name)
        if self.opt.dbg:
            lb = self.lab("Lnost")
            self.e(f"""
            s_cmp_lg_u32 s9, 0
            s_cbranch_scc1 {lb}
            s_memrealtime s[6:7]
            s_waitcnt lgkmcnt(0)
            v_mov_b32 v195, s6
            s_mov_b64 exec, 1
            buffer_atomic_umax v195, off, s[12:15], 0 offset:{4*k}
            s_mov_b64 exec, -1
            {lb}:
            """)
            return
        self.e(f"""
        s_memrealtime s[6:7]
        s_memtime s[12:13]
        s_waitcnt lgkmcnt(0)
        v_mov_b32 v194, s6
        v_mov_b32 v195, s12
        buffer_store_dwordx2 v[194:195], off, {sr(WS,4)}, s8 offset:{8*k}
        """)
    def stampl(self, name):
        if name in ("beta", "oflag") and not self.opt.fine: return []
        save = self.o; self.o = []; self.stamp(name); r = self.o; self.o = save; return r
    def srd(self, d, lo, size):
        return [f"s_mov_b32 s{d}, s{lo}", f"s_and_b32 s{d+1}, s{lo+1}, 0xffff", f"s_mov_b32 s{d+2}, {size}", f"s_mov_b32 s{d+3}, 0x20000"]
    def flag(self, tmp, soff):
        return [f"v_mov_b32 v{tmp}, s{sTAG}", f"buffer_store_dword v{tmp}, v{vOne}, {sr(WS,4)}, s{soff} offen sc1"]
    def check(self, nreg, reg, load):
        lr = self.lab("Lretry"); lb = self.lab("Lback")
        cmp = [f"v_cmp_ne_u32 vcc, s{sTAG}, v{reg}"]
        for i in range(1, nreg):
            cmp += [f"v_cmp_ne_u32 s[10:11], s{sTAG}, v{reg+i}", "s_or_b64 vcc, vcc, s[10:11]"]
        self.tail += [f"{lr}:", f"s_mov_b32 s{sSpin}, {self.opt.spin}", f"{lr}_l:", f"s_sleep {self.opt.slp}", load, "s_waitcnt vmcnt(0)"] + cmp + [
            "s_cmp_eq_u64 vcc, 0", f"s_cbranch_scc1 {lb}", f"s_sub_u32 s{sSpin}, s{sSpin}, 1", f"s_cbranch_scc0 {lr}_l",
            f"v_mov_b32 v{vDummy}, {self.uid}", f"v_mov_b32 v{vDummy+1}, 0",
            f"global_store_dword v{vDummy+1}, v{vDummy}, s[26:27] offset:60", f"s_branch {lb}"]
        return cmp + ["s_cmp_eq_u64 vcc, 0", f"s_cbranch_scc0 {lr}", f"{lb}:"]

def dmaW(c, soff=sOffW, p=""):
    pre = [f"s_add_u32 m0, s{sWb}, {(c%6)*16384}"]
    ops = [VM(f"buffer_load_dwordx4 v{vOW+n}, {sr(GW,4)}, s{soff} offen offset:{1024*n} {NT['w']} lds", f"{p}W{c}") for n in range(4)]
    post = [f"s_add_u32 s{soff}, s{soff}, 0x20000", f"s_and_b32 s{soff}, s{soff}, 0x1fffff"]
    return pre, ops, post
def dmaX(c, step, mask, adv=1, p=""):
    pre = [f"s_add_u32 m0, s{sXb}, {(c%6)*8192}"]
    ops = [VM(f"buffer_load_dwordx4 v{vOX+n}, {sr(GX,4)}, s{sTX} offen offset:{1024*n} {NT['x']} lds", f"{p}X{c}") for n in range(2)]
    post = [f"s_add_u32 s{sTX}, s{sTX}, {(adv*step)&mask}", f"s_and_b32 s{sTX}, s{sTX}, {mask}"]
    return pre, ops, post
def burst(p):
    pre, ops, post = p
    return pre + ["s_nop 0"] + ops + post
def dmaKV(ch, hf):
    so = sKV2 if hf else sKV
    pre = [f"s_add_u32 m0, s{sWb}, {KB[ch%4]+16384*hf}"]
    ops = [VM(f"buffer_load_dwordx4 v{v16}, {sr(WS,4)}, s{so} offen offset:{1024*n} sc1 lds", f"KV{ch}{'ab'[hf]}") for n in range(4)]
    post = [f"s_add_u32 s{so}, s{so}, 32768", f"s_and_b32 s{so}, s{so}, 0x3ffff"]
    return pre, ops, post

FA = [32, 44, 152]; FBq = [36, 48, 156]
def gemm(g, pfx, srcA, srcB, waits, groups, gaps):
    e = g.e
    def rdA(t):
        c, u, k = t >> 2, (t >> 1) & 1, t & 1; r, o = srcA(c)
        if r == "a": return []
        return [LG(f"ds_read_b64_tr_b16 {vr(FA[t%3]+2*ee,2)}, v{r} offset:{o+u*8192+k*2048+ee*1024}", f"{pfx}r{t}") for ee in range(2)]
    def rdB(t):
        c, u, k = t >> 2, (t >> 1) & 1, t & 1; r, o = srcB(c)
        return [LG(f"ds_read_b128 {vr(FBq[t%3]+4*qb,4)}, v{r+k} offset:{o+u*4096+qb*2048}", f"{pfx}r{t}") for qb in range(2)]
    extra = {i: list(v) for i, v in gaps.items()}
    if waits.get(0): e(Wt(vm=waits[0])); e("s_barrier")
    for t in range(2): e(rdA(t) + rdB(t))
    e(extra.pop(-1, []))
    def put(i, l): extra.setdefault(i, []).extend(l)
    i = 0
    for c in range(16):
        i = max(i, 8 * c + 4)
        for pre, ops, post in groups.get(c, []):
            put(i, pre)
            for op in ops:
                i += 1; put(i, [op])
            put(i, post)
    for i in range(128):
        t, qb = i >> 1, i & 1
        if qb == 0: e(Wt(lg=f"{pfx}r{t}"))
        cc = "0" if t == 0 else vr(16 * qb, 16)
        r, o = srcA(t >> 2)
        a = ar(o + 4 * (t & 3), 4) if r == "a" else vr(FA[t % 3], 4)
        e(f"v_mfma_f32_32x32x16_bf16 {vr(16*qb,16)}, {a}, {vr(FBq[t%3]+4*qb,4)}, {cc}")
        if i % 8 == 4:
            c = i >> 3
            if waits.get(c + 1): e(Wt(vm=waits[c + 1]))
            if waits.get(c + 1) or groups.get(c): e("s_barrier")
        if t + 2 < 64: e(rdA(t + 2) if qb == 0 else rdB(t + 2))
        e(extra.pop(i, []))
    rest = []
    for i in sorted(extra): rest += extra[i]
    return rest
def dmaWo(c, lds):
    pre = [f"s_add_u32 m0, s{sWb}, {lds}", f"s_lshl4_add_u32 s{sOffW}, s{idx(c)}, s{sLow}"]
    ops = [VM(f"buffer_load_dwordx4 v{vOW+n}, {sr(GW,4)}, s{sOffW} offen offset:{1024*n} {NT['o']} lds", f"oW{c}") for n in range(4)]
    return pre, ops, []
def dmaXo(c):
    pre = [f"s_add_u32 m0, s{sXb}, {((c-2)%8)*8192}"]
    ops = [VM(f"buffer_load_dwordx4 v{vOX}, {sr(WS,4)}, s{idx(c)} offen offset:{1024*n} sc1 lds", f"oX{c}") for n in range(2)]
    return pre, ops, []

def gen(opt):
    g = G(opt); e = g.e
    opt.names = []
    for k in opt.nt: NT[k] = opt.ntf
    opt.win = [7, 8, 9][:opt.nwin]
    e(f"{NAME}_kernel:")
    if opt.stamps or opt.echo: e("s_memrealtime s[60:61]")
    e(f"""
    s_cmp_ge_u32 s2, 256
    s_cbranch_scc1 Lend
    s_load_dwordx16 s[4:19], s[0:1], 0
    s_load_dwordx8 s[20:27], s[0:1], 64
    s_load_dwordx2 s[28:29], s[0:1], 96
    v_lshrrev_b32 v1, 6, v0
    v_and_b32 v{vL}, 63, v0
    v_readfirstlane_b32 s{sW}, v1
    v_lshlrev_b32 v{v16}, 4, v{vL}
    s_and_b32 s{sX}, s2, 7
    s_lshr_b32 s{sJ}, s2, 3
    """)
    if opt.codepf:
        e(f"""
        s_lshl_b32 s{sT0}, s{sJ}, 2
        s_add_u32 s{sT0}, s{sT0}, s{sW}
        s_lshl_b32 s{sT0}, s{sT0}, 10
        s_cmp_ge_u32 s{sT0}, Lcode_end-Lpc1
        s_cbranch_scc1 Lnopf
        s_getpc_b64 s[{sT2}:{sT3}]
        Lpc1:
        v_add_u32 v13, s{sT0}, v{v16}
        global_load_dwordx4 {vr(vDummy,4)}, v13, s[{sT2}:{sT3}]
        Lnopf:
        """)
    e(f"s_lshl2_add_u32 s{sCB}, s{sX}, s{sW}")
    if opt.mapA:
        e(f"""
        s_and_b32 s{sT0}, s{sJ}, 7
        s_lshr_b32 s{sT1}, s{sX}, 1
        s_lshl3_add_u32 s{sRB}, s{sT1}, s{sT0}
        s_lshr_b32 s{sT1}, s{sJ}, 3
        s_and_b32 s{sT2}, s{sX}, 1
        s_lshl2_add_u32 s{sG}, s{sT2}, s{sT1}
        s_lshl1_add_u32 s{sT0}, s{sT1}, s{sT0}
        s_lshl_b32 s{sT0}, s{sT0}, 1
        s_and_b32 s{sC0}, s{sT0}, 15
        """)
    if opt.rot:
        a, b, c, d = [int(x, 16) for x in opt.rot]
        e(f"""
        s_lshr_b32 s{sT0}, s{sX}, 1
        s_mul_i32 s{sC0}, s{sT0}, {a}
        s_and_b32 s{sT0}, s{sX}, 1
        s_mul_i32 s{sT0}, s{sT0}, {b}
        s_add_u32 s{sC0}, s{sC0}, s{sT0}
        s_lshr_b32 s{sT0}, s{sJ}, 3
        s_mul_i32 s{sT0}, s{sT0}, {c}
        s_add_u32 s{sC0}, s{sC0}, s{sT0}
        s_and_b32 s{sT0}, s{sJ}, 7
        s_mul_i32 s{sT0}, s{sT0}, {d}
        s_lshr_b32 s{sT0}, s{sT0}, 1
        s_add_u32 s{sC0}, s{sC0}, s{sT0}
        s_and_b32 s{sC0}, s{sC0}, 15
        """)
    e(f"""
    v_lshrrev_b32 v1, 5, v{vL}
    v_lshrrev_b32 v2, 4, v{vL}
    v_and_b32 v7, 31, v{vL}
    v_and_b32 v9, 15, v{vL}
    v_xor_b32 v8, v7, v1
    v_lshlrev_b32 v8, 4, v8
    v_lshl_or_b32 v128, v1, 11, v8
    """)
    for n in range(1, 8):
        e(f"v_xor_b32 v{128+n}, {32*n}, v128\nv_add_u32 v{128+n}, {n*4096-1024*(n&3)}, v{128+n}")
    e(f"""
    s_lshl_b32 s{sT2}, s{sW}, 13
    s_add_u32 s{sT2}, s{sT2}, {112*1024}
    s_mov_b32 s{sT3}, {48*1024}
    s_cmp_eq_u32 s{sW}, 1
    s_cselect_b32 s{sT3}, {144*1024}, s{sT3}
    s_cmp_eq_u32 s{sW}, 2
    s_cselect_b32 s{sT3}, {80*1024}, s{sT3}
    s_cmp_eq_u32 s{sW}, 3
    s_cselect_b32 s{sT3}, {64*1024}, s{sT3}
    s_lshr_b32 s{sT0}, s{sG}, 1
    s_lshl2_add_u32 s{sT0}, s{sRB}, s{sT0}
    s_lshl_b32 s{sT4}, s{sT0}, 15
    s_lshl_b32 s{sT0}, s{sW}, 9
    s_add_u32 s{sT4}, s{sT4}, s{sT0}
    s_lshl_b32 s{sT5}, s{sW}, 14
    """)
    e(f"""
    v_lshlrev_b32 v10, 2, v2
    v_xor_b32 v10, v10, v9
    v_lshlrev_b32 v10, 4, v10
    v_lshl_or_b32 v{vOW}, v2, 11, v10
    v_add_u32 v{vOW+1}, 7168, v{vOW}
    v_add_u32 v{vOW+2}, 14336, v{vOW}
    v_add_u32 v{vOW+3}, 21504, v{vOW}
    """)
    e(f"""
    s_lshl_b32 s{sWb}, s{sW}, 12
    s_lshl_b32 s{sXb}, s{sW}, 11
    s_add_u32 s{sXb}, s{sXb}, {L_X}
    s_lshl2_add_u32 s{sT0}, s{sC0}, s{sW}
    s_lshl_b32 s{sT0}, s{sT0}, 7
    s_add_u32 s{sT0}, s{sT0}, s{sG}
    s_lshl_b32 s{sOffW}, s{sT0}, 8
    s_lshl_b32 s{sTX}, s{sC0}, 7
    """)
    e(f"""
    s_and_b32 s{sTb}, s{sJ}, 7
    s_lshr_b32 s{sT0}, s{sJ}, 4
    s_lshl3_add_u32 s{sTb}, s{sT0}, s{sTb}
    s_lshl_b32 s{sTb}, s{sTb}, 10
    """)
    e("s_waitcnt lgkmcnt(0)")
    if opt.stamps or opt.echo: e("s_mov_b32 s3, s60")
    e([f"s_bitcmp1_b32 s{sG}, 0", f"s_cselect_b32 s{KW}, s20, s18", f"s_cselect_b32 s{KW+1}, s21, s19",
       f"s_and_b32 s{KW+1}, s{KW+1}, 0xffff", f"s_mov_b32 s{KW+2}, 65536", f"s_mov_b32 s{KW+3}, 0x20000"])
    def kvw1():
        return [f"s_add_u32 m0, s{sT3}, s{sTb}", f"s_add_u32 s{sOst2}, s{sT5}, s{sTb}",
                VM(f"buffer_load_dwordx4 v{v16}, {sr(KW,4)}, s{sOst2} offen lds", "kv"),
                f"s_add_u32 s{sTb}, s{sTb}, 1024", f"s_and_b32 s{sTb}, s{sTb}, 0x3fff"]
    e(kvw1())
    e(g.srd(GX, 14, 4194304))
    kvx = [VM(f"buffer_load_dwordx4 v{128+n}, {sr(GX,4)}, s{sT4} offen offset:{1024*(n&3)} {NT['x']} lds", "kv") for n in range(8)]
    fill = [g.srd(GW, 16, 2097152), g.srd(WS, 28, 0x10000000) + [f"s_mov_b32 s{sMode}, {FL_EPOCH}"]]
    fill.append(f"""
    v_bfe_u32 v3, v{vL}, 2, 2
    v_and_b32 v4, 1, v{vL}
    v_bfe_u32 v5, v{vL}, 1, 1
    v_and_b32 v6, 1, v2
    v_lshlrev_b32 v{vP4}, 2, v7
    v_lshrrev_b32 v11, 3, v{vL}
    """)
    fill.append(f"""
    s_and_b32 s{sT0}, s{sW}, 1
    s_lshl1_add_u32 s{sT0}, s{sRB}, s{sT0}
    s_lshl_b32 s{sT0}, s{sT0}, 16
    s_lshr_b32 s{sT1}, s{sW}, 1
    s_lshl_b32 s{sT1}, s{sT1}, 6
    s_add_u32 s{sT0}, s{sT0}, s{sT1}
    v_lshrrev_b32 v12, 2, v{vL}
    v_and_b32 v13, 3, v{vL}
    v_xor_b32 v14, v13, v2
    v_lshlrev_b32 v14, 4, v14
    v_lshl_or_b32 v14, v12, 11, v14
    v_add_u32 v{vOX}, s{sT0}, v14
    v_add_u32 v{vOX+1}, {32768-1024}, v{vOX}
    """)
    fill.append(f"""
    v_xor_b32 v13, v2, v9
    v_lshlrev_b32 v13, 4, v13
    v_lshl_or_b32 v13, v9, 9, v13
    v_add_u32 v136, s{sT2}, v13
    v_xor_b32 v14, 64, v13
    v_add_u32 v137, s{sT2}, v14
    v_xor_b32 v14, 128, v13
    v_add_u32 v138, s{sT2}, v14
    v_xor_b32 v14, 192, v13
    v_add_u32 v139, s{sT2}, v14
    """)
    fill.append(f"""
    v_lshl_add_u32 v13, v2, 3, v3
    v_lshlrev_b32 v13, 6, v13
    v_add_u32 v13, s{sT3}, v13
    v_and_b32 v14, 3, v{vL}
    v_lshlrev_b32 v14, 4, v14
    v_lshlrev_b32 v15, 5, v4
    v_lshl_or_b32 v15, v5, 3, v15
    s_bitcmp1_b32 s{sG}, 0
    s_cselect_b64 vcc, -1, 0
    s_cselect_b32 s{sT1}, 16, 8
    v_cndmask_b32 v14, v14, v15, vcc
    v_add_u32 v140, v13, v14
    v_add_u32 v141, s{sT1}, v140
    """)
    fill.append(f"""
    v_lshl_add_u32 v14, v1, 5, v9
    v_lshlrev_b32 v14, 4, v14
    v_lshl_or_b32 v14, v6, 10, v14
    v_cndmask_b32 v142, v14, v{v16}, vcc
    v_add_u32 v{vKhi}, 65536, v{v16}
    v_min_u32 v{vOne}, 1, v{vL}
    v_lshlrev_b32 v{vOne}, 28, v{vOne}
    """)
    fill.append(f"""
    v_lshl_add_u32 v13, v1, 4, v3
    v_xor_b32 v14, s{sW}, v3
    v_lshlrev_b32 v14, 1, v14
    v_add_u32 v14, v14, v4
    v_lshl_add_u32 v14, v14, 1, v6
    v_lshl_add_u32 v14, v14, 1, v5
    v_lshlrev_b32 v14, 3, v14
    v_lshl_or_b32 v{vA}, v13, 8, v14
    v_add_u32 v{vA+1}, 49152, v{vA}
    """)
    fill.append(f"""
    v_lshlrev_b32 v14, 1, v1
    v_xor_b32 v13, v3, v14
    v_lshlrev_b32 v13, 4, v13
    v_lshl_or_b32 v13, v7, 6, v13
    v_add_u32 v{vB}, {L_X}, v13
    v_xor_b32 v{vB+1}, 16, v{vB}
    """)
    fill.append(f"""
    v_lshl_add_u32 v13, v1, 3, v3
    v_lshl_add_u32 v14, v6, 1, v4
    v_lshrrev_b32 v15, 1, v3
    v_lshl_add_u32 v14, v14, 1, v15
    v_lshl_add_u32 v14, v14, 1, v5
    v_lshlrev_b32 v14, 3, v14
    v_lshl_or_b32 v13, v13, 7, v14
    s_add_u32 s{sMisc}, s{sWb}, {L_MISC}
    v_add_u32 v{vFB}, s{sMisc}, v13
    v_xor_b32 v{vFB+1}, 16, v{vFB}
    """)
    fill.append(f"""
    v_xor_b32 v13, v4, v6
    v_bfe_u32 v14, v{vL}, 1, 2
    v_lshlrev_b32 v15, 4, v14
    v_lshl_or_b32 v15, v11, 16, v15
    v_lshl_or_b32 v{vP1}, v13, 21, v15
    v_lshlrev_b32 v15, 9, v14
    v_lshl_or_b32 v15, v11, 12, v15
    v_lshl_or_b32 v{vZ}, v13, 4, v15
    """)
    fill.append(g.srd(OUT, 24, 8388608) + g.srd(XA, 4, 4194304))
    fill.append(f"""
    s_getpc_b64 s[{TBL}:{TBL+1}]
    s_add_u32 s{TBL}, s{TBL}, fn_tables@rel32@lo+4
    s_addc_u32 s{TBL+1}, s{TBL+1}, fn_tables@rel32@hi+12
    s_and_b32 s{TBL+1}, s{TBL+1}, 0xffff
    s_mov_b32 s{TBL+2}, {TB.TBL_SIZE}
    s_mov_b32 s{TBL+3}, 0x20000
    """)
    fill.append(f"""
    s_lshl3_add_u32 s{sFlKV}, s{sRB}, s{sG}
    s_lshl_b32 s{sFlKV}, s{sFlKV}, 2
    s_add_u32 s{sFlKV}, s{sFlKV}, {FL_KV}
    s_lshl_b32 s{sKV}, s{sX}, 15
    s_add_u32 s{sKV}, s{sKV}, s{sWb}
    s_add_u32 s{sKV2}, s{sKV}, 16384
    s_lshl_b32 s{sF1}, s{sJ}, 5
    s_add_u32 s{sF1}, s{sF1}, s{sCB}
    s_lshl_b32 s{sFl2}, s{sF1}, 2
    s_add_u32 s{sFl2}, s{sFl2}, {FL_Z2}
    s_lshl_b32 s{sSt2}, s{sF1}, 12
    s_add_u32 s{sSt2}, s{sSt2}, {WS_Z2}
    s_lshl_b32 s{sF1}, s{sF1}, 6
    """)
    fill.append(f"""
    s_lshl_b32 s{sSt1}, s{sCB}, 5
    s_add_u32 s{sSt1}, s{sSt1}, s{sJ}
    s_lshl_b32 s{sFl1}, s{sSt1}, 2
    s_add_u32 s{sFl1}, s{sFl1}, {FL_Z1}
    s_lshl_b32 s{sSt1}, s{sSt1}, 12
    s_add_u32 s{sSt1}, s{sSt1}, {WS_Z1}
    s_lshl_b32 s{sPo1}, s{sCB}, 7
    s_add_u32 s{sPo1}, s{sPo1}, {FL_Z1}
    s_lshl_b32 s{sPo2}, s{sJ}, 7
    s_add_u32 s{sPo2}, s{sPo2}, {FL_Z2}
    s_lshl_b32 s{sTab2}, s{sJ}, 13
    s_add_u32 s{sTab2}, s{sTab2}, {TB.OFF_T2}
    """)
    def zoff(dst, hi, lo, base):
        return f"""
        s_lshl_b32 s{dst}, s{hi}, 17
        s_lshr_b32 s{sT1}, s{lo}, 4
        s_lshl_b32 s{sT1}, s{sT1}, 11
        s_add_u32 s{dst}, s{dst}, s{sT1}
        s_and_b32 s{sT1}, s{lo}, 15
        s_lshl_b32 s{sT1}, s{sT1}, 5
        s_add_u32 s{dst}, s{dst}, s{sT1}
        s_add_u32 s{dst}, s{dst}, {base}
        """
    fill.append(zoff(sF2, sCB, sJ, WS_Z1))
    fill.append(zoff(sF3, sJ, sCB, WS_Z2))
    fill.append(f"""
    s_lshl_b32 s{sT1}, s{sCB}, 6
    s_add_u32 s{sRow}, s{sT1}, s{sJ}
    s_sub_u32 s{sOst}, s{sT1}, {1024-32}
    s_cmp_lt_u32 s{sCB}, 16
    s_cselect_b32 s{sT1}, s{sT1}, s{sOst}
    s_cmp_eq_u32 s{sJ}, 0
    s_cselect_b32 s{sRow}, s{sT1}, s{sRow}
    s_lshl2_add_u32 s{sT1}, s{sG}, s{sW}
    s_lshl_b32 s{sOst}, s{sRB}, 5
    s_add_u32 s{sOst}, s{sOst}, s{sT1}
    s_lshl_b32 s{sFlO}, s{sOst}, {opt.fsp}
    s_add_u32 s{sFlO}, s{sFlO}, {FL_O}
    s_lshl_b32 s{sOst}, s{sOst}, 12
    s_add_u32 s{sOst}, s{sOst}, {WS_O}
    """)
    fill.append(f"""
    s_lshl_b32 s{sPoO}, s{sRB}, {5+opt.fsp}
    s_add_u32 s{sPoO}, s{sPoO}, {FL_O}
    s_lshl_b32 s{sLow}, s{sW}, 7
    s_add_u32 s{sLow}, s{sLow}, s{sG}
    s_lshl_b32 s{sLow}, s{sLow}, 8
    s_lshl_b32 s{sOwn[0]}, s{sG}, 14
    s_add_u32 s{sOwn[1]}, s{sOwn[0]}, 8192
    s_and_b32 s{sT0}, s{sJ}, 7
    s_lshl_b32 s{sT0}, s{sT0}, 1
    s_cmp_eq_u32 s{sT0}, 14
    s_cselect_b32 s{sT0}, 0, s{sT0}
    s_lshl1_add_u32 s{sT1}, s{sG}, 2
    """)
    for c0 in range(0, 14, 4):
        L = []
        for c in range(c0, min(c0 + 4, 14)):
            L += [f"s_add_u32 s{sIdx[c]}, s{sT0}, s{sT1}", f"s_and_b32 s{sIdx[c]}, s{sIdx[c]}, 15", f"s_lshl_b32 s{sIdx[c]}, s{sIdx[c]}, 13",
                  f"s_add_u32 s{sT0}, s{sT0}, 1", f"s_cmp_eq_u32 s{sT0}, 14", f"s_cselect_b32 s{sT0}, 0, s{sT0}"]
        fill.append(L)
    XS, XM = 128, 2047
    def take_vm(lst, n=1):
        out = []
        while lst and n:
            x = lst.pop(0); out.append(x)
            if isinstance(x, I) and x.kind == "vm": n -= 1
        return out
    for n in range(8):
        if n % 4 == 0: e(f"s_add_u32 m0, s{sT2}, {1024*n}\ns_nop 0")
        e(kvx[n]); e(fill.pop(0))
    w0 = dmaW(0)
    e(w0[0] + ["s_nop 0"])
    for n in range(opt.w0n): e(w0[1][n]); e(fill.pop(0))
    e(VM(f"buffer_load_dword v143, off, {sr(WS,4)}, s{sMode} sc1", "kv"))
    for n in range(15):
        e(kvw1())
        if fill: e(fill.pop(0))
    print("fillers left", len(fill), file=sys.stderr) if fill else None
    while fill: e(fill.pop(0))
    if opt.fine: e("s_memrealtime s[10:11]")
    later = w0[0] + ["s_nop 0"] + w0[1][opt.w0n:] + w0[2] + burst(dmaX(0, XS, XM)) + burst(dmaW(1)) + burst(dmaX(1, XS, XM)) + burst(dmaW(2))
    e(take_vm(later, opt.pre1))
    if opt.stamps:
        e(f"s_lshl2_add_u32 s8, s2, s{sW}\ns_lshl_b32 s8, s8, 8\ns_add_u32 s8, s8, {WS_ST}")
        opt.names.append("entry"); g.nst += 1
        if opt.dbg:
            e(g.srd(12, 26, 256))
            e(f"""
            s_or_b32 s9, s{sW}, s{sJ}
            s_cmp_lg_u32 s9, 0
            s_cbranch_scc1 Lnost0
            v_not_b32 v195, s3
            s_mov_b64 exec, 1
            buffer_atomic_umax v195, off, s[12:15], 0
            s_mov_b64 exec, -1
            Lnost0:
            """)
        else:
            e(f"v_mov_b32 v195, s3\nbuffer_store_dword v195, off, {sr(WS,4)}, s8")
            if opt.fine:
                opt.names.append("kv issued"); g.nst += 1
                e(f"s_waitcnt lgkmcnt(0)\nv_mov_b32 v195, s10\nbuffer_store_dword v195, off, {sr(WS,4)}, s8 offset:8")
    e(Wt(vm="kv"))
    g.stamp("kv landed")
    for ks in range(8):
        e(LG(f"ds_read_b128 {vr(4*ks,4)}, v{136+(ks&3)} offset:{256*(ks>>2)}", f"k{ks}"))
        for b in range(2):
            for ee in range(2):
                e(LG(f"ds_read_b64_tr_b16 {vr(64+8*ks+4*b+2*ee,2)}, v{140+b} offset:{2048*ks+256*ee}", f"k{ks}"))
        if ks == 0: e(f"v_readfirstlane_b32 s{sTAG}, v143")
        if ks == 1: e(f"s_mul_i32 s{sTAG}, s{sTAG}, 0x9e3779b1\ns_add_u32 s{sTAG}, s{sTAG}, 0x7f4a7c15")
        e(take_vm(later))
    e(Wt(lg="k4"))
    e(f"s_bitcmp1_b32 s{sG}, 0\ns_cbranch_scc1 Lkv_v")
    mid = [take_vm(later) for _ in range(4)]
    for var in range(2):
        if var == 1: e("Lkv_v:")
        for ks in range(8):
            if ks == 5: e("s_waitcnt lgkmcnt(0)")
            for b in range(2):
                w = vr(64 + 8 * ks + 4 * b, 4); x = vr(4 * ks, 4); d = vr(32 + 4 * b, 4)
                c = "0" if ks == 0 else d
                e(f"v_mfma_f32_16x16x32_bf16 {d}, {w}, {x}, {c}" if var == 0 else f"v_mfma_f32_16x16x32_bf16 {d}, {x}, {w}, {c}")
            if ks % 2 == 0: e(mid[ks >> 1] if var == 0 else [x.t if isinstance(x, I) else x for x in mid[ks >> 1]])
        if var == 0: e("s_branch Lkv_j")
    e("Lkv_j:")
    e(Wt(lg="all"))
    e(f"""
    s_cmp_eq_u32 s{sW}, 3
    s_cselect_b32 s{sT1}, s{sT2}, s{sT3}
    v_add_u32 v13, s{sT1}, v{v16}
    """)
    e(later); later = []
    e(f"""
    s_cmp_eq_u32 s{sW}, 0
    s_cbranch_scc1 Lkv_nw
    s_nop 3
    ds_write_b128 v13, v[32:35]
    ds_write_b128 v13, v[36:39] offset:1024
    s_waitcnt lgkmcnt(0)
    Lkv_nw:
    s_barrier
    s_cmp_lg_u32 s{sW}, 0
    s_cbranch_scc1 Lkv_done
    v_add_u32 v13, {80*1024}, v{v16}
    v_add_u32 v14, {136*1024}, v{v16}
    ds_read_b128 v[40:43], v13
    ds_read_b128 v[44:47], v13 offset:1024
    ds_read_b128 v[48:51], v14
    ds_read_b128 v[52:55], v14 offset:1024
    ds_read_b128 v[56:59], v14 offset:8192
    ds_read_b128 v[60:63], v14 offset:9216
    s_lshr_b32 s{sT1}, s{sG}, 2
    s_lshl1_add_u32 s{sT0}, s{sRB}, s{sT1}
    s_lshl_b32 s{sT0}, s{sT0}, 12
    s_bfe_u32 s{sT1}, s{sG}, 0x10001
    s_lshl_b32 s{sT2}, s{sT1}, 8
    s_lshl_b32 s{sT1}, s{sT1}, 10
    s_add_u32 s{sT1}, s{sT1}, 2048
    s_bitcmp1_b32 s{sG}, 0
    s_cselect_b32 s{sT1}, s{sT1}, s{sT2}
    s_cselect_b32 s{sT2}, 1.0, {hex(f2u(1.4426950408889634/32**0.5))}
    s_mov_b32 s{sT3}, s{sT2}
    s_add_u32 s{sT0}, s{sT0}, s{sT1}
    """)
    for p in range(3):
        e(f"s_waitcnt lgkmcnt({4-2*p})")
        for i in range(4):
            e(f"v_pk_add_f32 {vr(32+2*i,2)}, {vr(32+2*i,2)}, {vr(40+8*p+2*i,2)}")
    for i in range(4): e(f"v_pk_mul_f32 {vr(32+2*i,2)}, {vr(32+2*i,2)}, s[{sT2}:{sT3}]")
    for i in range(4): e(f"v_cvt_pk_bf16_f32 v{40+i}, v{32+2*i}, v{33+2*i}")
    e(f"""
    s_bitcmp1_b32 s{sG}, 0
    s_cbranch_scc0 Lkv_st
    v_permlane16_swap_b32 v40, v42
    v_permlane16_swap_b32 v41, v43
    Lkv_st:
    buffer_store_dwordx4 v[40:43], v142, {sr(WS,4)}, s{sT0} offen sc1
    Lkv_done:
    """)
    LD = opt.lead
    pl = [dmaX(2, XS, XM)]
    for c in range(3, LD): pl += [dmaW(c), dmaX(c, XS, XM)]
    lead = []
    for p in pl: lead += burst(p)
    e(take_vm(lead, max(0, 2 + 6 * (LD - 3) - 6)))
    g.stamp("kv done")
    gaps = {-1: take_vm(lead, 2)}
    for i in range(4): gaps[i] = take_vm(lead)
    gaps[3] += lead
    g.tail += ["Lkvflag:", "KVFLAGWAIT"] + g.flag(56, sFlKV) + ["s_branch Lkvflag_b"]
    gaps.setdefault(opt.fgap, []).extend([f"s_cmp_eq_u32 s{sW}, 0", "s_cbranch_scc1 Lkvflag", "Lkvflag_b:"])
    init = [f"v_mov_b64 {vr(i,2)}, 0" for i in range(O[0], Lr[1] + 4, 2)]
    init += [f"v_mov_b32 v{IDX}, 0xdddddddd", "v_mov_b32 v60, 0x3f803f80", f"v_and_b32 v61, 7, v{vL}", "v_cmp_eq_u32 vcc, 0, v61",
             "v_cmp_eq_u32 s[10:11], 4, v61", "s_nop 1"]
    init += [f"v_cndmask_b32 v{ONES}, 0, v60, vcc", f"v_cndmask_b32 v{ONES+1}, 0, v60, vcc",
             f"v_cndmask_b32 v{ONES+2}, 0, v60, s[10:11]", f"v_cndmask_b32 v{ONES+3}, 0, v60, s[10:11]"]
    for n, x in enumerate(init): gaps.setdefault(18 + 2 * n, []).append(x)
    kvpoll = f"buffer_load_dwordx4 v[56:59], v{v16}, {sr(WS,4)}, s{sT5} offen sc1"
    b0 = opt.kvb
    gaps.setdefault(8 * b0 - opt.ppos, []).extend([f"s_mov_b32 s{sT5}, {FL_KV}", VM(kvpoll, "kvpoll")])
    if opt.fine:
        gaps.setdefault(5, []).extend(g.stampl("q c0"))
        gaps.setdefault(45, []).extend(g.stampl("q c5"))
        gaps.setdefault(8 * b0 + 2, []).extend(g.stampl("q prechk"))
    gaps.setdefault(8 * b0 + 3, []).extend([Wt(vm="kvpoll")] + g.check(4, 56, kvpoll) + (g.stampl("q postchk") if opt.fine else []))
    halves = [(0, 0), (0, 1), (1, 0), (1, 1), (2, 0), (2, 1), (3, 0), (3, 1)]
    ab = {c: [dmaW(c + LD), dmaX(c + LD, XS, XM)] for c in range(16 - LD)}
    for i in range(opt.nkv):
        ab.setdefault(max(b0, 11 + i), []).append(dmaKV(*halves.pop(0)))
    rest = gemm(g, "q", lambda c: (vA + (c % 6) // 3, (c % 3) * 16384), lambda c: (vB, (c % 6) * 8192),
                {c: [f"W{c}", f"X{c}"] for c in range(16)}, ab, gaps)
    g.stamp("q gemm done")
    g.tail += ["Lepoch:", f"s_mov_b32 s{sT0}, {FL_EPOCH}"] + g.flag(56, sT0) + ["s_branch Lepoch_b"]
    e(rest)
    e(f"s_or_b32 s{sT0}, s2, s{sW}\ns_cbranch_scc0 Lepoch\nLepoch_b:")
    if opt.exp == 4:
        e(f"s_getpc_b64 s[{sT2}:{sT3}]\ns_lshl_b32 s{sT0}, s{sW}, 13\nv_add_u32 v60, s{sT0}, v{v16}\nv_add_u32 v61, 4096, v60")
        for n in range(8): e(f"global_load_dwordx4 {vr(vDummy,4)}, v{60+(n>>2)}, s[{sT2}:{sT3}] offset:{1024*(n&3)}")
    e(Wt(vm=["KV0a", "KV0b", "KV1a"], lg="all"))
    e("s_barrier")
    def kvaddr(T, frag):
        a = KB[(T >> 3) % 4] + (T & 7) * 4096 + frag * 1024
        return (vKlo, a) if a < 65536 else (vKhi, a - 65536)
    def rdKV(dst, T, frag, tag):
        r, o = kvaddr(T, frag); return LG(f"ds_read_b128 {vr(dst,4)}, v{r} offset:{o}", tag)
    def maxtree(dst, s, first):
        L = []
        if first:
            L.append(f"v_max3_f32 v{dst}, v{s}, v{s+1}, v{s+2}")
            L += [f"v_max3_f32 v{dst}, v{dst}, v{s+i}, v{s+i+1}" for i in range(3, 15, 2)]
            L.append(f"v_max_f32 v{dst}, v{dst}, v{s+15}")
        else:
            L += [f"v_max3_f32 v{dst}, v{dst}, v{s+i}, v{s+i+1}" for i in range(0, 16, 2)]
        return L
    def tabload(dst, sreg, n, tag):
        return [VM(f"buffer_load_dwordx4 {dst(m)}, v{v16}, {sr(TBL,4)}, s{sreg+(m>>2)} offen offset:{1024*(m&3)}", tag) for m in range(n)]
    for t in range(2):
        for k in range(2): e(rdKV(K[t] + 4 * k, t, k, f"pk{t}"))
    for k in range(2): e(rdKV(V[0] + 4 * k, 0, 2 + k, "pv"))
    p1 = []
    if not opt.nofft:
        e(f"s_mov_b32 m0, s{sMisc}\ns_nop 0")
        for n in range(4):
            p1 += [[VM(f"buffer_load_dwordx4 v{vP1}, {sr(XA,4)}, s{sF1} offen offset:{1024*n} {opt.d1_sc} lds", "d1")] +
                   ([f"s_add_u32 s{sF1}, s{sF1}, {512*1024-1024}"] if n < 3 else []), []]
    else: e("s_nop 1")
    nx = lambda: p1.pop(0) if p1 else []
    cv = [f"v_cvt_pk_bf16_f32 v{Q[0]+i}, v{2*i}, v{2*i+1}" for i in range(16)]
    def qk0(t, qb, k, s):
        return f"v_mfma_f32_32x32x16_bf16 {vr(s,16)}, {vr(K[t]+4*k,4)}, {vr(Q[qb]+4*k,4)}, {vr(s,16) if k else 0}"
    tA = maxtree(vT0, S[2], True); tB = maxtree(vT0, S[3], False); tC = maxtree(vT1, S[0], True); tD = maxtree(vT1, S[1], False)
    e(cv[:8] + nx() + [Wt(lg="pk0", must=True), qk0(0, 0, 0, S[2])] + cv[8:12] + nx() + [qk0(0, 0, 1, S[2])] + cv[12:] + nx())
    e([Wt(lg="pk1"), qk0(1, 0, 0, S[3])] + nx() + [qk0(1, 0, 1, S[3])] + nx() + [qk0(0, 1, 0, S[0])] + nx() + ["s_nop 3"] + tA[:2])
    e([qk0(0, 1, 1, S[0])] + tA[2:] + [qk0(1, 1, 0, S[1])] + ["s_nop 0"] + nx() + tB[:4] + [qk0(1, 1, 1, S[1])] + tB[4:] + tC + tD)
    def finish_max(off, mid):
        lit = hex(f2u(-off)) if off else 0
        e(f"""
        v_mov_b32 v{vT2}, v{vT0}
        v_mov_b32 v{vT3}, v{vT1}
        s_nop 0
        v_permlane32_swap_b32 v{vT0}, v{vT2}
        v_permlane32_swap_b32 v{vT1}, v{vT3}
        v_max_f32 v{vT0}, v{vT0}, v{vT2}
        v_max_f32 v{vT1}, v{vT1}, v{vT3}
        v_sub_f32 v{M[0]}, {lit}, v{vT0}
        v_sub_f32 v{M[0]+1}, {lit}, v{vT0}
        """)
        for i in range(2, 16, 2): e(f"v_mov_b64 {vr(M[0]+i,2)}, {vr(M[0],2)}")
        e(f"v_sub_f32 v{M[1]}, {lit}, v{vT1}\nv_sub_f32 v{M[1]+1}, {lit}, v{vT1}")
        e(mid)
        for i in range(2, 16, 2): e(f"v_mov_b64 {vr(M[1]+i,2)}, {vr(M[1],2)}")
    finish_max(opt.off, [f"v_mfma_f32_32x32x16_bf16 {vr(S[0],16)}, {vr(K[0],4)}, {vr(Q[0],4)}, {vr(M[0],16)}",
                         f"v_mfma_f32_32x32x16_bf16 {vr(S[0],16)}, {vr(K[0]+4,4)}, {vr(Q[0]+4,4)}, {vr(S[0],16)}"])
    e("s_nop 3")
    g.stamp("attn start"); g.stamp("attn start", True)
    sl = {k: {} for k in ("q1", "q2", "p1", "p2", "x", "va", "top")}
    def put(kind, n, l): sl[kind].setdefault(n, []).extend(l if isinstance(l, list) else [l])
    def put_group(grp, n0, kind="p1"):
        pre, ops, post = grp
        put("q2", n0, pre)
        for i, op in enumerate(ops): put(kind, n0 + i, op)
        n1 = n0 + len(ops) - 1
        for i, x in enumerate(post): put("p2" if i == 0 else "q1", n1 + i, x)
        return n0 + len(ops)
    def fftdata(srd, voff, sreg, step, n0, tag):
        put("q2", n0, f"s_mov_b32 m0, s{sMisc}")
        for n in range(4):
            put("p1", n0 + n, VM(f"buffer_load_dwordx4 v{voff}, {sr(srd,4)}, s{sreg} offen offset:{1024*n} sc1 lds", tag))
            if n < 3: put("q1", n0 + n + 1, f"s_add_u32 s{sreg}, s{sreg}, {step}")
    def comp(n0, aT, sst, dtag, ttag, stag):
        put("q2", n0, Wt(vm=dtag)); put("q1", n0 + 4, Wt(vm=ttag))
        for k in range(4):
            for ee in range(2):
                put("p2", n0 + k, LG(f"ds_read_b64_tr_b16 {ar(aD+4*k+2*ee,2)}, v{vFB+(k>>1)} offset:{(k&1)*2048+ee*512}", f"{stag}r{k}"))
        for i in range(8):
            k, nb = i >> 1, i & 1; d = vr(vFD + 16 * nb, 16)
            put("q2", n0 + 4 + i, Wt(lg=f"{stag}r{k}"))
            put("x", n0 + 4 + i, f"v_mfma_f32_32x32x16_bf16 {d}, {ar(aD+4*k,4)}, {ar(aT+16*nb+4*k,4)}, {'0' if k==0 else d}")
        for q in range(4):
            nb, i = q >> 1, q & 1
            for m_ in range(4 * i, 4 * i + 4):
                put("va", n0 + 13 + q, f"v_cvt_pk_bf16_f32 v{vFD+16*nb+m_}, v{vFD+16*nb+2*m_}, v{vFD+16*nb+2*m_+1}")
            put("p1", n0 + 14 + q, VM(f"buffer_store_dwordx4 {vr(vFD+16*nb+4*i,4)}, v{v16}, {sr(WS,4)}, s{sst} offen offset:{1024*q} sc1", stag))
    def putflag(n, sfl, stag):
        put("q2", n, Wt(vm=stag)); put("va", n, f"v_mov_b32 v{vT0}, s{sTAG}")
        put("p2", n, VM(f"buffer_store_dword v{vT0}, v{vOne}, {sr(WS,4)}, s{sfl} offen sc1"))
    def putpoll(n, nchk, spo, tag):
        ld = f"buffer_load_dword v{vPoll}, v{vP4}, {sr(WS,4)}, s{spo} offen sc1"
        put("p2", n, VM(ld, tag))
        put("q1", nchk, Wt(vm=tag)); put("top2" if False else "q2", nchk, g.check(1, vPoll, ld))
    early = {(1, 1): 0, (2, 0): 4}
    t1slot = "p2" if (1, 1) in halves else "p1"
    n = 8
    for hv in halves:
        if hv in early: put_group(dmaKV(*hv), early[hv])
        else: n = put_group(dmaKV(*hv), n)
    assert n == 20
    for (ch, hf), n in {(4, 0): 20, (4, 1): 30, (5, 0): 34, (5, 1): 38, (6, 0): 48, (6, 1): 52, (7, 0): 64, (7, 1): 68}.items():
        put_group(dmaKV(ch, hf), n)
    put("q1", 70, [f"s_mov_b32 s{GW}, s22"]); put("q1", 71, [f"s_and_b32 s{GW+1}, s23, 0xffff"])
    for c, n in ((2, 84), (3, 88), (0, 92), (1, 96), (4, 100), (5, 120), (6, 124)):
        pre, ops, _ = dmaWo(c, ASL[c])
        put("q1", n, pre[1]); put_group(([pre[0]], ops, []), n)
    if not opt.nofft:
        e(f"s_mov_b32 s{sT0}, {TB.OFF_T1}\ns_mov_b32 s{sT1}, {TB.OFF_T1+4096}")
        for m, op in enumerate(tabload(lambda m: ar(aT1 + 4 * m, 4), sT0, 8, "t1")): put(t1slot, m + (1 if t1slot == "p2" else 0), op)
        comp(12, aT1, sSt1, "d1", "t1", "s1")
        putflag(37, sFl1, "s1")
        put("q1", 22, f"s_mov_b32 s{sT0}, s{sTab2}"); put("q1", 23, f"s_add_u32 s{sT1}, s{sTab2}, 4096")
        for m, op in enumerate(tabload(lambda m: ar(aT2 + 4 * m, 4), sT0, 8, "t2")): put("p1", 24 + m if m < 2 else 40 + m, op)
        putpoll(51, 55, sPo1, "po1")
        fftdata(WS, vZ, sF2, 32768 - 1024, 56, "d2")
        put("q1", 53, f"s_mov_b32 s{sT0}, {TB.OFF_T3}"); put("q1", 54, f"s_mov_b32 s{sT1}, {TB.OFF_T3+4096}")
        for m, op in enumerate(tabload(lambda m: ar(aT3 + 4 * m, 4), sT0, 6, "t3")): put("p1", 60 + m if m < 4 else 68 + m, op)
        put("q1", 61, f"s_mov_b32 s{sT2}, {TB.OFF_TX}")
        put("p1", 74, tabload(lambda m: ar(aTX, 4), sT2, 1, "t3"))
        comp(66, aT2, sSt2, "d2", "t2", "s2")
        putflag(91, sFl2, "s2")
        put("q1", 74, f"s_mov_b32 s{sT0}, {TB.OFF_TW}"); put("q1", 75, f"s_mov_b32 s{sT1}, {TB.OFF_TW+4096}")
        for m, op in enumerate(tabload(lambda m: ar(aTW + 4 * m, 4), sT0, 8, "t3")): put("p1", 75 + m if m < 5 else 105 + m, op)
        putpoll(104, 115, sPo2, "po2")
        fftdata(WS, vZ, sF3, 32768 - 1024, 116, "d3")
    for k in ("p1",):
        for n_, l in sl[k].items(): assert len(l) <= 1, (k, n_, l)
    for n in range(128):
        X = n & 1; Y = 1 - X
        se, sp, sq = S[n % 4], S[(n - 1) % 4], S[(n + 1) % 4]
        tq = ((n + 1) // 2) % 2; tv = ((n - 1) // 2) % 2
        E = [f"v_exp_f32 v{se+i}, v{se+i}" for i in range(16)]
        Q1 = f"v_mfma_f32_32x32x16_bf16 {vr(sq,16)}, {vr(K[tq],4)}, {vr(Q[Y],4)}, {vr(M[Y],16)}"
        Q2 = f"v_mfma_f32_32x32x16_bf16 {vr(sq,16)}, {vr(K[tq]+4,4)}, {vr(Q[Y]+4,4)}, {vr(sq,16)}"
        P1 = f"v_smfmac_f32_32x32x32_bf16 {vr(O[Y],16)}, {vr(V[tv],4)}, {vr(sp,8)}, v{IDX}"
        P2 = f"v_smfmac_f32_32x32x32_bf16 {vr(O[Y],16)}, {vr(V[tv]+4,4)}, {vr(sp+8,8)}, v{IDX}"
        L1 = f"v_smfmac_f32_16x16x64_bf16 {vr(Lr[Y],4)}, {vr(ONES,4)}, {vr(sp,8)}, v{IDX}"
        L2 = f"v_smfmac_f32_16x16x64_bf16 {vr(Lr[Y],4)}, {vr(ONES,4)}, {vr(sp+8,8)}, v{IDX}"
        if n == 0: P1 = P2 = L1 = L2 = None
        if n == 127: Q1 = Q2 = None
        T = n >> 1
        if X == 0: D = [rdKV(K[tq] + 4 * k, T + 2, k, f"h{n}") for k in range(2)] if T + 2 < 64 else [None, None]
        else: D = [rdKV(V[1 - tv] + 4 * k, T + 1, 2 + k, f"h{n}") for k in range(2)] if T + 1 < 64 else [None, None]
        if n % 16 == 0 and n:
            c = n >> 4
            e(Wt(vm=[f"KV{c}b", f"KV{c+1}a"] + ([f"oW{k}" for k in range(5)] if c == 7 else []))); e("s_barrier")
        if opt.afine and n % 8 == 0 and n: g.stamp(f"a{n}")
        w = Wt(lg=[f"h{n-2}", "pv"])
        gq = lambda k: sl[k].get(n, [])
        xm = gq("x")
        if xm: a, b, c_, d_ = 8, 9, 12, 13
        else: a, b, c_, d_ = 9, 11, 14, 16
        e([Q1, w] + gq("q1") + E[0:3] + [Q2] + gq("q2") + E[3:6] + [P1] + gq("p1") + E[6:a] + [L1, D[0]] + E[a:b] + gq("va") +
          [P2] + gq("p2") + E[b:c_] + [L2, D[1]] + E[c_:d_] + xm + E[d_:16])
    e(sl["q1"].get(128, []))
    e(f"""
    v_rcp_f32 v{vT0}, v{Lr[0]}
    v_smfmac_f32_16x16x64_bf16 {vr(Lr[1],4)}, {vr(ONES,4)}, {vr(S[3],8)}, v{IDX}
    v_smfmac_f32_16x16x64_bf16 {vr(Lr[1],4)}, {vr(ONES,4)}, {vr(S[3]+8,8)}, v{IDX}
    v_smfmac_f32_32x32x32_bf16 {vr(O[1],16)}, {vr(V[1],4)}, {vr(S[3],8)}, v{IDX}
    v_smfmac_f32_32x32x32_bf16 {vr(O[1],16)}, {vr(V[1]+4,4)}, {vr(S[3]+8,8)}, v{IDX}
    s_mov_b32 s{sMode}, 0
    """.replace(f"v_rcp_f32 v{vT0}, v{Lr[0]}\n", "s_nop 0\n"))
    g.stamp("attn end"); g.stamp("attn end", True)
    e("s_nop 2\nLa_norm:")
    for qb in range(2):
        e(f"v_rcp_f32 v{2*qb}, v{Lr[qb]}\ns_nop 0\nv_mov_b32 v{2*qb+1}, v{2*qb}")
        for i in range(8): e(f"v_pk_mul_f32 {vr(O[qb]+2*i,2)}, {vr(O[qb]+2*i,2)}, {vr(2*qb,2)}")
        for i in range(8): e(f"v_cvt_pk_bf16_f32 v{8+8*qb+i}, v{O[qb]+2*i}, v{O[qb]+2*i+1}")
        for k in range(2):
            e(VM(f"buffer_store_dwordx4 {vr(8+8*qb+4*k,4)}, v{v16}, {sr(WS,4)}, s{sOst} offen offset:{2048*qb+1024*k} sc1", "ost"))
    e(f"v_maximum3_f32 v4, v{Lr[0]}, v{Lr[1]}, abs(v{O[0]})")
    for i in range(1, 31, 2): e(f"v_maximum3_f32 v4, v4, abs(v{O[0]+i}), abs(v{O[0]+i+1})")
    e(f"""
    v_maximum3_f32 v4, v4, abs(v{O[0]+31}), v4
    s_mov_b32 s{sT0}, {hex(f2u(2.0**110))}
    v_cmp_nlt_f32 vcc, v4, s{sT0}
    """)
    if opt.force_fb: e("s_nop 1\ns_mov_b64 vcc, -1")
    e(f"""
    s_cmp_eq_u64 vcc, 0
    s_cselect_b32 s{sT0}, 1, s{sMode}
    s_cmp_eq_u32 s{sT0}, 0
    s_cbranch_scc1 Lfb
    """)
    g.stamp("o stored")
    pA = 32; pR = 48; pI = 64; pU = 80; pT = 96; pF = 104; pM = 112; pX = 120; pW = 128
    vAs = 5; vBm = 164; vPO = 7
    p3st = [f"buffer_store_dwordx4 {vr(pF,4)}, v{pX+1}, {sr(OUT,4)}, s{sF1} offen {opt.p3_sc}",
            f"buffer_store_dwordx4 {vr(pF+4,4)}, v{pX+1}, {sr(OUT,4)}, s{sF1} offen offset:512 {opt.p3_sc}",
            f"buffer_store_dwordx4 {vr(pM,4)}, v{pX+2}, {sr(OUT,4)}, s{sF2} offen offset:512 {opt.p3_sc}",
            f"buffer_store_dwordx4 {vr(pM+4,4)}, v{pX+2}, {sr(OUT,4)}, s{sF2} offen {opt.p3_sc}"]
    zero_im = [f"v_mov_b64 {vr(pA+8+i,2)}, 0" for i in range(0, 8, 2)]
    def p3(main):
        L = []; a = L.append
        T = (lambda t, tag: LG(t, tag)) if main else (lambda t, tag: t)
        for k in range(4):
            for ee in range(2):
                a(T(f"ds_read_b64_tr_b16 {vr(pA+4*k+2*ee,2)}, v{vFB+(k>>1)} offset:{(k&1)*2048+ee*512}", f"b{k}"))
        stage = []; stage2 = []; wl = []
        if main:
            L += [f"s_sub_u32 s{sF2}, 2048, s{sRow}", f"s_and_b32 s{sF2}, s{sF2}, 2047", f"s_lshl_b32 s{sF2}, s{sF2}, 12",
                  f"s_lshl_b32 s{sF1}, s{sRow}, 12", f"v_add_u32 v{vAs}, 131072, v{vA}", f"s_cmp_eq_u32 s{sRow}, 0", "s_cbranch_scc1 Lp3_real", "Lp3_mm:"]
            for c in range(7):
                r, o = (vAs, 0) if ASL[c] >= 98304 else (vA + ASL[c] // 49152, ASL[c] % 49152)
                for t in range(4):
                    for ee in range(2):
                        stage.append(LG(f"ds_read_b64_tr_b16 {ar(aW(c)+4*t+2*ee,2)}, v{r} offset:{o+(t>>1)*8192+(t&1)*2048+ee*1024}", "stg" if c < 5 else "stg2"))
            stage2 = stage[40:]; stage = stage[:40]
            for c in opt.win: wl += burst(dmaWo(c, WSL[c] * 16384))
        else: L += ["s_waitcnt lgkmcnt(0)"] + zero_im + ["s_nop 1"]
        acc = [f"v_accvgpr_read_b32 v{pW+i}, a{aTW+i}" for i in range(32)] + [f"v_accvgpr_read_b32 v{pX+i}, a{aTX+i}" for i in range(3)] if main else []
        for k in range(4):
            if main: a(Wt(lg=f"b{k}"))
            for nb in range(2):
                d = vr((pR, pI)[nb], 16)
                tb = aT3 + (4 * k if nb == 0 else (16 + 4 * k if k < 2 else 4 * (k - 2)))
                a(f"v_mfma_f32_32x32x16_bf16 {d}, {vr(pA+4*k,4)}, {ar(tb,4)}, {'0' if k==0 else d}")
                for _ in range(5):
                    if stage: a(stage.pop(0))
                for _ in range(3):
                    if acc: a(acc.pop(0))
        if main:
            L += acc + g.stampl("beta") + [Wt(vm="ost", lg="stg"), "s_barrier", f"s_cmp_lg_u32 s{sW}, 1", "s_cbranch_scc1 Lnoofl"] + g.flag(0, sFlO) + ["Lnoofl:"] + g.stampl("oflag")
        else: a("s_nop 11")
        for i in range(8):
            r, im, c, s_ = pR + 2 * i, pI + 2 * i, pW + 2 * i, pW + 16 + 2 * i
            L += stage2[2 * i:2 * i + 2] + (take_vm(wl) if i % 2 else []) + [
                f"v_pk_mul_f32 {vr(pT,2)}, {vr(r,2)}, {vr(c,2)}", f"v_pk_mul_f32 {vr(pT+2,2)}, {vr(im,2)}, {vr(c,2)}",
                f"v_pk_fma_f32 {vr(pT,2)}, {vr(im,2)}, {vr(s_,2)}, {vr(pT,2)}",
                f"v_pk_fma_f32 {vr(pT+2,2)}, {vr(r,2)}, {vr(s_,2)}, {vr(pT+2,2)} neg_lo:[0,1,0] neg_hi:[0,1,0]",
                f"v_cvt_pk_bf16_f32 v{pU+i}, v{pT}, v{pT+1}", f"v_cvt_pk_bf16_f32 v{pU+8+i}, v{pT+2}, v{pT+3}"]
        a("s_nop 0")
        for k in range(4):
            a(f"v_mfma_f32_32x32x16_bf16 {vr(pR,16)}, {vr(pU+4*k,4)}, {ar(aT3+4*k,4)}, {'0' if k==0 else vr(pR,16)}")
            L += take_vm(wl)
        if main:
            L += [f"s_lshl_b32 s{sT2}, s{sRB}, 6", f"s_add_u32 s{sT2}, s{sT2}, s{sW}", f"s_lshl_b32 s{sT2}, s{sT2}, 11",
                  f"s_add_u32 s{sT2}, s{sT2}, {WS_O}", f"s_sub_u32 s{sXb}, s{sXb}, {L_X-L_XO}", f"v_add_u32 v{vOX}, s{sT2}, v{v16}",
                  f"v_add_u32 v{vB}, {L_XO}, v{v16}", f"v_add_u32 v{vB+1}, {L_XO+1024}, v{v16}",
                  f"v_add_u32 v{vBm}, {L_MISC}, v{v16}", f"v_add_u32 v{vBm+1}, {L_MISC+1024}, v{v16}", f"v_add_u32 v{vBm+2}, s{sMisc}, v{v16}",
                  f"v_and_b32 v{vPO}, 7, v{vL}", f"v_lshl_or_b32 v{vPO}, v{vPO}, 2, 1", f"v_lshlrev_b32 v{vPO}, {opt.fsp}, v{vPO}"]
        else: a("s_nop 11")
        a(T(f"ds_bpermute_b32 v{pR+16}, v{pX}, v{pR}", "bp"))
        for m_ in range(8):
            a(f"v_cvt_pk_bf16_f32 v{pF+m_}, v{pR+2*m_}, v{pR+2*m_+1}")
            if m_ % 4 == 3: L += take_vm(wl)
        for m_ in range(1, 8): a(f"v_cvt_pk_bf16_f32 v{pM+m_}, v{pR+16-2*m_}, v{pR+15-2*m_}")
        L += take_vm(wl)
        for i in range(4): a(f"v_permlane16_swap_b32 v{pF+i}, v{pF+4+i}")
        L += [Wt(lg="bp") if main else "s_waitcnt lgkmcnt(0)", f"v_cvt_pk_bf16_f32 v{pM}, v{pR+16}, v{pR+15}", "s_nop 1"]
        for i in range(4): a(f"v_permlane16_swap_b32 v{pM+i}, v{pM+4+i}")
        return L + wl
    e(Wt(vm=["d3", "t3"]))
    e(p3(True))
    g.tail += ["Lp3_real:", "s_waitcnt lgkmcnt(0)"] + zero_im + [f"v_xor_b32 v{vFB}, 16, v{vFB}", "s_branch Lp3_mm"]
    g.tail += ["Lp3_again:"] + p3st + [f"s_mov_b32 s{sF1}, {1024<<12}", f"s_mov_b32 s{sF2}, {1024<<12}"] + p3(False) + ["s_branch Lp3_end"]
    e(f"s_cmp_eq_u32 s{sRow}, 0\ns_cbranch_scc1 Lp3_again\nLp3_end:")
    for n in range(4): e(LG(f"ds_write_b128 v{vBm+2}, {vr(8+4*n,4)} offset:{1024*n}", "own"))
    g.stamp("p3 done")
    opoll = f"buffer_load_dword v{vPoll}, v{vPO}, {sr(WS,4)}, s{sPoO} offen sc1"
    e([f"s_cmp_lg_u32 s{sW}, 3", "s_cbranch_scc1 Lnopoll", opoll, "s_waitcnt vmcnt(0)"] + g.check(1, vPoll, opoll) + ["Lnopoll:", Wt(lg=["own", "stg2"]), "s_barrier"])
    g.stamp("o flags")
    lead = []
    for c in range(2, 10): lead += burst(dmaXo(c))
    e(take_vm(lead, 2))
    og = {-1: take_vm(lead, opt.xpre)}
    for c in range(7, 12):
        if c not in opt.win: lead += burst(dmaWo(c, WSL[c] * 16384))
    i = 0
    while lead: og[i] = take_vm(lead); i += 1
    xfree = i
    if opt.fine:
        for i, nm in ((13, "o c2"), (45, "o c5"), (85, "o c10")): og.setdefault(i, []).extend(g.stampl(nm))
    epi = f"""
    v_and_b32 v56, 31, v{vL}
    v_lshrrev_b32 v57, 5, v{vL}
    v_bfe_u32 v58, v{vL}, 1, 2
    v_lshlrev_b32 v57, 1, v57
    v_xor_b32 v57, v57, v58
    v_lshlrev_b32 v57, 4, v57
    v_lshl_or_b32 v56, v56, 6, v57
    v_add_u32 v56, s{sWb}, v56
    v_xor_b32 v57, 16, v56
    v_lshrrev_b32 v58, 2, v{vL}
    v_bfe_u32 v59, v{vL}, 3, 2
    v_and_b32 v60, 3, v{vL}
    v_xor_b32 v59, v59, v60
    v_lshlrev_b32 v59, 4, v59
    v_lshl_or_b32 v59, v58, 6, v59
    v_add_u32 v59, s{sWb}, v59
    v_lshlrev_b32 v60, 4, v60
    v_lshl_or_b32 v58, v58, 12, v60
    s_lshl_b32 s{sT0}, s{sRB}, 18
    s_lshl2_add_u32 s{sT1}, s{sG}, s{sW}
    s_lshl_b32 s{sT1}, s{sT1}, 6
    s_add_u32 s{sT0}, s{sT0}, s{sT1}
    s_add_u32 s{sT0}, s{sT0}, 2048
    s_add_u32 s{sT1}, s{sT0}, 0x10000
    s_add_u32 s{sT2}, s{sT0}, 0x20000
    s_add_u32 s{sT3}, s{sT0}, 0x30000
    """.strip().split("\n")
    for n, x in enumerate(epi): og.setdefault(40 + n, []).append(x.strip())
    for n, x in enumerate(p3st): og.setdefault(opt.dpos + 4 * n, []).append(VM(x))
    grp = {}
    for c in range(3, 9): grp.setdefault(max(c, (xfree + 3) // 8), []).append(dmaXo(c + 7))
    for c in range(8, 12): grp.setdefault(c, []).append(dmaWo(c + 4, WSL[c + 4] * 16384))
    rest = gemm(g, "o", lambda c: ("a", aW(c)) if c < 7 else (vA + WSL[c] // 3, (WSL[c] % 3) * 16384),
                lambda c: (vBm, c * 8192) if c < 2 else (vB, ((c - 2) % 8) * 8192),
                {c: [f"oX{c}"] + ([f"oW{c}"] if c > 6 else []) for c in range(2, 16)}, grp, og)
    assert not rest
    g.stamp("out gemm done")
    e("s_nop 9")
    for qb in range(2):
        for i in range(8): e(f"v_cvt_pk_bf16_f32 v{64+8*qb+i}, v{16*qb+2*i}, v{16*qb+2*i+1}")
        for i in range(2): e(LG(f"ds_write_b128 v{56+i}, {vr(64+8*qb+4*i,4)} offset:{2048*qb}", f"ew{qb}"))
    for n in range(4):
        if n % 2 == 0: e(Wt(lg=f"ew{n>>1}"))
        e(LG(f"ds_read_b128 {vr(80+4*n,4)}, v59 offset:{1024*n}", f"er{n}"))
    for n in range(4):
        e(Wt(lg=f"er{n}"))
        e(f"buffer_store_dwordx4 {vr(80+4*n,4)}, v58, {sr(OUT,4)}, s{sT0+n} offen {opt.out_sc}")
    if opt.stamps:
        e("s_waitcnt vmcnt(0)")
        g.stamp("end")
    if opt.echo:
        e("s_waitcnt vmcnt(0)")
        g.stamp("fin")
        e("""
        s_memrealtime s[6:7]
        s_waitcnt lgkmcnt(0)
        s_lshl_b32 s9, s9, 2
        s_add_u32 s9, s9, s6
        Lecho:
        s_sleep 2
        s_memrealtime s[6:7]
        s_waitcnt lgkmcnt(0)
        s_sub_u32 s10, s6, s9
        s_cmp_lt_i32 s10, 0
        s_cbranch_scc1 Lecho
        """)
    e("Lend:\ns_endpgm")
    e(g.tail)
    e(f"""
    Lfb:
    s_mov_b32 s{sMode}, 1
    v_mov_b32 v{vT0}, 0xff800000
    v_mov_b32 v{vT1}, 0xff800000
    s_mov_b32 s{sC}, 0
    Lfb1:
    buffer_load_dwordx4 {vr(K[0],4)}, v{v16}, {sr(WS,4)}, s{sC} offen sc1
    buffer_load_dwordx4 {vr(K[0]+4,4)}, v{v16}, {sr(WS,4)}, s{sC} offen offset:1024 sc1
    s_waitcnt vmcnt(0)
    """)
    for qb in range(2):
        e(f"v_mfma_f32_32x32x16_bf16 {vr(S[qb],16)}, {vr(K[0],4)}, {vr(Q[qb],4)}, 0")
        e(f"v_mfma_f32_32x32x16_bf16 {vr(S[qb],16)}, {vr(K[0]+4,4)}, {vr(Q[qb]+4,4)}, {vr(S[qb],16)}")
    e("s_nop 15")
    e(maxtree(vT0, S[0], False) + maxtree(vT1, S[1], False))
    e(f"s_add_u32 s{sC}, s{sC}, 4096\ns_cmp_lt_u32 s{sC}, 0x40000\ns_cbranch_scc1 Lfb1")
    finish_max(0.0, [])
    for i in range(O[0], Lr[1] + 4, 2): e(f"v_mov_b64 {vr(i,2)}, 0")
    e(f"s_mov_b32 s{sC}, 0\nLfb2:")
    for k in range(2):
        e(f"buffer_load_dwordx4 {vr(K[0]+4*k,4)}, v{v16}, {sr(WS,4)}, s{sC} offen offset:{1024*k} sc1")
        e(f"buffer_load_dwordx4 {vr(V[0]+4*k,4)}, v{v16}, {sr(WS,4)}, s{sC} offen offset:{2048+1024*k} sc1")
    e("s_waitcnt vmcnt(0)")
    for qb in range(2):
        e(f"v_mfma_f32_32x32x16_bf16 {vr(S[qb],16)}, {vr(K[0],4)}, {vr(Q[qb],4)}, {vr(M[qb],16)}")
        e(f"v_mfma_f32_32x32x16_bf16 {vr(S[qb],16)}, {vr(K[0]+4,4)}, {vr(Q[qb]+4,4)}, {vr(S[qb],16)}")
    e("s_nop 15")
    for i in range(32): e(f"v_exp_f32 v{i}, v{i}")
    e("s_nop 1")
    for qb in range(2):
        for u in range(2):
            e(f"v_smfmac_f32_32x32x32_bf16 {vr(O[qb],16)}, {vr(V[0]+4*u,4)}, {vr(S[qb]+8*u,8)}, v{IDX}")
            e(f"v_smfmac_f32_16x16x64_bf16 {vr(Lr[qb],4)}, {vr(ONES,4)}, {vr(S[qb]+8*u,8)}, v{IDX}")
    e(f"""
    s_add_u32 s{sC}, s{sC}, 4096
    s_cmp_lt_u32 s{sC}, 0x40000
    s_cbranch_scc1 Lfb2
    s_nop 15
    s_branch La_norm
    Lcode_end:
    """)
    txt = g.text()
    a = txt.index("Lkv_done:"); b = txt.index("Lkvflag_b:")
    nld = sum(1 for l in txt[a:b] if l.startswith(" buffer_load"))
    txt[txt.index(" KVFLAGWAIT")] = f" s_waitcnt vmcnt({nld})"
    return txt

def table_text():
    b = TB.blob(); L = []
    for i in range(0, len(b), 128):
        ch = b[i:i + 128]
        L.append(".octa " + ",".join("0x%x" % int.from_bytes(ch[j:j + 16], "little") for j in range(0, 128, 16)))
    return "\n".join(L)

def build(opt):
    ref = open(f"cdna_kernels/{NAME}.s.ref").read().split("\n")
    head = [l for l in ref if l.startswith(";") and "@launch" not in l]
    s = "\n".join(head) + "\n; @launch grid=(256,1,1) block=(256,1,1) lds=163840\n"
    s += f""".amdgcn_target "amdgcn-amd-amdhsa--gfx950"
.text
.globl {NAME}_kernel
.p2align 8
.type {NAME}_kernel,@function
"""
    s += "\n".join(gen(opt)) + "\n"
    s += f""".fill {2048 if opt.exp==4 else 256}, 4, 0xbf800000
s_endpgm
.section .rodata,"a"
.p2align 6
.amdhsa_kernel {NAME}_kernel
  .amdhsa_next_free_vgpr 512
  .amdhsa_next_free_sgpr 102
  .amdhsa_accum_offset 256
  .amdhsa_group_segment_fixed_size 0
  .amdhsa_kernarg_size 104
  .amdhsa_user_sgpr_count 2
  .amdhsa_user_sgpr_kernarg_segment_ptr 1
  .amdhsa_system_sgpr_workgroup_id_x 1
.end_amdhsa_kernel
.p2align 8
fn_tables:
"""
    s += table_text() + "\n"
    return s

if __name__ == "__main__":
    opt = Opt()
    out = f"cdna_kernels/{NAME}.s"
    for a in sys.argv[1:]:
        if a.startswith("-o"): out = a[2:]
        else:
            k, v = a.split("=")
            cur = getattr(opt, k)
            setattr(opt, k, type(cur)(int(v)) if isinstance(cur, (bool, int)) else type(cur)(v))
    s = build(opt)
    open(out, "w").write(s)
    if opt.stamps: open(out + ".names", "w").write("\n".join(opt.names))
    print(out, len(s), "bytes")
```

```python
import sys, struct
import tables as TB

NAME = "concat_heads__spectral_fnet__grouped_kv_mqa__prompt"

class Opt:
    stamps = False
    dbg = False
    codepf = True
    spin = 1 << 20
    out_sc = "nt"
    force_fb = False
    off = 100.0
    dsp = 4
    ofine = False
    pnop = 0
    xurg = 4
    pace = 2
    slack = 24
    walk = 0
    wpos = 0
    pf2 = 0
    nobar = ''
    wf = 4
    lead = 5
    nkv = 5
    fgap = 3
    rot = '4821'
    nt = ''
    ntf = 'nt'
    dpos = 104
    xpre = 2
    nwin = 3
    w0n = 0
    poll1 = True
    wgflag = True
    defer = True
    fsp = 2
    slp = 1
    pre1 = 2
    echo = ''
    warm = False
    p3_sc = 'nt'
    d1_sc = ''
    ppos = 21
    afine = False
    exp = 0
    xsc = ''
    fine = False
    mapA = True
    kvb = 11
    nofft = False
    oflag = 0

def f2u(x): return struct.unpack("<I", struct.pack("<f", x))[0]
def vr(b, n): return f"v[{b}:{b+n-1}]"
def ar(b, n): return f"a[{b}:{b+n-1}]"
def sr(b, n): return f"s[{b}:{b+n-1}]"

WS_FL = 0x40000
FL_EPOCH = WS_FL
FL_KV = WS_FL + 0x1000
FL_Z1 = WS_FL + 0x2000
FL_Z2 = WS_FL + 0x3000
FL_O = WS_FL + 0x8000
WS_O = 0x100000
WS_Z1 = 0x800000
WS_Z2 = 0xC00000
WS_ST = 0x1000000
L_X = 96 * 1024; L_MISC = 144 * 1024
KB = [65536, 0, 32768, 98304]
sW, sX, sJ, sRB, sG, sC0 = 30, 31, 32, 33, 34, 35
GX, GW, WS, OUT, XA, TBL, KW = 36, 40, 44, 48, 52, 56, 60
sTAG, sOffW, sTX, sWb, sXb = 64, 65, 66, 67, 68
sRB2, sG2, sC2 = 69, 70, 71
sKV, sKV2, sMisc = 72, 73, 74
sF1, sSt1, sFl1, sPo1, sTab2, sF2, sSt2, sFl2, sPo2, sF3, sRow = 75, 76, 77, 78, 79, 86, 87, 88, 89, 90, 91
sT0, sT1, sT2, sT3, sT4, sT5 = 80, 81, 82, 83, 84, 85
sOst, sOst2, sFlO, sPoO, sOffW2, sFlKV, sCB, sMode, sSpin, sTb = 92, 93, 94, 95, 96, 97, 98, 99, 100, 101
sC = 16
sLow = 69; sOwn = [70, 71]
sIdx = [4, 5, 14, 15, 18, 19, 20, 21, 24, 25, 28, 29, 35, 17]
def idx(c): return sOwn[c] if c < 2 else sIdx[c - 2]
ASL = {2: 65536, 3: 81920, 0: 131072, 1: 0, 4: 16384, 5: 32768, 6: 49152}
def aW(c): return 16 * c if c < 5 else 148 + 16 * (c - 5)
L_XO = 80 * 1024
WSL = {7: 0, 8: 1, 9: 4, 10: 2, 11: 3, 12: 0, 13: 1, 14: 4, 15: 2}
S = [0, 16, 32, 48]; O = [64, 80]; Lr = [96, 100]; M = [104, 120]; Q = [136, 144]; K = [152, 160]; V = [168, 176]
ONES = 184; IDX = 188; vKlo = 230; vKhi = 189
vFD = 196
vFB = 228
v16 = 230; vP1 = 231; vZ = 232; vA = 233; vB = 235; vOW = 238; vOX = 242
vA2 = 190; vPoll = 244; vP4 = 245; vOne = 237
vDummy = 246
vL = 250; vT0 = 251; vT1 = 252; vT2 = 253; vT3 = 254; vT4 = 255
aD, aT1, aT2, aT3, aTX, aTW = 0, 16, 48, 80, 112, 116

NT = {'w': '', 'x': '', 'o': ''}
class I:
    def __init__(s, t, kind=None, tag=None): s.t, s.kind, s.tag = t, kind, tag
class Wt:
    def __init__(s, vm=None, lg=None, must=False): s.vm, s.lg, s.must = vm, lg, must
def VM(t, tag=None): return I(t, "vm", tag)
def LG(t, tag=None): return I(t, "lg", tag)

class G:
    def __init__(self, opt):
        self.o = []; self.opt = opt; self.nst = 0; self.uid = 0; self.tail = []
    def e(self, s):
        if isinstance(s, (list, tuple)):
            for x in s: self.e(x)
        elif isinstance(s, (I, Wt)): self.o.append(s)
        elif s:
            for l in s.strip("\n").split("\n"):
                l = l.strip()
                if l: self.o.append(I(l))
    def lab(self, p):
        self.uid += 1; return f"{p}_{self.uid}"
    def text(self):
        out = []; vq = []; lq = []; seen = set(); waited = set()
        alltags = {x.tag for x in self.o if isinstance(x, I) and x.kind}
        def cnt(q, tags, mx):
            tags = tags if isinstance(tags, (list, tuple)) else [tags]
            for t in tags:
                assert t in seen or t not in alltags, ("wait before issue", t)
                waited.add(t)
            idx = max([i for i, t in enumerate(q) if t in tags], default=-1)
            if idx < 0: return None
            n = min(len(q) - 1 - idx, mx)
            del q[:len(q) - n]
            return n
        for x in self.o:
            if isinstance(x, Wt):
                p = []
                if x.vm is not None:
                    if x.vm == "all": p.append("vmcnt(0)"); vq.clear()
                    else:
                        n = cnt(vq, x.vm, 63)
                        if n is not None: p.append(f"vmcnt({n})")
                if x.lg is not None:
                    if x.lg == "all": p.append("lgkmcnt(0)"); lq.clear()
                    else:
                        n = cnt(lq, x.lg, 15)
                        if n is not None: p.append(f"lgkmcnt({n})")
                if p: out.append(" s_waitcnt " + " ".join(p))
                elif x.must: out.append(" s_nop 0")
            else:
                if x.kind:
                    assert x.tag is None or x.tag not in waited, ("issue after wait", x.tag)
                    seen.add(x.tag)
                if x.kind == "vm": vq.append(x.tag)
                if x.kind == "lg": lq.append(x.tag)
                out.append(x.t if x.t.endswith(":") else " " + x.t)
        return out
    def stamp(self, name, cyc=False):
        if self.opt.echo.startswith("cyc:") and not cyc:
            a, b = self.opt.echo[4:].split("-")
            if name == a: self.e("s_memtime s[6:7]\ns_waitcnt lgkmcnt(0)\ns_mov_b32 s3, s6")
            if name == b: self.e("s_memtime s[6:7]\ns_waitcnt lgkmcnt(0)\ns_sub_u32 s9, s6, s3\ns_lshr_b32 s9, s9, 3")
        if self.opt.echo == name and not cyc:
            self.e("s_memrealtime s[6:7]\ns_waitcnt lgkmcnt(0)\ns_sub_u32 s9, s6, s3")
        if not self.opt.stamps or cyc: return
        k = self.nst; self.nst += 1
        self.opt.names.append(("CYC " if cyc else "") + name)
        if self.opt.dbg:
            lb = self.lab("Lnost")
            self.e(f"""
            s_cmp_lg_u32 s9, 0
            s_cbranch_scc1 {lb}
            s_memrealtime s[6:7]
            s_waitcnt lgkmcnt(0)
            v_mov_b32 v195, s6
            s_mov_b64 exec, 1
            buffer_atomic_umax v195, off, s[12:15], 0 offset:{4*k}
            s_mov_b64 exec, -1
            {lb}:
            """)
            return
        self.e(f"""
        s_memrealtime s[6:7]
        s_memtime s[12:13]
        s_waitcnt lgkmcnt(0)
        v_mov_b32 v194, s6
        v_mov_b32 v195, s12
        buffer_store_dwordx2 v[194:195], off, {sr(WS,4)}, s8 offset:{8*k}
        """)
    def stampl(self, name):
        if name in ("beta", "oflag") and not self.opt.fine: return []
        save = self.o; self.o = []; self.stamp(name); r = self.o; self.o = save; return r
    def pad(self):
        if not self.opt.walk: return []
        self.npad = getattr(self, "npad", 0) + 1
        return [f"Lpad{self.npad-1}:", f"s_cbranch_execz PADNEXT{self.npad-1}"]
    def srd(self, d, lo, size):
        return [f"s_mov_b32 s{d}, s{lo}", f"s_and_b32 s{d+1}, s{lo+1}, 0xffff", f"s_mov_b32 s{d+2}, {size}", f"s_mov_b32 s{d+3}, 0x20000"]
    def flag(self, tmp, soff):
        return [f"v_mov_b32 v{tmp}, s{sTAG}", f"buffer_store_dword v{tmp}, v{vOne}, {sr(WS,4)}, s{soff} offen sc1"]
    def check(self, nreg, reg, load):
        lr = self.lab("Lretry"); lb = self.lab("Lback")
        cmp = [f"v_cmp_ne_u32 vcc, s{sTAG}, v{reg}"]
        for i in range(1, nreg):
            cmp += [f"v_cmp_ne_u32 s[10:11], s{sTAG}, v{reg+i}", "s_or_b64 vcc, vcc, s[10:11]"]
        self.tail += [f"{lr}:", f"s_mov_b32 s{sSpin}, {self.opt.spin}", f"{lr}_l:", f"s_sleep {self.opt.slp}", load, "s_waitcnt vmcnt(0)"] + cmp + [
            "s_cmp_eq_u64 vcc, 0", f"s_cbranch_scc1 {lb}", f"s_sub_u32 s{sSpin}, s{sSpin}, 1", f"s_cbranch_scc0 {lr}_l",
            f"v_mov_b32 v{vDummy}, {self.uid}", f"v_mov_b32 v{vDummy+1}, 0",
            f"global_store_dword v{vDummy+1}, v{vDummy}, s[26:27] offset:60", f"s_branch {lb}"]
        return cmp + ["s_cmp_eq_u64 vcc, 0", f"s_cbranch_scc0 {lr}", f"{lb}:"]

def dmaW(c, soff=sOffW, p=""):
    pre = [f"s_add_u32 m0, s{sWb}, {(c%6)*16384}"]
    ops = [VM(f"buffer_load_dwordx4 v{vOW+n}, {sr(GW,4)}, s{soff} offen offset:{1024*n} {NT['w']} lds", f"{p}W{c}") for n in range(4)]
    post = [f"s_add_u32 s{soff}, s{soff}, 0x20000", f"s_and_b32 s{soff}, s{soff}, 0x1fffff"]
    return pre, ops, post
def dmaX(c, step, mask, adv=1, p=""):
    pre = [f"s_add_u32 m0, s{sXb}, {(c%6)*8192}"]
    ops = [VM(f"buffer_load_dwordx4 v{vOX+n}, {sr(GX,4)}, s{sTX} offen offset:{1024*n} {NT['x']} lds", f"{p}X{c}") for n in range(2)]
    post = [f"s_add_u32 s{sTX}, s{sTX}, {(adv*step)&mask}", f"s_and_b32 s{sTX}, s{sTX}, {mask}"]
    return pre, ops, post
def burst(p):
    pre, ops, post = p
    return pre + ["s_nop 0"] + ops + post
def dmaKV(ch, hf):
    so = sKV2 if hf else sKV
    pre = [f"s_add_u32 m0, s{sWb}, {KB[ch%4]+16384*hf}"]
    ops = [VM(f"buffer_load_dwordx4 v{v16}, {sr(WS,4)}, s{so} offen offset:{1024*n} sc1 lds", f"KV{ch}{'ab'[hf]}") for n in range(4)]
    post = [f"s_add_u32 s{so}, s{so}, 32768", f"s_and_b32 s{so}, s{so}, 0x3ffff"]
    return pre, ops, post

FS = [32, 196, 152]
def gemm(g, pfx, srcA, srcB, waits, groups, gaps):
    e = g.e
    def rd(t):
        c, u = t >> 1, t & 1; f = FS[t % 3]; r, o = srcA(c); rb, ob, nb = srcB(c)
        A = [None] * 4 if r == "a" else [LG(f"ds_read_b64_tr_b16 {vr(f+4*m+2*ee,2)}, v{r[m]} offset:{o+u*8192+ee*1024}", f"{pfx}r{t}") for m in range(2) for ee in range(2)]
        B = [LG(f"ds_read_b128 {vr(f+8+4*n,4)}, v{rb} offset:{ob+u*4096+nb[n]}", f"{pfx}r{t}") for n in range(4)]
        return [x for p in zip(B, A) for x in p]
    extra = {i: list(v) for i, v in gaps.items()}
    if waits.get(0): e(Wt(vm=waits[0])); e("s_barrier")
    for t in range(2): e(rd(t))
    e(extra.pop(-1, []))
    def put(i, l): extra.setdefault(i, []).extend(l)
    i = 0
    for c in range(16):
        i = max(i, 8 * c)
        for pre, ops, post in groups.get(c, []):
            put(i, pre)
            for op in ops:
                i += 1; put(i, [op])
            put(i, post)
    for t in range(32):
        c, u = t >> 1, t & 1; f = FS[t % 3]; r, o = srcA(c)
        nxt = rd(t + 2) if t + 2 < 32 else [None] * 8
        e(Wt(lg=f"{pfx}r{t}"))
        for j in range(8):
            m, n = j & 1, j >> 1
            a = ar(o + 8 * u + 4 * m, 4) if r == "a" else vr(f + 4 * m, 4)
            e(f"v_mfma_f32_16x16x32_bf16 {vr(4*j,4)}, {a}, {vr(f+8+4*n,4)}, {'0' if t == 0 else vr(4*j,4)}")
            if j == 0 and u == 0:
                if waits.get(c + 1): e(Wt(vm=waits[c + 1]))
                if waits.get(c + 1) or groups.get(c): e("s_barrier")
            e(nxt[j])
            if j & 1: e(extra.pop(4 * t + n, []))
    rest = []
    for i in sorted(extra): rest += extra[i]
    return rest
def dmaWo(c, lds):
    pre = [f"s_add_u32 m0, s{sWb}, {lds}", f"s_lshl4_add_u32 s{sOffW}, s{idx(c)}, s{sLow}"]
    ops = [VM(f"buffer_load_dwordx4 v{vOW+n}, {sr(GW,4)}, s{sOffW} offen offset:{1024*n} {NT['o']} lds", f"oW{c}") for n in range(4)]
    return pre, ops, []
def dmaXo(c):
    pre = [f"s_add_u32 m0, s{sXb}, {((c-2)%8)*8192}"]
    ops = [VM(f"buffer_load_dwordx4 v{vOX}, {sr(WS,4)}, s{idx(c)} offen offset:{1024*n} sc1 lds", f"oX{c}") for n in range(2)]
    return pre, ops, []

def gen(opt):
    g = G(opt); e = g.e
    opt.names = []
    opt.nob = [int(x) for x in opt.nobar]
    for k in opt.nt: NT[k] = opt.ntf
    opt.win = [7, 8, 9][:opt.nwin]
    e(f"{NAME}_kernel:")
    if opt.stamps or opt.echo: e("s_memrealtime s[60:61]")
    e(f"""
    s_cmp_ge_u32 s2, 256
    s_cbranch_scc1 Lend
    s_load_dwordx16 s[4:19], s[0:1], 0
    s_load_dwordx8 s[20:27], s[0:1], 64
    s_load_dwordx2 s[28:29], s[0:1], 96
    v_lshrrev_b32 v1, 6, v0
    v_and_b32 v{vL}, 63, v0
    v_readfirstlane_b32 s{sW}, v1
    v_lshlrev_b32 v{v16}, 4, v{vL}
    s_and_b32 s{sX}, s2, 7
    s_lshr_b32 s{sJ}, s2, 3
    """)
    if opt.codepf:
        e(f"""
        s_lshl_b32 s{sT0}, s{sJ}, 2
        s_add_u32 s{sT0}, s{sT0}, s{sW}
        s_lshl_b32 s{sT0}, s{sT0}, 10
        s_cmp_ge_u32 s{sT0}, Lcode_end-Lpc1
        s_cbranch_scc1 Lnopf
        s_getpc_b64 s[{sT2}:{sT3}]
        Lpc1:
        v_add_u32 v13, s{sT0}, v{v16}
        global_load_dwordx4 {vr(vDummy,4)}, v13, s[{sT2}:{sT3}]
        Lnopf:
        """)
    e(f"s_lshl2_add_u32 s{sCB}, s{sX}, s{sW}")
    if opt.mapA:
        e(f"""
        s_and_b32 s{sT0}, s{sJ}, 7
        s_lshr_b32 s{sT1}, s{sX}, 1
        s_lshl3_add_u32 s{sRB}, s{sT1}, s{sT0}
        s_lshr_b32 s{sT1}, s{sJ}, 3
        s_and_b32 s{sT2}, s{sX}, 1
        s_lshl2_add_u32 s{sG}, s{sT2}, s{sT1}
        s_lshl1_add_u32 s{sT0}, s{sT1}, s{sT0}
        s_lshl_b32 s{sT0}, s{sT0}, 1
        s_and_b32 s{sC0}, s{sT0}, 15
        """)
    if opt.rot:
        a, b, c, d = [int(x, 16) for x in opt.rot]
        e(f"""
        s_lshr_b32 s{sT0}, s{sX}, 1
        s_mul_i32 s{sC0}, s{sT0}, {a}
        s_and_b32 s{sT0}, s{sX}, 1
        s_mul_i32 s{sT0}, s{sT0}, {b}
        s_add_u32 s{sC0}, s{sC0}, s{sT0}
        s_lshr_b32 s{sT0}, s{sJ}, 3
        s_mul_i32 s{sT0}, s{sT0}, {c}
        s_add_u32 s{sC0}, s{sC0}, s{sT0}
        s_and_b32 s{sT0}, s{sJ}, 7
        s_mul_i32 s{sT0}, s{sT0}, {d}
        s_lshr_b32 s{sT0}, s{sT0}, 1
        s_add_u32 s{sC0}, s{sC0}, s{sT0}
        s_and_b32 s{sC0}, s{sC0}, 15
        """)
    e(f"""
    v_lshrrev_b32 v1, 5, v{vL}
    v_lshrrev_b32 v2, 4, v{vL}
    v_and_b32 v7, 31, v{vL}
    v_and_b32 v9, 15, v{vL}
    v_xor_b32 v8, v7, v1
    v_lshlrev_b32 v8, 4, v8
    v_lshl_or_b32 v128, v1, 11, v8
    """)
    for n in range(1, 8):
        e(f"v_xor_b32 v{128+n}, {32*n}, v128\nv_add_u32 v{128+n}, {n*4096-1024*(n&3)}, v{128+n}")
    e(f"""
    s_lshl_b32 s{sT2}, s{sW}, 13
    s_add_u32 s{sT2}, s{sT2}, {112*1024}
    s_mov_b32 s{sT3}, {48*1024}
    s_cmp_eq_u32 s{sW}, 1
    s_cselect_b32 s{sT3}, {144*1024}, s{sT3}
    s_cmp_eq_u32 s{sW}, 2
    s_cselect_b32 s{sT3}, {80*1024}, s{sT3}
    s_cmp_eq_u32 s{sW}, 3
    s_cselect_b32 s{sT3}, {64*1024}, s{sT3}
    s_lshr_b32 s{sT0}, s{sG}, 1
    s_lshl2_add_u32 s{sT0}, s{sRB}, s{sT0}
    s_lshl_b32 s{sT4}, s{sT0}, 15
    s_lshl_b32 s{sT0}, s{sW}, 9
    s_add_u32 s{sT4}, s{sT4}, s{sT0}
    s_lshl_b32 s{sT5}, s{sW}, 14
    """)
    e(f"""
    v_lshlrev_b32 v10, 2, v2
    v_xor_b32 v10, v10, v9
    v_lshlrev_b32 v10, 4, v10
    v_lshl_or_b32 v{vOW}, v2, 11, v10
    v_add_u32 v{vOW+1}, 7168, v{vOW}
    v_xor_b32 v10, 32, v{vOW}
    v_add_u32 v{vOW+2}, 14336, v10
    v_add_u32 v{vOW+3}, 21504, v10
    """)
    e(f"""
    s_lshl_b32 s{sWb}, s{sW}, 12
    s_lshl_b32 s{sXb}, s{sW}, 11
    s_add_u32 s{sXb}, s{sXb}, {L_X}
    s_lshl2_add_u32 s{sT0}, s{sC0}, s{sW}
    s_lshl_b32 s{sT0}, s{sT0}, 7
    s_add_u32 s{sT0}, s{sT0}, s{sG}
    s_lshl_b32 s{sOffW}, s{sT0}, 8
    s_lshl_b32 s{sTX}, s{sC0}, 7
    """)
    e(f"""
    s_and_b32 s{sTb}, s{sJ}, 7
    s_lshr_b32 s{sT0}, s{sJ}, 4
    s_lshl3_add_u32 s{sTb}, s{sT0}, s{sTb}
    s_lshl_b32 s{sTb}, s{sTb}, 10
    """)
    e("s_waitcnt lgkmcnt(0)")
    if opt.stamps or opt.echo: e("s_mov_b32 s3, s60")
    e([f"s_bitcmp1_b32 s{sG}, 0", f"s_cselect_b32 s{KW}, s20, s18", f"s_cselect_b32 s{KW+1}, s21, s19",
       f"s_and_b32 s{KW+1}, s{KW+1}, 0xffff", f"s_mov_b32 s{KW+2}, 65536", f"s_mov_b32 s{KW+3}, 0x20000"])
    def kvw1():
        return [f"s_add_u32 m0, s{sT3}, s{sTb}", f"s_add_u32 s{sOst2}, s{sT5}, s{sTb}",
                VM(f"buffer_load_dwordx4 v{v16}, {sr(KW,4)}, s{sOst2} offen lds", "kv"),
                f"s_add_u32 s{sTb}, s{sTb}, 1024", f"s_and_b32 s{sTb}, s{sTb}, 0x3fff"]
    e(kvw1())
    e(g.srd(GX, 14, 4194304))
    for _ in range(opt.wf - 1): e(kvw1())
    kvx = [VM(f"buffer_load_dwordx4 v{128+n}, {sr(GX,4)}, s{sT4} offen offset:{1024*(n&3)} {NT['x']} lds", "kv") for n in range(8)]
    fill = [g.srd(GW, 16, 2097152), g.srd(WS, 28, 0x10000000) + [f"s_mov_b32 s{sMode}, {FL_EPOCH}"]]
    fill.append(f"""
    v_bfe_u32 v3, v{vL}, 2, 2
    v_and_b32 v4, 1, v{vL}
    v_bfe_u32 v5, v{vL}, 1, 1
    v_and_b32 v6, 1, v2
    v_lshlrev_b32 v{vP4}, 2, v7
    v_lshrrev_b32 v11, 3, v{vL}
    """)
    fill.append(f"""
    s_and_b32 s{sT0}, s{sW}, 1
    s_lshl1_add_u32 s{sT0}, s{sRB}, s{sT0}
    s_lshl_b32 s{sT0}, s{sT0}, 16
    s_lshr_b32 s{sT1}, s{sW}, 1
    s_lshl_b32 s{sT1}, s{sT1}, 6
    s_add_u32 s{sT0}, s{sT0}, s{sT1}
    v_lshrrev_b32 v12, 2, v{vL}
    v_and_b32 v13, 3, v{vL}
    v_sub_u32 v14, 0, v2
    v_xor_b32 v14, v13, v14
    v_and_b32 v14, 3, v14
    v_lshlrev_b32 v14, 4, v14
    v_lshl_or_b32 v14, v12, 11, v14
    v_add_u32 v{vOX}, s{sT0}, v14
    v_add_u32 v{vOX+1}, {32768-1024}, v{vOX}
    """)
    fill.append(f"""
    v_xor_b32 v13, v2, v9
    v_lshlrev_b32 v13, 4, v13
    v_lshl_or_b32 v13, v9, 9, v13
    v_add_u32 v136, s{sT2}, v13
    v_xor_b32 v14, 64, v13
    v_add_u32 v137, s{sT2}, v14
    v_xor_b32 v14, 128, v13
    v_add_u32 v138, s{sT2}, v14
    v_xor_b32 v14, 192, v13
    v_add_u32 v139, s{sT2}, v14
    """)
    fill.append(f"""
    v_lshl_add_u32 v13, v2, 3, v3
    v_lshlrev_b32 v13, 6, v13
    v_add_u32 v13, s{sT3}, v13
    v_and_b32 v14, 3, v{vL}
    v_lshlrev_b32 v14, 4, v14
    v_lshlrev_b32 v15, 5, v4
    v_lshl_or_b32 v15, v5, 3, v15
    s_bitcmp1_b32 s{sG}, 0
    s_cselect_b64 vcc, -1, 0
    s_cselect_b32 s{sT1}, 16, 8
    v_cndmask_b32 v14, v14, v15, vcc
    v_add_u32 v140, v13, v14
    v_add_u32 v141, s{sT1}, v140
    """)
    fill.append(f"""
    v_lshl_add_u32 v14, v6, 5, v9
    v_lshlrev_b32 v14, 4, v14
    v_lshl_or_b32 v14, v1, 10, v14
    v_cndmask_b32 v142, v14, v{v16}, vcc
    v_add_u32 v{vKhi}, 65536, v{v16}
    v_min_u32 v{vOne}, 1, v{vL}
    v_lshlrev_b32 v{vOne}, 28, v{vOne}
    """)
    fill.append(f"""
    v_lshl_add_u32 v13, v2, 3, v3
    v_xor_b32 v14, s{sW}, v3
    v_lshl_add_u32 v14, v14, 1, v6
    v_lshl_add_u32 v14, v14, 1, v5
    v_lshl_add_u32 v14, v14, 1, v4
    v_lshlrev_b32 v14, 3, v14
    v_lshl_or_b32 v{vA}, v13, 8, v14
    v_add_u32 v{vA+1}, 49152, v{vA}
    v_xor_b32 v{vA2}, 32, v{vA}
    v_xor_b32 v{vA2+1}, 32, v{vA+1}
    """)
    fill.append(f"""
    v_sub_u32 v13, 0, v3
    v_xor_b32 v13, v13, v2
    v_and_b32 v13, 3, v13
    v_lshlrev_b32 v13, 4, v13
    v_lshl_or_b32 v13, v9, 6, v13
    v_add_u32 v{vB}, {L_X}, v13
    """)
    fill.append(f"""
    v_lshl_add_u32 v13, v1, 3, v3
    v_lshl_add_u32 v14, v6, 1, v4
    v_lshrrev_b32 v15, 1, v3
    v_lshl_add_u32 v14, v14, 1, v15
    v_lshl_add_u32 v14, v14, 1, v5
    v_lshlrev_b32 v14, 3, v14
    v_lshl_or_b32 v13, v13, 7, v14
    s_add_u32 s{sMisc}, s{sWb}, {L_MISC}
    v_add_u32 v{vFB}, s{sMisc}, v13
    v_xor_b32 v{vFB+1}, 16, v{vFB}
    """)
    fill.append(f"""
    v_xor_b32 v13, v4, v6
    v_bfe_u32 v14, v{vL}, 1, 2
    v_lshlrev_b32 v15, 4, v14
    v_lshl_or_b32 v15, v11, 16, v15
    v_lshl_or_b32 v{vP1}, v13, 21, v15
    v_lshlrev_b32 v15, 9, v14
    v_lshl_or_b32 v15, v11, 12, v15
    v_lshl_or_b32 v{vZ}, v13, 4, v15
    """)
    fill.append(g.srd(OUT, 24, 8388608) + g.srd(XA, 4, 4194304))
    fill.append(f"""
    s_getpc_b64 s[{TBL}:{TBL+1}]
    s_add_u32 s{TBL}, s{TBL}, fn_tables@rel32@lo+4
    s_addc_u32 s{TBL+1}, s{TBL+1}, fn_tables@rel32@hi+12
    s_and_b32 s{TBL+1}, s{TBL+1}, 0xffff
    s_mov_b32 s{TBL+2}, {TB.TBL_SIZE}
    s_mov_b32 s{TBL+3}, 0x20000
    """)
    fill.append(f"""
    s_lshl3_add_u32 s{sFlKV}, s{sRB}, s{sG}
    s_lshl_b32 s{sFlKV}, s{sFlKV}, 2
    s_add_u32 s{sFlKV}, s{sFlKV}, {FL_KV}
    s_lshl_b32 s{sKV}, s{sX}, 15
    s_add_u32 s{sKV}, s{sKV}, s{sWb}
    s_add_u32 s{sKV2}, s{sKV}, 16384
    s_lshl_b32 s{sF1}, s{sJ}, 5
    s_add_u32 s{sF1}, s{sF1}, s{sCB}
    s_lshl_b32 s{sFl2}, s{sF1}, 2
    s_add_u32 s{sFl2}, s{sFl2}, {FL_Z2}
    s_lshl_b32 s{sSt2}, s{sF1}, 12
    s_add_u32 s{sSt2}, s{sSt2}, {WS_Z2}
    s_lshl_b32 s{sF1}, s{sF1}, 6
    """)
    fill.append(f"""
    s_lshl_b32 s{sSt1}, s{sCB}, 5
    s_add_u32 s{sSt1}, s{sSt1}, s{sJ}
    s_lshl_b32 s{sFl1}, s{sSt1}, 2
    s_add_u32 s{sFl1}, s{sFl1}, {FL_Z1}
    s_lshl_b32 s{sSt1}, s{sSt1}, 12
    s_add_u32 s{sSt1}, s{sSt1}, {WS_Z1}
    s_lshl_b32 s{sPo1}, s{sCB}, 7
    s_add_u32 s{sPo1}, s{sPo1}, {FL_Z1}
    s_lshl_b32 s{sPo2}, s{sJ}, 7
    s_add_u32 s{sPo2}, s{sPo2}, {FL_Z2}
    s_lshl_b32 s{sTab2}, s{sJ}, 13
    s_add_u32 s{sTab2}, s{sTab2}, {TB.OFF_T2}
    """)
    def zoff(dst, hi, lo, base):
        return f"""
        s_lshl_b32 s{dst}, s{hi}, 17
        s_lshr_b32 s{sT1}, s{lo}, 4
        s_lshl_b32 s{sT1}, s{sT1}, 11
        s_add_u32 s{dst}, s{dst}, s{sT1}
        s_and_b32 s{sT1}, s{lo}, 15
        s_lshl_b32 s{sT1}, s{sT1}, 5
        s_add_u32 s{dst}, s{dst}, s{sT1}
        s_add_u32 s{dst}, s{dst}, {base}
        """
    fill.append(zoff(sF2, sCB, sJ, WS_Z1))
    fill.append(zoff(sF3, sJ, sCB, WS_Z2))
    fill.append(f"""
    s_lshl_b32 s{sT1}, s{sCB}, 6
    s_add_u32 s{sRow}, s{sT1}, s{sJ}
    s_sub_u32 s{sOst}, s{sT1}, {1024-32}
    s_cmp_lt_u32 s{sCB}, 16
    s_cselect_b32 s{sT1}, s{sT1}, s{sOst}
    s_cmp_eq_u32 s{sJ}, 0
    s_cselect_b32 s{sRow}, s{sT1}, s{sRow}
    s_lshl2_add_u32 s{sT1}, s{sG}, s{sW}
    s_lshl_b32 s{sOst}, s{sRB}, 5
    s_add_u32 s{sOst}, s{sOst}, s{sT1}
    s_lshl_b32 s{sFlO}, s{sOst}, {opt.fsp}
    s_add_u32 s{sFlO}, s{sFlO}, {FL_O}
    s_lshl_b32 s{sOst}, s{sOst}, 12
    s_add_u32 s{sOst}, s{sOst}, {WS_O}
    """)
    fill.append(f"""
    s_lshl_b32 s{sPoO}, s{sRB}, {5+opt.fsp}
    s_add_u32 s{sPoO}, s{sPoO}, {FL_O}
    s_lshl_b32 s{sLow}, s{sW}, 7
    s_add_u32 s{sLow}, s{sLow}, s{sG}
    s_lshl_b32 s{sLow}, s{sLow}, 8
    s_lshl_b32 s{sOwn[0]}, s{sG}, 14
    s_add_u32 s{sOwn[1]}, s{sOwn[0]}, 8192
    s_and_b32 s{sT0}, s{sJ}, 7
    s_lshl_b32 s{sT0}, s{sT0}, 1
    s_cmp_eq_u32 s{sT0}, 14
    s_cselect_b32 s{sT0}, 0, s{sT0}
    s_lshl1_add_u32 s{sT1}, s{sG}, 2
    """)
    for c0 in range(0, 14, 4):
        L = []
        for c in range(c0, min(c0 + 4, 14)):
            L += [f"s_add_u32 s{sIdx[c]}, s{sT0}, s{sT1}", f"s_and_b32 s{sIdx[c]}, s{sIdx[c]}, 15", f"s_lshl_b32 s{sIdx[c]}, s{sIdx[c]}, 13",
                  f"s_add_u32 s{sT0}, s{sT0}, 1", f"s_cmp_eq_u32 s{sT0}, 14", f"s_cselect_b32 s{sT0}, 0, s{sT0}"]
        fill.append(L)
    XS, XM = 128, 2047
    def take_vm(lst, n=1):
        out = []
        while lst and n:
            x = lst.pop(0); out.append(x)
            if isinstance(x, I) and x.kind == "vm": n -= 1
        return out
    for n in range(8):
        if n % 4 == 0: e(f"s_add_u32 m0, s{sT2}, {1024*n}\ns_nop 0")
        e(kvx[n]); e(fill.pop(0))
    w0 = dmaW(0)
    e(w0[0] + ["s_nop 0"])
    for n in range(opt.w0n): e(w0[1][n]); e(fill.pop(0))
    e(VM(f"buffer_load_dword v143, off, {sr(WS,4)}, s{sMode} sc1", "kv"))
    for n in range(16 - opt.wf):
        if opt.walk and n == opt.wpos:
            while len(fill) > 23 - 9: e(fill.pop(0))
            e(["s_mov_b64 exec, 0"] + sum([[f"s_cmp_eq_u32 s{sW}, {w}", f"s_cbranch_scc1 Lpad{w}"] for w in range(3)], []) + ["s_branch Lpad3", "Lwalk_ret:", "s_mov_b64 exec, -1"])
        e(kvw1())
        if fill: e(fill.pop(0))
    print("fillers left", len(fill), file=sys.stderr) if fill else None
    while fill: e(fill.pop(0))
    if opt.fine: e("s_memrealtime s[10:11]")
    later = w0[0] + ["s_nop 0"] + w0[1][opt.w0n:] + w0[2] + burst(dmaX(0, XS, XM)) + burst(dmaW(1)) + burst(dmaX(1, XS, XM)) + burst(dmaW(2))
    e(take_vm(later, opt.pre1))
    if opt.stamps:
        e(f"s_lshl2_add_u32 s8, s2, s{sW}\ns_lshl_b32 s8, s8, 8\ns_add_u32 s8, s8, {WS_ST}")
        opt.names.append("entry"); g.nst += 1
        if opt.dbg:
            e(g.srd(12, 26, 256))
            e(f"""
            s_or_b32 s9, s{sW}, s{sJ}
            s_cmp_lg_u32 s9, 0
            s_cbranch_scc1 Lnost0
            v_not_b32 v195, s3
            s_mov_b64 exec, 1
            buffer_atomic_umax v195, off, s[12:15], 0
            s_mov_b64 exec, -1
            Lnost0:
            """)
        else:
            e(f"v_mov_b32 v195, s3\nbuffer_store_dword v195, off, {sr(WS,4)}, s8")
            if opt.fine:
                opt.names.append("kv issued"); g.nst += 1
                e(f"s_waitcnt lgkmcnt(0)\nv_mov_b32 v195, s10\nbuffer_store_dword v195, off, {sr(WS,4)}, s8 offset:8")
    e(Wt(vm="kv"))
    g.stamp("kv landed")
    for ks in range(8):
        e(LG(f"ds_read_b128 {vr(4*ks,4)}, v{136+(ks&3)} offset:{256*(ks>>2)}", f"k{ks}"))
        for b in range(2):
            for ee in range(2):
                e(LG(f"ds_read_b64_tr_b16 {vr(64+8*ks+4*b+2*ee,2)}, v{140+b} offset:{2048*ks+256*ee}", f"k{ks}"))
        if ks == 0: e(f"v_readfirstlane_b32 s{sTAG}, v143")
        if ks == 1: e(f"s_mul_i32 s{sTAG}, s{sTAG}, 0x9e3779b1\ns_add_u32 s{sTAG}, s{sTAG}, 0x7f4a7c15")
        e(take_vm(later))
    e(Wt(lg="k4"))
    e(f"s_bitcmp1_b32 s{sG}, 0\ns_cbranch_scc1 Lkv_v")
    mid = [take_vm(later) for _ in range(4)]
    for var in range(2):
        if var == 1: e("Lkv_v:")
        for ks in range(8):
            if ks == 5: e("s_waitcnt lgkmcnt(0)")
            for b in range(2):
                w = vr(64 + 8 * ks + 4 * b, 4); x = vr(4 * ks, 4); d = vr(32 + 4 * b, 4)
                c = "0" if ks == 0 else d
                e(f"v_mfma_f32_16x16x32_bf16 {d}, {w}, {x}, {c}" if var == 0 else f"v_mfma_f32_16x16x32_bf16 {d}, {x}, {w}, {c}")
            if ks % 2 == 0: e(mid[ks >> 1] if var == 0 else [x.t if isinstance(x, I) else x for x in mid[ks >> 1]])
        if var == 0: e("s_branch Lkv_j")
    e("Lkv_j:")
    e(Wt(lg="all"))
    e(f"""
    s_cmp_eq_u32 s{sW}, 3
    s_cselect_b32 s{sT1}, s{sT2}, s{sT3}
    v_add_u32 v13, s{sT1}, v{v16}
    """)
    e(later); later = []
    e(f"""
    s_cmp_eq_u32 s{sW}, 0
    s_cbranch_scc1 Lkv_nw
    s_nop 3
    ds_write_b128 v13, v[32:35]
    ds_write_b128 v13, v[36:39] offset:1024
    s_waitcnt lgkmcnt(0)
    Lkv_nw:
    s_barrier
    s_cmp_lg_u32 s{sW}, 0
    s_cbranch_scc1 Lkv_done
    v_add_u32 v13, {80*1024}, v{v16}
    v_add_u32 v14, {136*1024}, v{v16}
    ds_read_b128 v[40:43], v13
    ds_read_b128 v[44:47], v13 offset:1024
    ds_read_b128 v[48:51], v14
    ds_read_b128 v[52:55], v14 offset:1024
    ds_read_b128 v[56:59], v14 offset:8192
    ds_read_b128 v[60:63], v14 offset:9216
    s_lshr_b32 s{sT1}, s{sG}, 2
    s_lshl1_add_u32 s{sT0}, s{sRB}, s{sT1}
    s_lshl_b32 s{sT0}, s{sT0}, 12
    s_bfe_u32 s{sT1}, s{sG}, 0x10001
    s_lshl_b32 s{sT2}, s{sT1}, 8
    s_lshl_b32 s{sT1}, s{sT1}, 10
    s_add_u32 s{sT1}, s{sT1}, 2048
    s_bitcmp1_b32 s{sG}, 0
    s_cselect_b32 s{sT1}, s{sT1}, s{sT2}
    s_cselect_b32 s{sT2}, 1.0, {hex(f2u(1.4426950408889634/32**0.5))}
    s_mov_b32 s{sT3}, s{sT2}
    s_add_u32 s{sT0}, s{sT0}, s{sT1}
    """)
    for p in range(3):
        e(f"s_waitcnt lgkmcnt({4-2*p})")
        for i in range(4):
            e(f"v_pk_add_f32 {vr(32+2*i,2)}, {vr(32+2*i,2)}, {vr(40+8*p+2*i,2)}")
    for i in range(4): e(f"v_pk_mul_f32 {vr(32+2*i,2)}, {vr(32+2*i,2)}, s[{sT2}:{sT3}]")
    for i in range(4): e(f"v_cvt_pk_bf16_f32 v{40+i}, v{32+2*i}, v{33+2*i}")
    e(f"""
    s_bitcmp1_b32 s{sG}, 0
    s_cbranch_scc0 Lkv_st
    v_permlane16_swap_b32 v40, v42
    v_permlane16_swap_b32 v41, v43
    Lkv_st:
    buffer_store_dwordx4 v[40:43], v142, {sr(WS,4)}, s{sT0} offen sc1
    Lkv_done:
    """)
    LD = opt.lead
    pl = [dmaX(2, XS, XM)]
    for c in range(3, LD): pl += [dmaW(c), dmaX(c, XS, XM)]
    lead = []
    for p in pl: lead += burst(p)
    e(take_vm(lead, max(0, 2 + 6 * (LD - 3) - 3)))
    g.stamp("kv done")
    gaps = {-1: lead}
    g.tail += ["Lkvflag:", "KVFLAGWAIT"] + g.flag(56, sFlKV) + ["s_branch Lkvflag_b"]
    gaps.setdefault(opt.fgap, []).extend([f"s_cmp_eq_u32 s{sW}, 0", "s_cbranch_scc1 Lkvflag", "Lkvflag_b:"])
    init = [f"v_mov_b64 {vr(i,2)}, 0" for i in range(O[0], Lr[1] + 4, 2)]
    init += [f"v_mov_b32 v{IDX}, 0xdddddddd", "v_mov_b32 v60, 0x3f803f80", f"v_and_b32 v61, 7, v{vL}", "v_cmp_eq_u32 vcc, 0, v61",
             "v_cmp_eq_u32 s[10:11], 4, v61", "s_nop 1"]
    init += [f"v_cndmask_b32 v{ONES}, 0, v60, vcc", f"v_cndmask_b32 v{ONES+1}, 0, v60, vcc",
             f"v_cndmask_b32 v{ONES+2}, 0, v60, s[10:11]", f"v_cndmask_b32 v{ONES+3}, 0, v60, s[10:11]"]
    for n, x in enumerate(init): gaps.setdefault(18 + n, []).append(x)
    kvpoll = f"buffer_load_dwordx4 v[56:59], v{v16}, {sr(WS,4)}, s{sT5} offen sc1"
    if opt.pf2:
        fill2 = ["s_getpc_b64 s[8:9]", "Lpc2:", "s_and_b32 s9, s9, 0xffff", "s_mov_b32 s10, Lcode_end-Lpc2", "s_mov_b32 s11, 0x20000",
                 f"s_lshl2_add_u32 s12, s{sJ}, s{sW}", "s_lshl_b32 s12, s12, 10",
                 VM(f"buffer_load_dwordx4 {vr(vDummy,4)}, v{v16}, s[8:11], s12 offen")]
        gaps.setdefault(opt.pf2, []).extend(fill2)
    b0 = opt.kvb
    gaps.setdefault(8 * b0 - 4 - opt.ppos, []).extend([f"s_mov_b32 s{sT5}, {FL_KV}", VM(kvpoll, "kvpoll")])
    if opt.fine:
        gaps.setdefault(5, []).extend(g.stampl("q c0"))
        gaps.setdefault(45, []).extend(g.stampl("q c5"))
        gaps.setdefault(8 * b0 - 2, []).extend(g.stampl("q prechk"))
    gaps.setdefault(8 * b0 - 1, []).extend([Wt(vm="kvpoll")] + g.check(4, 56, kvpoll) + (g.stampl("q postchk") if opt.fine else []))
    halves = [(0, 0), (0, 1), (1, 0), (1, 1), (2, 0), (2, 1), (3, 0), (3, 1)]
    ab = {c: [dmaW(c + LD), dmaX(c + LD, XS, XM)] for c in range(16 - LD)}
    for i in range(opt.nkv):
        ab.setdefault(max(b0, 11 + i), []).append(dmaKV(*halves.pop(0)))
    for i in range(opt.walk, 128, 3 * opt.walk) if opt.walk else []: gaps.setdefault(i | 1, []).extend(g.pad())
    def kvaddr(T, frag):
        a = KB[(T >> 3) % 4] + (T & 7) * 4096 + frag * 1024
        return (vKlo, a) if a < 65536 else (vKhi, a - 65536)
    def rdKV(dst, T, frag, tag):
        r, o = kvaddr(T, frag); return LG(f"ds_read_b128 {vr(dst,4)}, v{r} offset:{o}", tag)
    pre_rd = [rdKV(K[t] + 4 * k, t, k, f"pk{t}") for t in range(2) for k in range(2)] + [rdKV(V[0] + 4 * k, 0, 2 + k, "pv") for k in range(2)]
    for i in range(3): gaps.setdefault(121 + i, []).extend(pre_rd[2 * i:2 * i + 2])
    rest = gemm(g, "q", lambda c: ((vA + (c % 6) // 3, vA2 + (c % 6) // 3), (c % 3) * 16384), lambda c: (vB, (c % 6) * 8192, (0, 1024, 2048, 3072)),
                {**{c: [f"W{c}", f"X{c}"] for c in range(16)}, 16: ["KV0a"]}, ab, gaps)
    g.stamp("q gemm done")
    g.tail += ["Lepoch:", f"s_mov_b32 s{sT0}, {FL_EPOCH}"] + g.flag(56, sT0) + ["s_branch Lepoch_b"]
    e(rest)
    e(f"s_or_b32 s{sT0}, s2, s{sW}\ns_cbranch_scc0 Lepoch\nLepoch_b:")
    if opt.exp == 4:
        e(f"s_getpc_b64 s[{sT2}:{sT3}]\ns_lshl_b32 s{sT0}, s{sW}, 13\nv_add_u32 v60, s{sT0}, v{v16}\nv_add_u32 v61, 4096, v60")
        for n in range(8): e(f"global_load_dwordx4 {vr(vDummy,4)}, v{60+(n>>2)}, s[{sT2}:{sT3}] offset:{1024*(n&3)}")
    def maxtree(dst, s, first):
        L = []
        if first:
            L.append(f"v_max3_f32 v{dst}, v{s}, v{s+1}, v{s+2}")
            L += [f"v_max3_f32 v{dst}, v{dst}, v{s+i}, v{s+i+1}" for i in range(3, 15, 2)]
            L.append(f"v_max_f32 v{dst}, v{dst}, v{s+15}")
        else:
            L += [f"v_max3_f32 v{dst}, v{dst}, v{s+i}, v{s+i+1}" for i in range(0, 16, 2)]
        return L
    def tabload(dst, sreg, n, tag):
        return [VM(f"buffer_load_dwordx4 {dst(m)}, v{v16}, {sr(TBL,4)}, s{sreg+(m>>2)} offen offset:{1024*(m&3)}", tag) for m in range(n)]
    p1 = []
    if not opt.nofft:
        e(f"s_mov_b32 m0, s{sMisc}\ns_nop {opt.pnop}")
        for n in range(4):
            p1 += [[VM(f"buffer_load_dwordx4 v{vP1}, {sr(XA,4)}, s{sF1} offen offset:{1024*n} {opt.d1_sc} lds", "d1")] +
                   ([f"s_add_u32 s{sF1}, s{sF1}, {512*1024-1024}"] if n < 3 else []), []]
    else: e("s_nop 7")
    nx = lambda: p1.pop(0) if p1 else []
    def qcv(qb):
        L = []
        for m in range(2):
            for nn in range(2):
                d = 4 * (2 * (2 * qb + nn) + m)
                L += [f"v_cvt_pk_bf16_f32 v{Q[qb]+4*m+2*nn+i}, v{d+2*i}, v{d+2*i+1}" for i in range(2)]
        return L + [f"v_permlane16_swap_b32 v{Q[qb]+4*m+i}, v{Q[qb]+4*m+2+i}" for m in range(2) for i in range(2)]
    c0_, c1_ = qcv(0), qcv(1)
    def qk0(t, qb, k, s):
        return f"v_mfma_f32_32x32x16_bf16 {vr(s,16)}, {vr(K[t]+4*k,4)}, {vr(Q[qb]+4*k,4)}, {vr(s,16) if k else 0}"
    tA = maxtree(vT0, S[2], True); tB = maxtree(vT0, S[3], False); tC = maxtree(vT1, S[0], True); tD = maxtree(vT1, S[1], False)
    e(c0_ + nx() + [Wt(lg="pk0", must=True), "s_nop 0", qk0(0, 0, 0, S[2])] + c1_[:6] + nx() + [qk0(0, 0, 1, S[2])] + c1_[6:] + nx())
    e([Wt(lg="pk1"), qk0(1, 0, 0, S[3])] + nx() + [qk0(1, 0, 1, S[3])] + nx() + [qk0(0, 1, 0, S[0])] + nx() + ["s_nop 3"] + tA[:2])
    e([qk0(0, 1, 1, S[0])] + tA[2:] + [qk0(1, 1, 0, S[1])] + ["s_nop 0"] + nx() + tB[:4] + [qk0(1, 1, 1, S[1])] + tB[4:] + tC + tD)
    def finish_max(off, mid):
        lit = hex(f2u(-off)) if off else 0
        e(f"""
        v_mov_b32 v{vT2}, v{vT0}
        v_mov_b32 v{vT3}, v{vT1}
        s_nop 0
        v_permlane32_swap_b32 v{vT0}, v{vT2}
        v_permlane32_swap_b32 v{vT1}, v{vT3}
        v_max_f32 v{vT0}, v{vT0}, v{vT2}
        v_max_f32 v{vT1}, v{vT1}, v{vT3}
        v_sub_f32 v{M[0]}, {lit}, v{vT0}
        v_sub_f32 v{M[0]+1}, {lit}, v{vT0}
        """)
        for i in range(2, 16, 2): e(f"v_mov_b64 {vr(M[0]+i,2)}, {vr(M[0],2)}")
        e(f"v_sub_f32 v{M[1]}, {lit}, v{vT1}\nv_sub_f32 v{M[1]+1}, {lit}, v{vT1}")
        e(mid)
        for i in range(2, 16, 2): e(f"v_mov_b64 {vr(M[1]+i,2)}, {vr(M[1],2)}")
    finish_max(opt.off, [f"v_mfma_f32_32x32x16_bf16 {vr(S[0],16)}, {vr(K[0],4)}, {vr(Q[0],4)}, {vr(M[0],16)}",
                         f"v_mfma_f32_32x32x16_bf16 {vr(S[0],16)}, {vr(K[0]+4,4)}, {vr(Q[0]+4,4)}, {vr(S[0],16)}"])
    e("s_nop 3")
    e(Wt(vm=["KV0b", "KV1a"])); e("s_barrier")
    g.stamp("attn start"); g.stamp("attn start", True)
    sl = {k: {} for k in ("q1", "q2", "p1", "p2", "x", "va", "top")}
    def put(kind, n, l): sl[kind].setdefault(n, []).extend(l if isinstance(l, list) else [l])
    def put_group(grp, n0, kind="p1"):
        pre, ops, post = grp
        put("q2", n0, pre)
        for i, op in enumerate(ops): put(kind, n0 + i, op)
        n1 = n0 + len(ops) - 1
        for i, x in enumerate(post): put("p2" if i == 0 else "q1", n1 + i, x)
        return n0 + len(ops)
    def fftdata(srd, voff, sreg, step, n0, tag):
        put("q2", n0, f"s_mov_b32 m0, s{sMisc}")
        for n in range(4):
            put("p1", n0 + n, VM(f"buffer_load_dwordx4 v{voff}, {sr(srd,4)}, s{sreg} offen offset:{1024*n} sc1 lds", tag))
            if n < 3: put("q1", n0 + n + 1, f"s_add_u32 s{sreg}, s{sreg}, {step}")
    def comp(n0, aT, sst, dtag, ttag, stag):
        put("q2", n0, Wt(vm=dtag)); put("q1", n0 + 4, Wt(vm=ttag))
        for k in range(4):
            for ee in range(2):
                put("p2", n0 + k, LG(f"ds_read_b64_tr_b16 {ar(aD+4*k+2*ee,2)}, v{vFB+(k>>1)} offset:{(k&1)*2048+ee*512}", f"{stag}r{k}"))
        for i in range(8):
            k, nb = i >> 1, i & 1; d = vr(vFD + 16 * nb, 16)
            put("q2", n0 + 4 + i, Wt(lg=f"{stag}r{k}"))
            put("x", n0 + 4 + i, f"v_mfma_f32_32x32x16_bf16 {d}, {ar(aD+4*k,4)}, {ar(aT+16*nb+4*k,4)}, {'0' if k==0 else d}")
        for q in range(4):
            nb, i = q >> 1, q & 1
            for m_ in range(4 * i, 4 * i + 4):
                put("va", n0 + 13 + q, f"v_cvt_pk_bf16_f32 v{vFD+16*nb+m_}, v{vFD+16*nb+2*m_}, v{vFD+16*nb+2*m_+1}")
            put("p1", n0 + 14 + q, VM(f"buffer_store_dwordx4 {vr(vFD+16*nb+4*i,4)}, v{v16}, {sr(WS,4)}, s{sst} offen offset:{1024*q} sc1", stag))
    def putflag(n, sfl, stag):
        put("q2", n, Wt(vm=stag)); put("va", n, f"v_mov_b32 v{vT0}, s{sTAG}")
        put("p2", n, VM(f"buffer_store_dword v{vT0}, v{vOne}, {sr(WS,4)}, s{sfl} offen sc1"))
    def putpoll(n, nchk, spo, tag):
        ld = f"buffer_load_dword v{vPoll}, v{vP4}, {sr(WS,4)}, s{spo} offen sc1"
        put("p2", n, VM(ld, tag))
        put("q1", nchk, Wt(vm=tag)); put("top2" if False else "q2", nchk, g.check(1, vPoll, ld))
    early = {(1, 1): 0, (2, 0): 4}
    t1slot = "p2" if (1, 1) in halves else "p1"
    n = 8
    for hv in halves:
        if hv in early: put_group(dmaKV(*hv), early[hv])
        else: n = put_group(dmaKV(*hv), n)
    assert n == 20
    for (ch, hf), n in {(4, 0): 20, (4, 1): 30, (5, 0): 34, (5, 1): 38, (6, 0): 48, (6, 1): 52, (7, 0): 64, (7, 1): 68}.items():
        put_group(dmaKV(ch, hf), n)
    put("q1", 70, [f"s_mov_b32 s{GW}, s22"]); put("q1", 71, [f"s_and_b32 s{GW+1}, s23, 0xffff"])
    for c, n in ((2, 84), (3, 88), (0, 92), (1, 96), (4, 100), (5, 120), (6, 124)):
        pre, ops, _ = dmaWo(c, ASL[c])
        put("q1", n, pre[1]); put_group(([pre[0]], ops, []), n)
    if not opt.nofft:
        e(f"s_mov_b32 s{sT0}, {TB.OFF_T1}\ns_mov_b32 s{sT1}, {TB.OFF_T1+4096}")
        for m, op in enumerate(tabload(lambda m: ar(aT1 + 4 * m, 4), sT0, 8, "t1")): put(t1slot, m + (1 if t1slot == "p2" else 0), op)
        comp(12, aT1, sSt1, "d1", "t1", "s1")
        putflag(37, sFl1, "s1")
        put("q1", 22, f"s_mov_b32 s{sT0}, s{sTab2}"); put("q1", 23, f"s_add_u32 s{sT1}, s{sTab2}, 4096")
        for m, op in enumerate(tabload(lambda m: ar(aT2 + 4 * m, 4), sT0, 8, "t2")): put("p1", 24 + m if m < 2 else 40 + m, op)
        putpoll(51, 55, sPo1, "po1")
        fftdata(WS, vZ, sF2, 32768 - 1024, 56, "d2")
        put("q1", 53, f"s_mov_b32 s{sT0}, {TB.OFF_T3}"); put("q1", 54, f"s_mov_b32 s{sT1}, {TB.OFF_T3+4096}")
        for m, op in enumerate(tabload(lambda m: ar(aT3 + 4 * m, 4), sT0, 6, "t3")): put("p1", 60 + m if m < 4 else 68 + m, op)
        put("q1", 61, f"s_mov_b32 s{sT2}, {TB.OFF_TX}")
        put("p1", 74, tabload(lambda m: ar(aTX, 4), sT2, 1, "t3"))
        comp(66, aT2, sSt2, "d2", "t2", "s2")
        putflag(91, sFl2, "s2")
        put("q1", 74, f"s_mov_b32 s{sT0}, {TB.OFF_TW}"); put("q1", 75, f"s_mov_b32 s{sT1}, {TB.OFF_TW+4096}")
        for m, op in enumerate(tabload(lambda m: ar(aTW + 4 * m, 4), sT0, 8, "t3")): put("p1", 75 + m if m < 5 else 105 + m, op)
        putpoll(104, 115, sPo2, "po2")
        fftdata(WS, vZ, sF3, 32768 - 1024, 116, "d3")
    for k in ("p1",):
        for n_, l in sl[k].items(): assert len(l) <= 1, (k, n_, l)
    for n in range(128):
        X = n & 1; Y = 1 - X
        se, sp, sq = S[n % 4], S[(n - 1) % 4], S[(n + 1) % 4]
        tq = ((n + 1) // 2) % 2; tv = ((n - 1) // 2) % 2
        E = [f"v_exp_f32 v{se+i}, v{se+i}" for i in range(16)]
        Q1 = f"v_mfma_f32_32x32x16_bf16 {vr(sq,16)}, {vr(K[tq],4)}, {vr(Q[Y],4)}, {vr(M[Y],16)}"
        Q2 = f"v_mfma_f32_32x32x16_bf16 {vr(sq,16)}, {vr(K[tq]+4,4)}, {vr(Q[Y]+4,4)}, {vr(sq,16)}"
        P1 = f"v_smfmac_f32_32x32x32_bf16 {vr(O[Y],16)}, {vr(V[tv],4)}, {vr(sp,8)}, v{IDX}"
        P2 = f"v_smfmac_f32_32x32x32_bf16 {vr(O[Y],16)}, {vr(V[tv]+4,4)}, {vr(sp+8,8)}, v{IDX}"
        L1 = f"v_smfmac_f32_16x16x64_bf16 {vr(Lr[Y],4)}, {vr(ONES,4)}, {vr(sp,8)}, v{IDX}"
        L2 = f"v_smfmac_f32_16x16x64_bf16 {vr(Lr[Y],4)}, {vr(ONES,4)}, {vr(sp+8,8)}, v{IDX}"
        if n == 0: P1 = P2 = L1 = L2 = None
        if n == 127: Q1 = Q2 = None
        T = n >> 1
        if X == 0: D = [rdKV(K[tq] + 4 * k, T + 2, k, f"h{n}") for k in range(2)] if T + 2 < 64 else [None, None]
        else: D = [rdKV(V[1 - tv] + 4 * k, T + 1, 2 + k, f"h{n}") for k in range(2)] if T + 1 < 64 else [None, None]
        if n % 16 == 0 and n:
            c = n >> 4
            e(Wt(vm=[f"KV{c}b", f"KV{c+1}a"] + ([f"oW{k}" for k in range(5)] if c == 7 else []))); e("s_barrier" if c not in opt.nob else "s_nop 0")
        if opt.afine and n % 8 == 0 and n: g.stamp(f"a{n}")
        if opt.walk and n % opt.walk == 0: put("q2", n, g.pad())
        w = Wt(lg=[f"h{n-2}", "pv"])
        gq = lambda k: sl[k].get(n, [])
        xm = gq("x")
        if xm: a, b, c_, d_ = 8, 9, 12, 13
        else: a, b, c_, d_ = 9, 11, 14, 16
        e([Q1, w] + gq("q1") + E[0:3] + [Q2] + gq("q2") + E[3:6] + [P1] + gq("p1") + E[6:a] + [L1, D[0]] + E[a:b] + gq("va") +
          [P2] + gq("p2") + E[b:c_] + [L2, D[1]] + E[c_:d_] + xm + E[d_:16])
    e(sl["q1"].get(128, []))
    e(f"""
    v_rcp_f32 v{vT0}, v{Lr[0]}
    v_smfmac_f32_16x16x64_bf16 {vr(Lr[1],4)}, {vr(ONES,4)}, {vr(S[3],8)}, v{IDX}
    v_smfmac_f32_16x16x64_bf16 {vr(Lr[1],4)}, {vr(ONES,4)}, {vr(S[3]+8,8)}, v{IDX}
    v_smfmac_f32_32x32x32_bf16 {vr(O[1],16)}, {vr(V[1],4)}, {vr(S[3],8)}, v{IDX}
    v_smfmac_f32_32x32x32_bf16 {vr(O[1],16)}, {vr(V[1]+4,4)}, {vr(S[3]+8,8)}, v{IDX}
    s_mov_b32 s{sMode}, 0
    """.replace(f"v_rcp_f32 v{vT0}, v{Lr[0]}\n", "s_nop 0\n"))
    g.stamp("attn end"); g.stamp("attn end", True)
    e("s_nop 2\nLa_norm:")
    for qb in range(2):
        e(f"v_rcp_f32 v{2*qb}, v{Lr[qb]}\ns_nop 0\nv_mov_b32 v{2*qb+1}, v{2*qb}")
        for i in range(8): e(f"v_pk_mul_f32 {vr(O[qb]+2*i,2)}, {vr(O[qb]+2*i,2)}, {vr(2*qb,2)}")
        for i in range(8): e(f"v_cvt_pk_bf16_f32 v{8+8*qb+i}, v{O[qb]+2*i}, v{O[qb]+2*i+1}")
        for k in range(2):
            e(VM(f"buffer_store_dwordx4 {vr(8+8*qb+4*k,4)}, v{v16}, {sr(WS,4)}, s{sOst} offen offset:{2048*qb+1024*k} sc1", "ost"))
    e(f"v_maximum3_f32 v4, v{Lr[0]}, v{Lr[1]}, abs(v{O[0]})")
    for i in range(1, 31, 2): e(f"v_maximum3_f32 v4, v4, abs(v{O[0]+i}), abs(v{O[0]+i+1})")
    e(f"""
    v_maximum3_f32 v4, v4, abs(v{O[0]+31}), v4
    s_mov_b32 s{sT0}, {hex(f2u(2.0**110))}
    v_cmp_nlt_f32 vcc, v4, s{sT0}
    """)
    if opt.force_fb: e("s_nop 1\ns_mov_b64 vcc, -1")
    e(f"""
    s_cmp_eq_u64 vcc, 0
    s_cselect_b32 s{sT0}, 1, s{sMode}
    s_cmp_eq_u32 s{sT0}, 0
    s_cbranch_scc1 Lfb
    """)
    g.stamp("o stored")
    pA = 32; pR = 48; pI = 64; pU = 80; pT = 96; pF = 104; pM = 112; pX = 120; pW = 128
    vAs = 5; vBm = 176; vPO = 7
    p3st = [f"buffer_store_dwordx4 {vr(pF,4)}, v{pX+1}, {sr(OUT,4)}, s{sF1} offen {opt.p3_sc}",
            f"buffer_store_dwordx4 {vr(pF+4,4)}, v{pX+1}, {sr(OUT,4)}, s{sF1} offen offset:512 {opt.p3_sc}",
            f"buffer_store_dwordx4 {vr(pM,4)}, v{pX+2}, {sr(OUT,4)}, s{sF2} offen offset:512 {opt.p3_sc}",
            f"buffer_store_dwordx4 {vr(pM+4,4)}, v{pX+2}, {sr(OUT,4)}, s{sF2} offen {opt.p3_sc}"]
    zero_im = [f"v_mov_b64 {vr(pA+8+i,2)}, 0" for i in range(0, 8, 2)]
    def p3(main):
        L = []; a = L.append
        T = (lambda t, tag: LG(t, tag)) if main else (lambda t, tag: t)
        for k in range(4):
            for ee in range(2):
                a(T(f"ds_read_b64_tr_b16 {vr(pA+4*k+2*ee,2)}, v{vFB+(k>>1)} offset:{(k&1)*2048+ee*512}", f"b{k}"))
        stage = []; stage2 = []; wl = []
        if main:
            L += [f"s_sub_u32 s{sF2}, 2048, s{sRow}", f"s_and_b32 s{sF2}, s{sF2}, 2047", f"s_lshl_b32 s{sF2}, s{sF2}, 12",
                  f"s_lshl_b32 s{sF1}, s{sRow}, 12", f"v_add_u32 v{vAs}, 131072, v{vA}", f"v_add_u32 v{vAs+1}, 131072, v{vA2}", f"s_cmp_eq_u32 s{sRow}, 0", "s_cbranch_scc1 Lp3_real", "Lp3_mm:"]
            for c in range(7):
                hi = ASL[c] // 49152
                r, o = ((vAs, vAs + 1), 0) if hi > 1 else ((vA + hi, vA2 + hi), ASL[c] % 49152)
                for u in range(2):
                    for m in range(2):
                        for ee in range(2):
                            stage.append(LG(f"ds_read_b64_tr_b16 {ar(aW(c)+8*u+4*m+2*ee,2)}, v{r[m]} offset:{o+u*8192+ee*1024}", "stg" if c < 5 else "stg2"))
            stage2 = stage[40:]; stage = stage[:40]
            for c in opt.win: wl += burst(dmaWo(c, WSL[c] * 16384))
        else: L += ["s_waitcnt lgkmcnt(0)"] + zero_im + ["s_nop 1"]
        acc = [f"v_accvgpr_read_b32 v{pW+i}, a{aTW+i}" for i in range(32)] + [f"v_accvgpr_read_b32 v{pX+i}, a{aTX+i}" for i in range(3)] if main else []
        for k in range(4):
            if main: a(Wt(lg=f"b{k}"))
            for nb in range(2):
                d = vr((pR, pI)[nb], 16)
                tb = aT3 + (4 * k if nb == 0 else (16 + 4 * k if k < 2 else 4 * (k - 2)))
                a(f"v_mfma_f32_32x32x16_bf16 {d}, {vr(pA+4*k,4)}, {ar(tb,4)}, {'0' if k==0 else d}")
                for _ in range(5):
                    if stage: a(stage.pop(0))
                for _ in range(3):
                    if acc: a(acc.pop(0))
        if main:
            L += acc + g.stampl("beta") + [Wt(vm="ost", lg="stg"), "s_barrier", f"s_cmp_lg_u32 s{sW}, 1", "s_cbranch_scc1 Lnoofl"] + g.flag(0, sFlO) + ["Lnoofl:"] + g.stampl("oflag")
        else: a("s_nop 11")
        for i in range(8):
            r, im, c, s_ = pR + 2 * i, pI + 2 * i, pW + 2 * i, pW + 16 + 2 * i
            L += stage2[2 * i:2 * i + 2] + (take_vm(wl) if i % 2 else []) + [
                f"v_pk_mul_f32 {vr(pT,2)}, {vr(r,2)}, {vr(c,2)}", f"v_pk_mul_f32 {vr(pT+2,2)}, {vr(im,2)}, {vr(c,2)}",
                f"v_pk_fma_f32 {vr(pT,2)}, {vr(im,2)}, {vr(s_,2)}, {vr(pT,2)}",
                f"v_pk_fma_f32 {vr(pT+2,2)}, {vr(r,2)}, {vr(s_,2)}, {vr(pT+2,2)} neg_lo:[0,1,0] neg_hi:[0,1,0]",
                f"v_cvt_pk_bf16_f32 v{pU+i}, v{pT}, v{pT+1}", f"v_cvt_pk_bf16_f32 v{pU+8+i}, v{pT+2}, v{pT+3}"]
        a("s_nop 0")
        for k in range(4):
            a(f"v_mfma_f32_32x32x16_bf16 {vr(pR,16)}, {vr(pU+4*k,4)}, {ar(aT3+4*k,4)}, {'0' if k==0 else vr(pR,16)}")
            L += take_vm(wl)
        if main:
            L += [f"s_lshl_b32 s{sT2}, s{sRB}, 6", f"s_add_u32 s{sT2}, s{sT2}, s{sW}", f"s_lshl_b32 s{sT2}, s{sT2}, 11",
                  f"s_add_u32 s{sT2}, s{sT2}, {WS_O}", f"s_sub_u32 s{sXb}, s{sXb}, {L_X-L_XO}", f"v_add_u32 v{vOX}, s{sT2}, v{v16}",
                  f"v_and_b32 v{vB}, 15, v{vL}", f"v_bfe_u32 v{vBm}, v{vL}, 4, 1", f"v_lshlrev_b32 v{vB}, 4, v{vB}", f"v_lshl_or_b32 v{vB}, v{vBm}, 10, v{vB}",
                  f"v_lshrrev_b32 v{vBm}, 5, v{vL}", f"v_lshl_or_b32 v{vB}, v{vBm}, 9, v{vB}", f"v_add_u32 v{vBm}, {L_MISC}, v{vB}",
                  f"v_add_u32 v{vB}, {L_XO}, v{vB}", f"v_add_u32 v{vBm+2}, s{sMisc}, v{v16}",
                  f"v_and_b32 v{vPO}, 7, v{vL}", f"v_lshl_or_b32 v{vPO}, v{vPO}, 2, 1", f"v_lshlrev_b32 v{vPO}, {opt.fsp}, v{vPO}"]
        else: a("s_nop 11")
        a(T(f"ds_bpermute_b32 v{pR+16}, v{pX}, v{pR}", "bp"))
        for m_ in range(8):
            a(f"v_cvt_pk_bf16_f32 v{pF+m_}, v{pR+2*m_}, v{pR+2*m_+1}")
            if m_ % 4 == 3: L += take_vm(wl)
        for m_ in range(1, 8): a(f"v_cvt_pk_bf16_f32 v{pM+m_}, v{pR+16-2*m_}, v{pR+15-2*m_}")
        L += take_vm(wl)
        for i in range(4): a(f"v_permlane16_swap_b32 v{pF+i}, v{pF+4+i}")
        L += [Wt(lg="bp") if main else "s_waitcnt lgkmcnt(0)", f"v_cvt_pk_bf16_f32 v{pM}, v{pR+16}, v{pR+15}", "s_nop 1"]
        for i in range(4): a(f"v_permlane16_swap_b32 v{pM+i}, v{pM+4+i}")
        return L + wl
    e(g.pad())
    e(Wt(vm=["d3", "t3"]))
    e(p3(True))
    e(g.pad())
    g.tail += ["Lp3_real:", "s_waitcnt lgkmcnt(0)"] + zero_im + [f"v_xor_b32 v{vFB}, 16, v{vFB}", "s_branch Lp3_mm"]
    g.tail += ["Lp3_again:"] + p3st + [f"s_mov_b32 s{sF1}, {1024<<12}", f"s_mov_b32 s{sF2}, {1024<<12}"] + p3(False) + ["s_branch Lp3_end"]
    e(f"s_cmp_eq_u32 s{sRow}, 0\ns_cbranch_scc1 Lp3_again\nLp3_end:")
    for n in range(4): e(LG(f"ds_write_b128 v{vBm+2}, {vr(8+4*n,4)} offset:{1024*n}", "own"))
    epi = f"""
    v_and_b32 v56, 15, v{vL}
    v_lshrrev_b32 v57, 5, v{vL}
    v_bfe_u32 v58, v{vL}, 4, 1
    v_lshl_or_b32 v57, v58, 1, v57
    v_bfe_u32 v58, v{vL}, 1, 2
    v_xor_b32 v57, v57, v58
    v_lshlrev_b32 v57, 4, v57
    v_lshl_or_b32 v56, v56, 6, v57
    v_add_u32 v56, s{sWb}, v56
    v_lshrrev_b32 v58, 2, v{vL}
    v_bfe_u32 v59, v{vL}, 3, 2
    v_and_b32 v60, 3, v{vL}
    v_xor_b32 v59, v59, v60
    v_lshlrev_b32 v59, 4, v59
    v_lshl_or_b32 v59, v58, 6, v59
    v_add_u32 v59, s{sWb}, v59
    v_lshlrev_b32 v60, 4, v60
    v_lshl_or_b32 v58, v58, 12, v60
    s_lshl_b32 s{sT0}, s{sRB}, 18
    s_lshl2_add_u32 s{sT1}, s{sG}, s{sW}
    s_lshl_b32 s{sT1}, s{sT1}, 6
    s_add_u32 s{sT0}, s{sT0}, s{sT1}
    s_add_u32 s{sT0}, s{sT0}, 2048
    s_add_u32 s{sT1}, s{sT0}, 0x10000
    s_add_u32 s{sT2}, s{sT0}, 0x20000
    s_add_u32 s{sT3}, s{sT0}, 0x30000
    """.strip().split("\n")
    e([x.strip() for x in epi])
    g.stamp("p3 done")
    opoll = f"buffer_load_dword v{vPoll}, v{vPO}, {sr(WS,4)}, s{sPoO} offen sc1"
    e([f"s_cmp_lg_u32 s{sW}, 3", "s_cbranch_scc1 Lnopoll", opoll, "s_waitcnt vmcnt(0)"] + g.check(1, vPoll, opoll) + ["Lnopoll:", Wt(lg=["own", "stg2"]), "s_barrier"])
    g.stamp("o flags")
    lead = []
    for c in range(2, 2 + opt.xurg): lead += burst(dmaXo(c))
    e(take_vm(lead, 2))
    og = {-1: take_vm(lead, opt.xpre)}
    i = 0
    while lead: og[i] = take_vm(lead); i += 1
    items = [(0, 8 * c - 8, dmaXo(c)) for c in range(2 + opt.xurg, 10)] + [(8 * (c - 7), 8 * c - 8, dmaXo(c)) for c in range(10, 16)]
    items += [(0, 8 * c - 8, dmaWo(c, WSL[c] * 16384)) for c in range(7, 12) if c not in opt.win]
    items += [(8 * (c - 4), 8 * c - 8, dmaWo(c, WSL[c] * 16384)) for c in range(12, 16)]
    while items:
        av = [it for it in items if it[0] <= i]
        if not av: i = min(it[0] for it in items); continue
        it = min(av, key=lambda it: it[1]); items.remove(it)
        pre, ops, _ = it[2]
        og.setdefault(i, []).extend(pre + ([] if len(pre) > 1 else ["s_nop 0"]))
        for op in ops:
            og.setdefault(i, []).append(op); last = i
            i += opt.pace if it[1] - i > opt.slack else 1
        assert last < it[1] - 6, (last, it[1])
    if opt.ofine:
        for c in range(1, 16): og.setdefault(8 * c - 1, []).extend(g.stampl(f"oc{c}"))
    if opt.fine:
        for i, nm in ((13, "o c2"), (45, "o c5"), (85, "o c10")): og.setdefault(i, []).extend(g.stampl(nm))
    for n, x in enumerate(p3st): og.setdefault(opt.dpos + opt.dsp * n, []).append(VM(x))
    grp = {}
    for i in range(2 * opt.walk, 128, 3 * opt.walk) if opt.walk else []: og.setdefault(i | 1, []).extend(g.pad())
    rest = gemm(g, "o", lambda c: ("a", aW(c)) if c < 7 else ((vA + WSL[c] // 3, vA2 + WSL[c] // 3), (WSL[c] % 3) * 16384),
                lambda c: (vBm, c * 8192, (0, 256, 2048, 2304)) if c < 2 else (vB, ((c - 2) % 8) * 8192, (0, 256, 2048, 2304)),
                {c: [f"oX{c}"] + ([f"oW{c}"] if c > 6 else []) for c in range(2, 16)}, grp, og)
    assert not rest
    g.stamp("out gemm done")
    e("s_nop 1")
    for n in range(4):
        for i in range(4): e(f"v_cvt_pk_bf16_f32 v{64+4*n+i}, v{8*n+2*i}, v{8*n+2*i+1}")
        if n: e([f"v_permlane16_swap_b32 v{60+4*n+i}, v{62+4*n+i}" for i in range(2)] + [LG(f"ds_write_b128 v56, {vr(60+4*n,4)} offset:{1024*(n-1)}", f"ew{n-1}")])
    e(["s_nop 0"] + [f"v_permlane16_swap_b32 v{76+i}, v{78+i}" for i in range(2)] + [LG(f"ds_write_b128 v56, {vr(76,4)} offset:3072", "ew3")])
    for n in range(4):
        e(Wt(lg=f"ew{n}"))
        e(LG(f"ds_read_b128 {vr(80+4*n,4)}, v59 offset:{1024*n}", f"er{n}"))
    for n in range(4):
        e(Wt(lg=f"er{n}"))
        e(f"buffer_store_dwordx4 {vr(80+4*n,4)}, v58, {sr(OUT,4)}, s{sT0+n} offen {opt.out_sc}")
    if opt.stamps:
        e("s_waitcnt vmcnt(0)")
        g.stamp("end")
    if opt.echo:
        e("s_waitcnt vmcnt(0)")
        g.stamp("fin")
        e("""
        s_memrealtime s[6:7]
        s_waitcnt lgkmcnt(0)
        s_lshl_b32 s9, s9, 2
        s_add_u32 s9, s9, s6
        Lecho:
        s_sleep 2
        s_memrealtime s[6:7]
        s_waitcnt lgkmcnt(0)
        s_sub_u32 s10, s6, s9
        s_cmp_lt_i32 s10, 0
        s_cbranch_scc1 Lecho
        """)
    e("Lend:\ns_endpgm")
    e(g.tail)
    e(f"""
    Lfb:
    s_mov_b32 s{sMode}, 1
    v_mov_b32 v{vT0}, 0xff800000
    v_mov_b32 v{vT1}, 0xff800000
    s_mov_b32 s{sC}, 0
    Lfb1:
    buffer_load_dwordx4 {vr(K[0],4)}, v{v16}, {sr(WS,4)}, s{sC} offen sc1
    buffer_load_dwordx4 {vr(K[0]+4,4)}, v{v16}, {sr(WS,4)}, s{sC} offen offset:1024 sc1
    s_waitcnt vmcnt(0)
    """)
    for qb in range(2):
        e(f"v_mfma_f32_32x32x16_bf16 {vr(S[qb],16)}, {vr(K[0],4)}, {vr(Q[qb],4)}, 0")
        e(f"v_mfma_f32_32x32x16_bf16 {vr(S[qb],16)}, {vr(K[0]+4,4)}, {vr(Q[qb]+4,4)}, {vr(S[qb],16)}")
    e("s_nop 15")
    e(maxtree(vT0, S[0], False) + maxtree(vT1, S[1], False))
    e(f"s_add_u32 s{sC}, s{sC}, 4096\ns_cmp_lt_u32 s{sC}, 0x40000\ns_cbranch_scc1 Lfb1")
    finish_max(0.0, [])
    for i in range(O[0], Lr[1] + 4, 2): e(f"v_mov_b64 {vr(i,2)}, 0")
    e(f"s_mov_b32 s{sC}, 0\nLfb2:")
    for k in range(2):
        e(f"buffer_load_dwordx4 {vr(K[0]+4*k,4)}, v{v16}, {sr(WS,4)}, s{sC} offen offset:{1024*k} sc1")
        e(f"buffer_load_dwordx4 {vr(V[0]+4*k,4)}, v{v16}, {sr(WS,4)}, s{sC} offen offset:{2048+1024*k} sc1")
    e("s_waitcnt vmcnt(0)")
    for qb in range(2):
        e(f"v_mfma_f32_32x32x16_bf16 {vr(S[qb],16)}, {vr(K[0],4)}, {vr(Q[qb],4)}, {vr(M[qb],16)}")
        e(f"v_mfma_f32_32x32x16_bf16 {vr(S[qb],16)}, {vr(K[0]+4,4)}, {vr(Q[qb]+4,4)}, {vr(S[qb],16)}")
    e("s_nop 15")
    for i in range(32): e(f"v_exp_f32 v{i}, v{i}")
    e("s_nop 1")
    for qb in range(2):
        for u in range(2):
            e(f"v_smfmac_f32_32x32x32_bf16 {vr(O[qb],16)}, {vr(V[0]+4*u,4)}, {vr(S[qb]+8*u,8)}, v{IDX}")
            e(f"v_smfmac_f32_16x16x64_bf16 {vr(Lr[qb],4)}, {vr(ONES,4)}, {vr(S[qb]+8*u,8)}, v{IDX}")
    e(f"""
    s_add_u32 s{sC}, s{sC}, 4096
    s_cmp_lt_u32 s{sC}, 0x40000
    s_cbranch_scc1 Lfb2
    s_nop 15
    s_branch La_norm
    Lcode_end:
    """)
    txt = g.text()
    for i, l in enumerate(txt):
        if "PADNEXT" in l:
            k = int(l.split("PADNEXT")[1]) + 4
            txt[i] = l.split("PADNEXT")[0] + (f"Lpad{k}" if k < g.npad else "Lwalk_ret")
    a = txt.index("Lkv_done:"); b = txt.index("Lkvflag_b:")
    nld = sum(1 for l in txt[a:b] if l.startswith(" buffer_load"))
    txt[txt.index(" KVFLAGWAIT")] = f" s_waitcnt vmcnt({nld})"
    return txt

def table_text():
    b = TB.blob(); L = []
    for i in range(0, len(b), 128):
        ch = b[i:i + 128]
        L.append(".octa " + ",".join("0x%x" % int.from_bytes(ch[j:j + 16], "little") for j in range(0, 128, 16)))
    return "\n".join(L)

def build(opt):
    ref = open(f"cdna_kernels/{NAME}.s.ref").read().split("\n")
    head = [l for l in ref if l.startswith(";") and "@launch" not in l]
    s = "\n".join(head) + "\n; @launch grid=(256,1,1) block=(256,1,1) lds=163840\n"
    s += f""".amdgcn_target "amdgcn-amd-amdhsa--gfx950"
.text
.globl {NAME}_kernel
.p2align 8
.type {NAME}_kernel,@function
"""
    s += "\n".join(gen(opt)) + "\n"
    s += f""".fill {2048 if opt.exp==4 else 256}, 4, 0xbf800000
s_endpgm
.section .rodata,"a"
.p2align 6
.amdhsa_kernel {NAME}_kernel
  .amdhsa_next_free_vgpr 512
  .amdhsa_next_free_sgpr 102
  .amdhsa_accum_offset 256
  .amdhsa_group_segment_fixed_size 0
  .amdhsa_kernarg_size 104
  .amdhsa_user_sgpr_count 2
  .amdhsa_user_sgpr_kernarg_segment_ptr 1
  .amdhsa_system_sgpr_workgroup_id_x 1
.end_amdhsa_kernel
.p2align 8
fn_tables:
"""
    s += table_text() + "\n"
    return s

if __name__ == "__main__":
    opt = Opt()
    out = f"cdna_kernels/{NAME}.s"
    for a in sys.argv[1:]:
        if a.startswith("-o"): out = a[2:]
        else:
            k, v = a.split("=")
            cur = getattr(opt, k)
            setattr(opt, k, type(cur)(int(v)) if isinstance(cur, (bool, int)) else type(cur)(v))
    s = build(opt)
    open(out, "w").write(s)
    if opt.stamps: open(out + ".names", "w").write("\n".join(opt.names))
    print(out, len(s), "bytes")
```

```python
import sys, struct
import tables as TB

NAME = "concat_heads__spectral_fnet__grouped_kv_mqa__prompt"

class Opt:
    stamps = False
    dbg = False
    codepf = True
    spin = 1 << 20
    out_sc = "nt"
    force_fb = False
    off = 100.0
    rebal = True
    nofill = 0
    epig = True
    loop2 = False
    dsp = 4
    ofine = False
    pnop = 0
    xurg = 4
    pace = 2
    slack = 24
    walk = 0
    wpos = 0
    pf2 = 0
    nobar = ''
    wf = 4
    lead = 5
    nkv = 5
    fgap = 3
    rot = '4821'
    nt = ''
    ntf = 'nt'
    dpos = 104
    xpre = 2
    nwin = 3
    w0n = 0
    poll1 = True
    wgflag = True
    defer = True
    fsp = 2
    slp = 1
    pre1 = 2
    echo = ''
    warm = False
    p3_sc = 'nt'
    d1_sc = ''
    ppos = 21
    afine = False
    exp = 0
    xsc = ''
    fine = False
    mapA = True
    kvb = 11
    nofft = False
    oflag = 0

def f2u(x): return struct.unpack("<I", struct.pack("<f", x))[0]
def vr(b, n): return f"v[{b}:{b+n-1}]"
def ar(b, n): return f"a[{b}:{b+n-1}]"
def sr(b, n): return f"s[{b}:{b+n-1}]"

WS_FL = 0x40000
FL_EPOCH = WS_FL
FL_KV = WS_FL + 0x1000
FL_Z1 = WS_FL + 0x2000
FL_Z2 = WS_FL + 0x3000
FL_O = WS_FL + 0x8000
WS_O = 0x100000
WS_Z1 = 0x800000
WS_Z2 = 0xC00000
WS_ST = 0x1000000
L_X = 96 * 1024; L_MISC = 144 * 1024
KB = [65536, 0, 32768, 98304]
sW, sX, sJ, sRB, sG, sC0 = 30, 31, 32, 33, 34, 35
GX, GW, WS, OUT, XA, TBL, KW = 36, 40, 44, 48, 52, 56, 60
sTAG, sOffW, sTX, sWb, sXb = 64, 65, 66, 67, 68
sRB2, sG2, sC2 = 69, 70, 71
sKV, sKV2, sMisc = 72, 73, 74
sF1, sSt1, sFl1, sPo1, sTab2, sF2, sSt2, sFl2, sPo2, sF3, sRow = 75, 76, 77, 78, 79, 86, 87, 88, 89, 90, 91
sT0, sT1, sT2, sT3, sT4, sT5 = 80, 81, 82, 83, 84, 85
sOst, sOst2, sFlO, sPoO, sOffW2, sFlKV, sCB, sMode, sSpin, sTb = 92, 93, 94, 95, 96, 97, 98, 99, 100, 101
sC = 16
sLow = 69; sOwn = [70, 71]
sIdx = [4, 5, 14, 15, 18, 19, 20, 21, 24, 25, 28, 29, 35, 17]
def idx(c): return sOwn[c] if c < 2 else sIdx[c - 2]
ASL = {2: 65536, 3: 81920, 0: 131072, 1: 0, 4: 16384, 5: 32768, 6: 49152}
def aW(c): return 16 * c if c < 5 else 148 + 16 * (c - 5)
L_XO = 80 * 1024
WSL = {7: 0, 8: 1, 9: 4, 10: 2, 11: 3, 12: 0, 13: 1, 14: 4, 15: 2}
S = [0, 16, 32, 48]; O = [64, 80]; Lr = [96, 100]; M = [104, 120]; Q = [136, 144]; K = [152, 160]; V = [168, 176]
ONES = 184; IDX = 188; vKlo = 230; vKhi = 189
vFD = 196
vFB = 228
v16 = 230; vP1 = 231; vZ = 232; vA = 233; vB = 235; vOW = 238; vOX = 242
vA2 = 190; vPoll = 244; vP4 = 245; vOne = 237
vDummy = 246
vL = 250; vT0 = 251; vT1 = 252; vT2 = 253; vT3 = 254; vT4 = 255
aD, aT1, aT2, aT3, aTX, aTW = 0, 16, 48, 80, 112, 116

NT = {'w': '', 'x': '', 'o': ''}
class I:
    def __init__(s, t, kind=None, tag=None): s.t, s.kind, s.tag = t, kind, tag
class Wt:
    def __init__(s, vm=None, lg=None, must=False): s.vm, s.lg, s.must = vm, lg, must
def VM(t, tag=None): return I(t, "vm", tag)
def LG(t, tag=None): return I(t, "lg", tag)

class G:
    def __init__(self, opt):
        self.o = []; self.opt = opt; self.nst = 0; self.uid = 0; self.tail = []
    def e(self, s):
        if isinstance(s, (list, tuple)):
            for x in s: self.e(x)
        elif isinstance(s, (I, Wt)): self.o.append(s)
        elif s:
            for l in s.strip("\n").split("\n"):
                l = l.strip()
                if l: self.o.append(I(l))
    def lab(self, p):
        self.uid += 1; return f"{p}_{self.uid}"
    def text(self):
        out = []; vq = []; lq = []; seen = set(); waited = set()
        alltags = {x.tag for x in self.o if isinstance(x, I) and x.kind}
        def cnt(q, tags, mx):
            tags = tags if isinstance(tags, (list, tuple)) else [tags]
            for t in tags:
                assert t in seen or t not in alltags, ("wait before issue", t)
                waited.add(t)
            idx = max([i for i, t in enumerate(q) if t in tags], default=-1)
            if idx < 0: return None
            n = min(len(q) - 1 - idx, mx)
            del q[:len(q) - n]
            return n
        for x in self.o:
            if isinstance(x, Wt):
                p = []
                if x.vm is not None:
                    if x.vm == "all": p.append("vmcnt(0)"); vq.clear()
                    else:
                        n = cnt(vq, x.vm, 63)
                        if n is not None: p.append(f"vmcnt({n})")
                if x.lg is not None:
                    if x.lg == "all": p.append("lgkmcnt(0)"); lq.clear()
                    else:
                        n = cnt(lq, x.lg, 15)
                        if n is not None: p.append(f"lgkmcnt({n})")
                if p: out.append(" s_waitcnt " + " ".join(p))
                elif x.must: out.append(" s_nop 0")
            else:
                if x.kind:
                    assert x.tag is None or x.tag not in waited, ("issue after wait", x.tag)
                    seen.add(x.tag)
                if x.kind == "vm": vq.append(x.tag)
                if x.kind == "lg": lq.append(x.tag)
                out.append(x.t if x.t.endswith(":") else " " + x.t)
        return out
    def stamp(self, name, cyc=False):
        if self.opt.echo.startswith("cyc:") and not cyc:
            a, b = self.opt.echo[4:].split("-")
            if name == a: self.e("s_memtime s[6:7]\ns_waitcnt lgkmcnt(0)\ns_mov_b32 s3, s6")
            if name == b: self.e("s_memtime s[6:7]\ns_waitcnt lgkmcnt(0)\ns_sub_u32 s9, s6, s3\ns_lshr_b32 s9, s9, 3")
        if self.opt.echo == name and not cyc:
            self.e("s_memrealtime s[6:7]\ns_waitcnt lgkmcnt(0)\ns_sub_u32 s9, s6, s3")
        if not self.opt.stamps or cyc: return
        k = self.nst; self.nst += 1
        self.opt.names.append(("CYC " if cyc else "") + name)
        if self.opt.dbg:
            lb = self.lab("Lnost")
            self.e(f"""
            s_cmp_lg_u32 s9, 0
            s_cbranch_scc1 {lb}
            s_memrealtime s[6:7]
            s_waitcnt lgkmcnt(0)
            v_mov_b32 v195, s6
            s_mov_b64 exec, 1
            buffer_atomic_umax v195, off, s[12:15], 0 offset:{4*k}
            s_mov_b64 exec, -1
            {lb}:
            """)
            return
        self.e(f"""
        s_memrealtime s[6:7]
        s_memtime s[12:13]
        s_waitcnt lgkmcnt(0)
        v_mov_b32 v194, s6
        v_mov_b32 v195, s12
        buffer_store_dwordx2 v[194:195], off, {sr(WS,4)}, s8 offset:{8*k}
        """)
    def stampl(self, name):
        if name in ("beta", "oflag") and not self.opt.fine: return []
        save = self.o; self.o = []; self.stamp(name); r = self.o; self.o = save; return r
    def pad(self):
        if not self.opt.walk: return []
        self.npad = getattr(self, "npad", 0) + 1
        return [f"Lpad{self.npad-1}:", f"s_cbranch_execz PADNEXT{self.npad-1}"]
    def srd(self, d, lo, size):
        return [f"s_mov_b32 s{d}, s{lo}", f"s_and_b32 s{d+1}, s{lo+1}, 0xffff", f"s_mov_b32 s{d+2}, {size}", f"s_mov_b32 s{d+3}, 0x20000"]
    def flag(self, tmp, soff):
        return [f"v_mov_b32 v{tmp}, s{sTAG}", f"buffer_store_dword v{tmp}, v{vOne}, {sr(WS,4)}, s{soff} offen sc1"]
    def check(self, nreg, reg, load):
        lr = self.lab("Lretry"); lb = self.lab("Lback")
        cmp = [f"v_cmp_ne_u32 vcc, s{sTAG}, v{reg}"]
        for i in range(1, nreg):
            cmp += [f"v_cmp_ne_u32 s[10:11], s{sTAG}, v{reg+i}", "s_or_b64 vcc, vcc, s[10:11]"]
        self.tail += [f"{lr}:", f"s_mov_b32 s{sSpin}, {self.opt.spin}", f"{lr}_l:", f"s_sleep {self.opt.slp}", load, "s_waitcnt vmcnt(0)"] + cmp + [
            "s_cmp_eq_u64 vcc, 0", f"s_cbranch_scc1 {lb}", f"s_sub_u32 s{sSpin}, s{sSpin}, 1", f"s_cbranch_scc0 {lr}_l",
            f"v_mov_b32 v{vDummy}, {self.uid}", f"v_mov_b32 v{vDummy+1}, 0",
            f"global_store_dword v{vDummy+1}, v{vDummy}, s[26:27] offset:60", f"s_branch {lb}"]
        return cmp + ["s_cmp_eq_u64 vcc, 0", f"s_cbranch_scc0 {lr}", f"{lb}:"]

def dmaW(c, soff=sOffW, p=""):
    pre = [f"s_add_u32 m0, s{sWb}, {(c%6)*16384}"]
    ops = [VM(f"buffer_load_dwordx4 v{vOW+n}, {sr(GW,4)}, s{soff} offen offset:{1024*n} {NT['w']} lds", f"{p}W{c}") for n in range(4)]
    post = [f"s_add_u32 s{soff}, s{soff}, 0x20000", f"s_and_b32 s{soff}, s{soff}, 0x1fffff"]
    return pre, ops, post
def dmaX(c, step, mask, adv=1, p=""):
    pre = [f"s_add_u32 m0, s{sXb}, {(c%6)*8192}"]
    ops = [VM(f"buffer_load_dwordx4 v{vOX+n}, {sr(GX,4)}, s{sTX} offen offset:{1024*n} {NT['x']} lds", f"{p}X{c}") for n in range(2)]
    post = [f"s_add_u32 s{sTX}, s{sTX}, {(adv*step)&mask}", f"s_and_b32 s{sTX}, s{sTX}, {mask}"]
    return pre, ops, post
def burst(p):
    pre, ops, post = p
    return pre + ["s_nop 0"] + ops + post
def dmaKV(ch, hf):
    so = sKV2 if hf else sKV
    pre = [f"s_add_u32 m0, s{sWb}, {KB[ch%4]+16384*hf}"]
    ops = [VM(f"buffer_load_dwordx4 v{v16}, {sr(WS,4)}, s{so} offen offset:{1024*n} sc1 lds", f"KV{ch}{'ab'[hf]}") for n in range(4)]
    post = [f"s_add_u32 s{so}, s{so}, 32768", f"s_and_b32 s{so}, s{so}, 0x3ffff"]
    return pre, ops, post

FS = [32, 196, 152]
def gemm(g, pfx, srcA, srcB, waits, groups, gaps):
    e = g.e
    def rd(t):
        c, u = t >> 1, t & 1; f = FS[t % 3]; r, o = srcA(c); rb, ob, nb = srcB(c)
        A = [None] * 4 if r == "a" else [LG(f"ds_read_b64_tr_b16 {vr(f+4*m+2*ee,2)}, v{r[m]} offset:{o+u*8192+ee*1024}", f"{pfx}r{t}") for m in range(2) for ee in range(2)]
        B = [LG(f"ds_read_b128 {vr(f+8+4*n,4)}, v{rb} offset:{ob+u*4096+nb[n]}", f"{pfx}r{t}") for n in range(4)]
        return [x for p in zip(B, A) for x in p]
    extra = {i: list(v) for i, v in gaps.items()}
    if waits.get(0): e(Wt(vm=waits[0])); e("s_barrier")
    for t in range(2): e(rd(t))
    e(extra.pop(-1, []))
    def put(i, l): extra.setdefault(i, []).extend(l)
    i = 0
    for c in range(16):
        i = max(i, 8 * c)
        for pre, ops, post in groups.get(c, []):
            put(i, pre)
            for op in ops:
                i += 1; put(i, [op])
            put(i, post)
    for t in range(32):
        c, u = t >> 1, t & 1; f = FS[t % 3]; r, o = srcA(c)
        nxt = rd(t + 2) if t + 2 < 32 else [None] * 8
        e(Wt(lg=f"{pfx}r{t}"))
        for j in range(8):
            m, n = j & 1, j >> 1
            a = ar(o + 8 * u + 4 * m, 4) if r == "a" else vr(f + 4 * m, 4)
            e(f"v_mfma_f32_16x16x32_bf16 {vr(4*j,4)}, {a}, {vr(f+8+4*n,4)}, {'0' if t == 0 else vr(4*j,4)}")
            if j == 0 and u == 0:
                if waits.get(c + 1): e(Wt(vm=waits[c + 1]))
                if waits.get(c + 1) or groups.get(c): e("s_barrier")
            e(nxt[j])
            if j & 1: e(extra.pop(4 * t + n, []))
    rest = []
    for i in sorted(extra): rest += extra[i]
    return rest
def dmaWo(c, lds):
    pre = [f"s_add_u32 m0, s{sWb}, {lds}", f"s_lshl4_add_u32 s{sOffW}, s{idx(c)}, s{sLow}"]
    ops = [VM(f"buffer_load_dwordx4 v{vOW+n}, {sr(GW,4)}, s{sOffW} offen offset:{1024*n} {NT['o']} lds", f"oW{c}") for n in range(4)]
    return pre, ops, []
def dmaXo(c):
    pre = [f"s_add_u32 m0, s{sXb}, {((c-2)%8)*8192}"]
    ops = [VM(f"buffer_load_dwordx4 v{vOX}, {sr(WS,4)}, s{idx(c)} offen offset:{1024*n} sc1 lds", f"oX{c}") for n in range(2)]
    return pre, ops, []

def gen(opt):
    g = G(opt); e = g.e
    opt.names = []
    opt.nob = [int(x) for x in opt.nobar]
    for k in opt.nt: NT[k] = opt.ntf
    opt.win = [7, 8, 9][:opt.nwin]
    e(f"{NAME}_kernel:")
    if opt.stamps or opt.echo: e("s_memrealtime s[60:61]")
    e(f"""
    s_cmp_ge_u32 s2, 256
    s_cbranch_scc1 Lend
    s_load_dwordx16 s[4:19], s[0:1], 0
    s_load_dwordx8 s[20:27], s[0:1], 64
    s_load_dwordx2 s[28:29], s[0:1], 96
    v_lshrrev_b32 v1, 6, v0
    v_and_b32 v{vL}, 63, v0
    v_readfirstlane_b32 s{sW}, v1
    v_lshlrev_b32 v{v16}, 4, v{vL}
    s_and_b32 s{sX}, s2, 7
    s_lshr_b32 s{sJ}, s2, 3
    """)
    if opt.codepf:
        e(f"""
        s_lshl_b32 s{sT0}, s{sJ}, 2
        s_add_u32 s{sT0}, s{sT0}, s{sW}
        s_lshl_b32 s{sT0}, s{sT0}, 10
        s_cmp_ge_u32 s{sT0}, Lcode_end-Lpc1
        s_cbranch_scc1 Lnopf
        s_getpc_b64 s[{sT2}:{sT3}]
        Lpc1:
        v_add_u32 v13, s{sT0}, v{v16}
        global_load_dwordx4 {vr(vDummy,4)}, v13, s[{sT2}:{sT3}]
        Lnopf:
        """)
    e(f"s_lshl2_add_u32 s{sCB}, s{sX}, s{sW}")
    if opt.mapA:
        e(f"""
        s_and_b32 s{sT0}, s{sJ}, 7
        s_lshr_b32 s{sT1}, s{sX}, 1
        s_lshl3_add_u32 s{sRB}, s{sT1}, s{sT0}
        s_lshr_b32 s{sT1}, s{sJ}, 3
        s_and_b32 s{sT2}, s{sX}, 1
        s_lshl2_add_u32 s{sG}, s{sT2}, s{sT1}
        s_lshl1_add_u32 s{sT0}, s{sT1}, s{sT0}
        s_lshl_b32 s{sT0}, s{sT0}, 1
        s_and_b32 s{sC0}, s{sT0}, 15
        """)
    if opt.rot:
        a, b, c, d = [int(x, 16) for x in opt.rot]
        e(f"""
        s_lshr_b32 s{sT0}, s{sX}, 1
        s_mul_i32 s{sC0}, s{sT0}, {a}
        s_and_b32 s{sT0}, s{sX}, 1
        s_mul_i32 s{sT0}, s{sT0}, {b}
        s_add_u32 s{sC0}, s{sC0}, s{sT0}
        s_lshr_b32 s{sT0}, s{sJ}, 3
        s_mul_i32 s{sT0}, s{sT0}, {c}
        s_add_u32 s{sC0}, s{sC0}, s{sT0}
        s_and_b32 s{sT0}, s{sJ}, 7
        s_mul_i32 s{sT0}, s{sT0}, {d}
        s_lshr_b32 s{sT0}, s{sT0}, 1
        s_add_u32 s{sC0}, s{sC0}, s{sT0}
        s_and_b32 s{sC0}, s{sC0}, 15
        """)
    e(f"""
    v_lshrrev_b32 v1, 5, v{vL}
    v_lshrrev_b32 v2, 4, v{vL}
    v_and_b32 v7, 31, v{vL}
    v_and_b32 v9, 15, v{vL}
    v_xor_b32 v8, v7, v1
    v_lshlrev_b32 v8, 4, v8
    v_lshl_or_b32 v128, v1, 11, v8
    """)
    for n in range(1, 8):
        e(f"v_xor_b32 v{128+n}, {32*n}, v128\nv_add_u32 v{128+n}, {n*4096-1024*(n&3)}, v{128+n}")
    e(f"""
    s_lshl_b32 s{sT2}, s{sW}, 13
    s_add_u32 s{sT2}, s{sT2}, {112*1024}
    s_mov_b32 s{sT3}, {48*1024}
    s_cmp_eq_u32 s{sW}, 1
    s_cselect_b32 s{sT3}, {144*1024}, s{sT3}
    s_cmp_eq_u32 s{sW}, 2
    s_cselect_b32 s{sT3}, {80*1024}, s{sT3}
    s_cmp_eq_u32 s{sW}, 3
    s_cselect_b32 s{sT3}, {64*1024}, s{sT3}
    s_lshr_b32 s{sT0}, s{sG}, 1
    s_lshl2_add_u32 s{sT0}, s{sRB}, s{sT0}
    s_lshl_b32 s{sT4}, s{sT0}, 15
    s_lshl_b32 s{sT0}, s{sW}, 9
    s_add_u32 s{sT4}, s{sT4}, s{sT0}
    s_lshl_b32 s{sT5}, s{sW}, 14
    """)
    e(f"""
    v_lshlrev_b32 v10, 2, v2
    v_xor_b32 v10, v10, v9
    v_lshlrev_b32 v10, 4, v10
    v_lshl_or_b32 v{vOW}, v2, 11, v10
    v_add_u32 v{vOW+1}, 7168, v{vOW}
    v_xor_b32 v10, 32, v{vOW}
    v_add_u32 v{vOW+2}, 14336, v10
    v_add_u32 v{vOW+3}, 21504, v10
    """)
    e(f"""
    s_lshl_b32 s{sWb}, s{sW}, 12
    s_lshl_b32 s{sXb}, s{sW}, 11
    s_add_u32 s{sXb}, s{sXb}, {L_X}
    s_lshl2_add_u32 s{sT0}, s{sC0}, s{sW}
    s_lshl_b32 s{sT0}, s{sT0}, 7
    s_add_u32 s{sT0}, s{sT0}, s{sG}
    s_lshl_b32 s{sOffW}, s{sT0}, 8
    s_lshl_b32 s{sTX}, s{sC0}, 7
    """)
    e(f"""
    s_and_b32 s{sTb}, s{sJ}, 7
    s_lshr_b32 s{sT0}, s{sJ}, 4
    s_lshl3_add_u32 s{sTb}, s{sT0}, s{sTb}
    s_lshl_b32 s{sTb}, s{sTb}, 10
    """)
    e("s_waitcnt lgkmcnt(0)")
    if opt.stamps or opt.echo: e("s_mov_b32 s3, s60")
    e([f"s_bitcmp1_b32 s{sG}, 0", f"s_cselect_b32 s{KW}, s20, s18", f"s_cselect_b32 s{KW+1}, s21, s19",
       f"s_and_b32 s{KW+1}, s{KW+1}, 0xffff", f"s_mov_b32 s{KW+2}, 65536", f"s_mov_b32 s{KW+3}, 0x20000"])
    def kvw1():
        return [f"s_add_u32 m0, s{sT3}, s{sTb}", f"s_add_u32 s{sOst2}, s{sT5}, s{sTb}",
                VM(f"buffer_load_dwordx4 v{v16}, {sr(KW,4)}, s{sOst2} offen lds", "kv"),
                f"s_add_u32 s{sTb}, s{sTb}, 1024", f"s_and_b32 s{sTb}, s{sTb}, 0x3fff"]
    e(kvw1())
    e(g.srd(GX, 14, 4194304))
    for _ in range(opt.wf - 1): e(kvw1())
    kvx = [VM(f"buffer_load_dwordx4 v{128+n}, {sr(GX,4)}, s{sT4} offen offset:{1024*(n&3)} {NT['x']} lds", "kv") for n in range(8)]
    fill = [g.srd(GW, 16, 2097152), g.srd(WS, 28, 0x10000000) + [f"s_mov_b32 s{sMode}, {FL_EPOCH}"]]
    fill.append(f"""
    v_bfe_u32 v3, v{vL}, 2, 2
    v_and_b32 v4, 1, v{vL}
    v_bfe_u32 v5, v{vL}, 1, 1
    v_and_b32 v6, 1, v2
    v_lshlrev_b32 v{vP4}, 2, v7
    v_lshrrev_b32 v11, 3, v{vL}
    """)
    fill.append(f"""
    s_and_b32 s{sT0}, s{sW}, 1
    s_lshl1_add_u32 s{sT0}, s{sRB}, s{sT0}
    s_lshl_b32 s{sT0}, s{sT0}, 16
    s_lshr_b32 s{sT1}, s{sW}, 1
    s_lshl_b32 s{sT1}, s{sT1}, 6
    s_add_u32 s{sT0}, s{sT0}, s{sT1}
    v_lshrrev_b32 v12, 2, v{vL}
    v_and_b32 v13, 3, v{vL}
    v_sub_u32 v14, 0, v2
    v_xor_b32 v14, v13, v14
    v_and_b32 v14, 3, v14
    v_lshlrev_b32 v14, 4, v14
    v_lshl_or_b32 v14, v12, 11, v14
    v_add_u32 v{vOX}, s{sT0}, v14
    v_add_u32 v{vOX+1}, {32768-1024}, v{vOX}
    """)
    fill.append(f"""
    v_xor_b32 v13, v2, v9
    v_lshlrev_b32 v13, 4, v13
    v_lshl_or_b32 v13, v9, 9, v13
    v_add_u32 v136, s{sT2}, v13
    v_xor_b32 v14, 64, v13
    v_add_u32 v137, s{sT2}, v14
    v_xor_b32 v14, 128, v13
    v_add_u32 v138, s{sT2}, v14
    v_xor_b32 v14, 192, v13
    v_add_u32 v139, s{sT2}, v14
    """)
    fill.append(f"""
    v_lshl_add_u32 v13, v2, 3, v3
    v_lshlrev_b32 v13, 6, v13
    v_add_u32 v13, s{sT3}, v13
    v_and_b32 v14, 3, v{vL}
    v_lshlrev_b32 v14, 4, v14
    v_lshlrev_b32 v15, 5, v4
    v_lshl_or_b32 v15, v5, 3, v15
    s_bitcmp1_b32 s{sG}, 0
    s_cselect_b64 vcc, -1, 0
    s_cselect_b32 s{sT1}, 16, 8
    v_cndmask_b32 v14, v14, v15, vcc
    v_add_u32 v140, v13, v14
    v_add_u32 v141, s{sT1}, v140
    """)
    fill.append(f"""
    v_lshl_add_u32 v14, v6, 5, v9
    v_lshlrev_b32 v14, 4, v14
    v_lshl_or_b32 v14, v1, 10, v14
    v_cndmask_b32 v142, v14, v{v16}, vcc
    v_add_u32 v{vKhi}, 65536, v{v16}
    v_min_u32 v{vOne}, 1, v{vL}
    v_lshlrev_b32 v{vOne}, 28, v{vOne}
    """)
    fill.append(f"""
    v_lshl_add_u32 v13, v2, 3, v3
    v_xor_b32 v14, s{sW}, v3
    v_lshl_add_u32 v14, v14, 1, v6
    v_lshl_add_u32 v14, v14, 1, v5
    v_lshl_add_u32 v14, v14, 1, v4
    v_lshlrev_b32 v14, 3, v14
    v_lshl_or_b32 v{vA}, v13, 8, v14
    v_add_u32 v{vA+1}, 49152, v{vA}
    v_xor_b32 v{vA2}, 32, v{vA}
    v_xor_b32 v{vA2+1}, 32, v{vA+1}
    """)
    fill.append(f"""
    v_sub_u32 v13, 0, v3
    v_xor_b32 v13, v13, v2
    v_and_b32 v13, 3, v13
    v_lshlrev_b32 v13, 4, v13
    v_lshl_or_b32 v13, v9, 6, v13
    v_add_u32 v{vB}, {L_X}, v13
    """)
    fill.append(f"""
    v_lshl_add_u32 v13, v1, 3, v3
    v_lshl_add_u32 v14, v6, 1, v4
    v_lshrrev_b32 v15, 1, v3
    v_lshl_add_u32 v14, v14, 1, v15
    v_lshl_add_u32 v14, v14, 1, v5
    v_lshlrev_b32 v14, 3, v14
    v_lshl_or_b32 v13, v13, 7, v14
    s_add_u32 s{sMisc}, s{sWb}, {L_MISC}
    v_add_u32 v{vFB}, s{sMisc}, v13
    v_xor_b32 v{vFB+1}, 16, v{vFB}
    """)
    fill.append(f"""
    v_xor_b32 v13, v4, v6
    v_bfe_u32 v14, v{vL}, 1, 2
    v_lshlrev_b32 v15, 4, v14
    v_lshl_or_b32 v15, v11, 16, v15
    v_lshl_or_b32 v{vP1}, v13, 21, v15
    v_lshlrev_b32 v15, 9, v14
    v_lshl_or_b32 v15, v11, 12, v15
    v_lshl_or_b32 v{vZ}, v13, 4, v15
    """)
    fill.append(g.srd(OUT, 24, 8388608) + g.srd(XA, 4, 4194304))
    fill.append(f"""
    s_getpc_b64 s[{TBL}:{TBL+1}]
    s_add_u32 s{TBL}, s{TBL}, fn_tables@rel32@lo+4
    s_addc_u32 s{TBL+1}, s{TBL+1}, fn_tables@rel32@hi+12
    s_and_b32 s{TBL+1}, s{TBL+1}, 0xffff
    s_mov_b32 s{TBL+2}, {TB.TBL_SIZE}
    s_mov_b32 s{TBL+3}, 0x20000
    """)
    fill.append(f"""
    s_lshl3_add_u32 s{sFlKV}, s{sRB}, s{sG}
    s_lshl_b32 s{sFlKV}, s{sFlKV}, 2
    s_add_u32 s{sFlKV}, s{sFlKV}, {FL_KV}
    s_lshl_b32 s{sKV}, s{sX}, 15
    s_add_u32 s{sKV}, s{sKV}, s{sWb}
    s_add_u32 s{sKV2}, s{sKV}, 16384
    s_lshl_b32 s{sF1}, s{sJ}, 5
    s_add_u32 s{sF1}, s{sF1}, s{sCB}
    s_lshl_b32 s{sFl2}, s{sF1}, 2
    s_add_u32 s{sFl2}, s{sFl2}, {FL_Z2}
    s_lshl_b32 s{sSt2}, s{sF1}, 12
    s_add_u32 s{sSt2}, s{sSt2}, {WS_Z2}
    s_lshl_b32 s{sF1}, s{sF1}, 6
    """)
    fill.append(f"""
    s_lshl_b32 s{sSt1}, s{sCB}, 5
    s_add_u32 s{sSt1}, s{sSt1}, s{sJ}
    s_lshl_b32 s{sFl1}, s{sSt1}, 2
    s_add_u32 s{sFl1}, s{sFl1}, {FL_Z1}
    s_lshl_b32 s{sSt1}, s{sSt1}, 12
    s_add_u32 s{sSt1}, s{sSt1}, {WS_Z1}
    s_lshl_b32 s{sPo1}, s{sCB}, 7
    s_add_u32 s{sPo1}, s{sPo1}, {FL_Z1}
    s_lshl_b32 s{sPo2}, s{sJ}, 7
    s_add_u32 s{sPo2}, s{sPo2}, {FL_Z2}
    s_lshl_b32 s{sTab2}, s{sJ}, 13
    s_add_u32 s{sTab2}, s{sTab2}, {TB.OFF_T2}
    """)
    def zoff(dst, hi, lo, base):
        return f"""
        s_lshl_b32 s{dst}, s{hi}, 17
        s_lshr_b32 s{sT1}, s{lo}, 4
        s_lshl_b32 s{sT1}, s{sT1}, 11
        s_add_u32 s{dst}, s{dst}, s{sT1}
        s_and_b32 s{sT1}, s{lo}, 15
        s_lshl_b32 s{sT1}, s{sT1}, 5
        s_add_u32 s{dst}, s{dst}, s{sT1}
        s_add_u32 s{dst}, s{dst}, {base}
        """
    fill.append(zoff(sF2, sCB, sJ, WS_Z1))
    fill.append(zoff(sF3, sJ, sCB, WS_Z2))
    fill.append(f"""
    s_lshl_b32 s{sT1}, s{sCB}, 6
    s_add_u32 s{sRow}, s{sT1}, s{sJ}
    s_sub_u32 s{sOst}, s{sT1}, {1024-32}
    s_cmp_lt_u32 s{sCB}, 16
    s_cselect_b32 s{sT1}, s{sT1}, s{sOst}
    s_cmp_eq_u32 s{sJ}, 0
    s_cselect_b32 s{sRow}, s{sT1}, s{sRow}
    s_lshl2_add_u32 s{sT1}, s{sG}, s{sW}
    s_lshl_b32 s{sOst}, s{sRB}, 5
    s_add_u32 s{sOst}, s{sOst}, s{sT1}
    s_lshl_b32 s{sFlO}, s{sOst}, {opt.fsp}
    s_add_u32 s{sFlO}, s{sFlO}, {FL_O}
    s_lshl_b32 s{sOst}, s{sOst}, 12
    s_add_u32 s{sOst}, s{sOst}, {WS_O}
    """)
    fill.append(f"""
    s_lshl_b32 s{sPoO}, s{sRB}, {5+opt.fsp}
    s_add_u32 s{sPoO}, s{sPoO}, {FL_O}
    s_lshl_b32 s{sLow}, s{sW}, 7
    s_add_u32 s{sLow}, s{sLow}, s{sG}
    s_lshl_b32 s{sLow}, s{sLow}, 8
    s_lshl_b32 s{sOwn[0]}, s{sG}, 14
    s_add_u32 s{sOwn[1]}, s{sOwn[0]}, 8192
    s_and_b32 s{sT0}, s{sJ}, 7
    s_lshl_b32 s{sT0}, s{sT0}, 1
    s_cmp_eq_u32 s{sT0}, 14
    s_cselect_b32 s{sT0}, 0, s{sT0}
    s_lshl1_add_u32 s{sT1}, s{sG}, 2
    """)
    for c0 in range(0, 14, 4):
        L = []
        for c in range(c0, min(c0 + 4, 14)):
            L += [f"s_add_u32 s{sIdx[c]}, s{sT0}, s{sT1}", f"s_and_b32 s{sIdx[c]}, s{sIdx[c]}, 15", f"s_lshl_b32 s{sIdx[c]}, s{sIdx[c]}, 13",
                  f"s_add_u32 s{sT0}, s{sT0}, 1", f"s_cmp_eq_u32 s{sT0}, 14", f"s_cselect_b32 s{sT0}, 0, s{sT0}"]
        fill.append(L)
    XS, XM = 128, 2047
    nfill = len(fill)
    def take_vm(lst, n=1):
        out = []
        while lst and n:
            x = lst.pop(0); out.append(x)
            if isinstance(x, I) and x.kind == "vm": n -= 1
        return out
    for n in range(8):
        if n % 4 == 0: e(f"s_add_u32 m0, s{sT2}, {1024*n}\ns_nop 0")
        e(kvx[n])
        if n >= opt.nofill: e(fill.pop(0))
    w0 = dmaW(0)
    for n in range(opt.w0n): e(w0[1][n]); e(fill.pop(0))
    while len(fill) > nfill - 2: e(fill.pop(0))
    e(VM(f"buffer_load_dword v143, off, {sr(WS,4)}, s{sMode} sc1", "kv"))
    for n in range(16 - opt.wf):
        if opt.walk and n == opt.wpos:
            while len(fill) > 23 - 9: e(fill.pop(0))
            e(["s_mov_b64 exec, 0"] + sum([[f"s_cmp_eq_u32 s{sW}, {w}", f"s_cbranch_scc1 Lpad{w}"] for w in range(3)], []) + ["s_branch Lpad3", "Lwalk_ret:", "s_mov_b64 exec, -1"])
        e(kvw1())
        if fill: e(fill.pop(0))
        if len(fill) > 16 - opt.wf - n - 1: e(fill.pop(0))
    print("fillers left", len(fill), file=sys.stderr) if fill else None
    while fill: e(fill.pop(0))
    if opt.fine: e("s_memrealtime s[10:11]")
    later = w0[0] + ["s_nop 0"] + w0[1][opt.w0n:] + w0[2] + burst(dmaX(0, XS, XM)) + burst(dmaW(1)) + burst(dmaX(1, XS, XM)) + burst(dmaW(2))
    e(take_vm(later, opt.pre1))
    if opt.stamps:
        e(f"s_lshl2_add_u32 s8, s2, s{sW}\ns_lshl_b32 s8, s8, 8\ns_add_u32 s8, s8, {WS_ST}")
        opt.names.append("entry"); g.nst += 1
        if opt.dbg:
            e(g.srd(12, 26, 256))
            e(f"""
            s_or_b32 s9, s{sW}, s{sJ}
            s_cmp_lg_u32 s9, 0
            s_cbranch_scc1 Lnost0
            v_not_b32 v195, s3
            s_mov_b64 exec, 1
            buffer_atomic_umax v195, off, s[12:15], 0
            s_mov_b64 exec, -1
            Lnost0:
            """)
        else:
            e(f"v_mov_b32 v195, s3\nbuffer_store_dword v195, off, {sr(WS,4)}, s8")
            if opt.fine:
                opt.names.append("kv issued"); g.nst += 1
                e(f"s_waitcnt lgkmcnt(0)\nv_mov_b32 v195, s10\nbuffer_store_dword v195, off, {sr(WS,4)}, s8 offset:8")
    e(Wt(vm="kv"))
    g.stamp("kv landed")
    for ks in range(8):
        e(LG(f"ds_read_b128 {vr(4*ks,4)}, v{136+(ks&3)} offset:{256*(ks>>2)}", f"k{ks}"))
        for b in range(2):
            for ee in range(2):
                e(LG(f"ds_read_b64_tr_b16 {vr(64+8*ks+4*b+2*ee,2)}, v{140+b} offset:{2048*ks+256*ee}", f"k{ks}"))
        if ks == 0: e(f"v_readfirstlane_b32 s{sTAG}, v143")
        if ks == 1: e(f"s_mul_i32 s{sTAG}, s{sTAG}, 0x9e3779b1\ns_add_u32 s{sTAG}, s{sTAG}, 0x7f4a7c15")
        e(take_vm(later))
    e(Wt(lg="k4"))
    e(f"s_bitcmp1_b32 s{sG}, 0\ns_cbranch_scc1 Lkv_v")
    mid = [take_vm(later) for _ in range(4)]
    for var in range(2):
        if var == 1: e("Lkv_v:")
        for ks in range(8):
            if ks == 5: e("s_waitcnt lgkmcnt(0)")
            for b in range(2):
                w = vr(64 + 8 * ks + 4 * b, 4); x = vr(4 * ks, 4); d = vr(32 + 4 * b, 4)
                c = "0" if ks == 0 else d
                e(f"v_mfma_f32_16x16x32_bf16 {d}, {w}, {x}, {c}" if var == 0 else f"v_mfma_f32_16x16x32_bf16 {d}, {x}, {w}, {c}")
            if ks % 2 == 0: e(mid[ks >> 1] if var == 0 else [x.t if isinstance(x, I) else x for x in mid[ks >> 1]])
        if var == 0: e("s_branch Lkv_j")
    e("Lkv_j:")
    e(Wt(lg="all"))
    e(f"""
    s_cmp_eq_u32 s{sW}, 3
    s_cselect_b32 s{sT1}, s{sT2}, s{sT3}
    v_add_u32 v13, s{sT1}, v{v16}
    """)
    e(later); later = []
    e(f"""
    s_cmp_eq_u32 s{sW}, 0
    s_cbranch_scc1 Lkv_nw
    s_nop 3
    ds_write_b128 v13, v[32:35]
    ds_write_b128 v13, v[36:39] offset:1024
    s_waitcnt lgkmcnt(0)
    Lkv_nw:
    s_barrier
    s_cmp_lg_u32 s{sW}, 0
    s_cbranch_scc1 Lkv_done
    v_add_u32 v13, {80*1024}, v{v16}
    v_add_u32 v14, {136*1024}, v{v16}
    ds_read_b128 v[40:43], v13
    ds_read_b128 v[44:47], v13 offset:1024
    ds_read_b128 v[48:51], v14
    ds_read_b128 v[52:55], v14 offset:1024
    ds_read_b128 v[56:59], v14 offset:8192
    ds_read_b128 v[60:63], v14 offset:9216
    s_lshr_b32 s{sT1}, s{sG}, 2
    s_lshl1_add_u32 s{sT0}, s{sRB}, s{sT1}
    s_lshl_b32 s{sT0}, s{sT0}, 12
    s_bfe_u32 s{sT1}, s{sG}, 0x10001
    s_lshl_b32 s{sT2}, s{sT1}, 8
    s_lshl_b32 s{sT1}, s{sT1}, 10
    s_add_u32 s{sT1}, s{sT1}, 2048
    s_bitcmp1_b32 s{sG}, 0
    s_cselect_b32 s{sT1}, s{sT1}, s{sT2}
    s_cselect_b32 s{sT2}, 1.0, {hex(f2u(1.4426950408889634/32**0.5))}
    s_mov_b32 s{sT3}, s{sT2}
    s_add_u32 s{sT0}, s{sT0}, s{sT1}
    """)
    for p in range(3):
        e(f"s_waitcnt lgkmcnt({4-2*p})")
        for i in range(4):
            e(f"v_pk_add_f32 {vr(32+2*i,2)}, {vr(32+2*i,2)}, {vr(40+8*p+2*i,2)}")
    for i in range(4): e(f"v_pk_mul_f32 {vr(32+2*i,2)}, {vr(32+2*i,2)}, s[{sT2}:{sT3}]")
    for i in range(4): e(f"v_cvt_pk_bf16_f32 v{40+i}, v{32+2*i}, v{33+2*i}")
    e(f"""
    s_bitcmp1_b32 s{sG}, 0
    s_cbranch_scc0 Lkv_st
    v_permlane16_swap_b32 v40, v42
    v_permlane16_swap_b32 v41, v43
    Lkv_st:
    buffer_store_dwordx4 v[40:43], v142, {sr(WS,4)}, s{sT0} offen sc1
    Lkv_done:
    """)
    LD = opt.lead
    pl = [dmaX(2, XS, XM)]
    for c in range(3, LD): pl += [dmaW(c), dmaX(c, XS, XM)]
    lead = []
    for p in pl: lead += burst(p)
    e(take_vm(lead, max(0, 2 + 6 * (LD - 3) - 3)))
    g.stamp("kv done")
    gaps = {-1: lead}
    g.tail += ["Lkvflag:", "KVFLAGWAIT"] + g.flag(56, sFlKV) + ["s_branch Lkvflag_b"]
    gaps.setdefault(opt.fgap, []).extend([f"s_cmp_eq_u32 s{sW}, 0", "s_cbranch_scc1 Lkvflag", "Lkvflag_b:"])
    init = [f"v_mov_b64 {vr(i,2)}, 0" for i in range(O[0], Lr[1] + 4, 2)]
    init += [f"v_mov_b32 v{IDX}, 0xdddddddd", "v_mov_b32 v60, 0x3f803f80", f"v_and_b32 v61, 7, v{vL}", "v_cmp_eq_u32 vcc, 0, v61",
             "v_cmp_eq_u32 s[10:11], 4, v61", "s_nop 1"]
    init += [f"v_cndmask_b32 v{ONES}, 0, v60, vcc", f"v_cndmask_b32 v{ONES+1}, 0, v60, vcc",
             f"v_cndmask_b32 v{ONES+2}, 0, v60, s[10:11]", f"v_cndmask_b32 v{ONES+3}, 0, v60, s[10:11]"]
    for n, x in enumerate(init): gaps.setdefault(18 + n, []).append(x)
    kvpoll = f"buffer_load_dwordx4 v[56:59], v{v16}, {sr(WS,4)}, s{sT5} offen sc1"
    if opt.pf2:
        fill2 = ["s_getpc_b64 s[8:9]", "Lpc2:", "s_and_b32 s9, s9, 0xffff", "s_mov_b32 s10, Lcode_end-Lpc2", "s_mov_b32 s11, 0x20000",
                 f"s_lshl2_add_u32 s12, s{sJ}, s{sW}", "s_lshl_b32 s12, s12, 10",
                 VM(f"buffer_load_dwordx4 {vr(vDummy,4)}, v{v16}, s[8:11], s12 offen")]
        gaps.setdefault(opt.pf2, []).extend(fill2)
    b0 = opt.kvb
    gaps.setdefault(8 * b0 - 4 - opt.ppos, []).extend([f"s_mov_b32 s{sT5}, {FL_KV}", VM(kvpoll, "kvpoll")])
    if opt.fine:
        gaps.setdefault(5, []).extend(g.stampl("q c0"))
        gaps.setdefault(45, []).extend(g.stampl("q c5"))
        gaps.setdefault(8 * b0 - 2, []).extend(g.stampl("q prechk"))
    gaps.setdefault(8 * b0 - 1, []).extend([Wt(vm="kvpoll")] + g.check(4, 56, kvpoll) + (g.stampl("q postchk") if opt.fine else []))
    halves = [(0, 0), (0, 1), (1, 0), (1, 1), (2, 0), (2, 1), (3, 0), (3, 1)]
    ab = {c: [dmaW(c + LD), dmaX(c + LD, XS, XM)] for c in range(16 - LD)}
    for i in range(opt.nkv):
        ab.setdefault(max(b0, 11 + i), []).append(dmaKV(*halves.pop(0)))
    for i in range(opt.walk, 128, 3 * opt.walk) if opt.walk else []: gaps.setdefault(i | 1, []).extend(g.pad())
    def kvaddr(T, frag):
        a = KB[(T >> 3) % 4] + (T & 7) * 4096 + frag * 1024
        return (vKlo, a) if a < 65536 else (vKhi, a - 65536)
    def rdKV(dst, T, frag, tag):
        r, o = kvaddr(T, frag); return LG(f"ds_read_b128 {vr(dst,4)}, v{r} offset:{o}", tag)
    pre_rd = [rdKV(K[t] + 4 * k, t, k, f"pk{t}") for t in range(2) for k in range(2)] + [rdKV(V[0] + 4 * k, 0, 2 + k, "pv") for k in range(2)]
    for i in range(3): gaps.setdefault(121 + i, []).extend(pre_rd[2 * i:2 * i + 2])
    rest = gemm(g, "q", lambda c: ((vA + (c % 6) // 3, vA2 + (c % 6) // 3), (c % 3) * 16384), lambda c: (vB, (c % 6) * 8192, (0, 1024, 2048, 3072)),
                {**{c: [f"W{c}", f"X{c}"] for c in range(16)}, 16: ["KV0a"]}, ab, gaps)
    g.stamp("q gemm done")
    g.tail += ["Lepoch:", f"s_mov_b32 s{sT0}, {FL_EPOCH}"] + g.flag(56, sT0) + ["s_branch Lepoch_b"]
    e(rest)
    e(f"s_or_b32 s{sT0}, s2, s{sW}\ns_cbranch_scc0 Lepoch\nLepoch_b:")
    if opt.exp == 4:
        e(f"s_getpc_b64 s[{sT2}:{sT3}]\ns_lshl_b32 s{sT0}, s{sW}, 13\nv_add_u32 v60, s{sT0}, v{v16}\nv_add_u32 v61, 4096, v60")
        for n in range(8): e(f"global_load_dwordx4 {vr(vDummy,4)}, v{60+(n>>2)}, s[{sT2}:{sT3}] offset:{1024*(n&3)}")
    def maxtree(dst, s, first):
        L = []
        if first:
            L.append(f"v_max3_f32 v{dst}, v{s}, v{s+1}, v{s+2}")
            L += [f"v_max3_f32 v{dst}, v{dst}, v{s+i}, v{s+i+1}" for i in range(3, 15, 2)]
            L.append(f"v_max_f32 v{dst}, v{dst}, v{s+15}")
        else:
            L += [f"v_max3_f32 v{dst}, v{dst}, v{s+i}, v{s+i+1}" for i in range(0, 16, 2)]
        return L
    def tabload(dst, sreg, n, tag):
        return [VM(f"buffer_load_dwordx4 {dst(m)}, v{v16}, {sr(TBL,4)}, s{sreg+(m>>2)} offen offset:{1024*(m&3)}", tag) for m in range(n)]
    p1 = []
    if not opt.nofft:
        e(f"s_mov_b32 m0, s{sMisc}\ns_nop {opt.pnop}")
        for n in range(4):
            p1 += [[VM(f"buffer_load_dwordx4 v{vP1}, {sr(XA,4)}, s{sF1} offen offset:{1024*n} {opt.d1_sc} lds", "d1")] +
                   ([f"s_add_u32 s{sF1}, s{sF1}, {512*1024-1024}"] if n < 3 else []), []]
    else: e("s_nop 7")
    nx = lambda: p1.pop(0) if p1 else []
    def qcv(qb):
        L = []
        for m in range(2):
            for nn in range(2):
                d = 4 * (2 * (2 * qb + nn) + m)
                L += [f"v_cvt_pk_bf16_f32 v{Q[qb]+4*m+2*nn+i}, v{d+2*i}, v{d+2*i+1}" for i in range(2)]
        return L + [f"v_permlane16_swap_b32 v{Q[qb]+4*m+i}, v{Q[qb]+4*m+2+i}" for m in range(2) for i in range(2)]
    c0_, c1_ = qcv(0), qcv(1)
    def qk0(t, qb, k, s):
        return f"v_mfma_f32_32x32x16_bf16 {vr(s,16)}, {vr(K[t]+4*k,4)}, {vr(Q[qb]+4*k,4)}, {vr(s,16) if k else 0}"
    tA = maxtree(vT0, S[2], True); tB = maxtree(vT0, S[3], False); tC = maxtree(vT1, S[0], True); tD = maxtree(vT1, S[1], False)
    e(c0_ + nx() + [Wt(lg="pk0", must=True), "s_nop 0", qk0(0, 0, 0, S[2])] + c1_[:6] + nx() + [qk0(0, 0, 1, S[2])] + c1_[6:] + nx())
    e([Wt(lg="pk1"), qk0(1, 0, 0, S[3])] + nx() + [qk0(1, 0, 1, S[3])] + nx() + [qk0(0, 1, 0, S[0])] + nx() + ["s_nop 3"] + tA[:2])
    e([qk0(0, 1, 1, S[0])] + tA[2:] + [qk0(1, 1, 0, S[1])] + ["s_nop 0"] + nx() + tB[:4] + [qk0(1, 1, 1, S[1])] + tB[4:] + tC + tD)
    def finish_max(off, mid):
        lit = hex(f2u(-off)) if off else 0
        e(f"""
        v_mov_b32 v{vT2}, v{vT0}
        v_mov_b32 v{vT3}, v{vT1}
        s_nop 0
        v_permlane32_swap_b32 v{vT0}, v{vT2}
        v_permlane32_swap_b32 v{vT1}, v{vT3}
        v_max_f32 v{vT0}, v{vT0}, v{vT2}
        v_max_f32 v{vT1}, v{vT1}, v{vT3}
        v_sub_f32 v{M[0]}, {lit}, v{vT0}
        v_sub_f32 v{M[0]+1}, {lit}, v{vT0}
        """)
        for i in range(2, 16, 2): e(f"v_mov_b64 {vr(M[0]+i,2)}, {vr(M[0],2)}")
        e(f"v_sub_f32 v{M[1]}, {lit}, v{vT1}\nv_sub_f32 v{M[1]+1}, {lit}, v{vT1}")
        e(mid)
        for i in range(2, 16, 2): e(f"v_mov_b64 {vr(M[1]+i,2)}, {vr(M[1],2)}")
    finish_max(opt.off, [f"v_mfma_f32_32x32x16_bf16 {vr(S[0],16)}, {vr(K[0],4)}, {vr(Q[0],4)}, {vr(M[0],16)}",
                         f"v_mfma_f32_32x32x16_bf16 {vr(S[0],16)}, {vr(K[0]+4,4)}, {vr(Q[0]+4,4)}, {vr(S[0],16)}"])
    e("s_nop 3")
    e(Wt(vm=["KV0b", "KV1a"])); e("s_barrier")
    g.stamp("attn start"); g.stamp("attn start", True)
    sl = {k: {} for k in ("q1", "q2", "p1", "p2", "x", "va", "top")}
    def put(kind, n, l): sl[kind].setdefault(n, []).extend(l if isinstance(l, list) else [l])
    def put_group(grp, n0, kind="p1"):
        pre, ops, post = grp
        put("q2", n0, pre)
        for i, op in enumerate(ops): put(kind, n0 + i, op)
        n1 = n0 + len(ops) - 1
        for i, x in enumerate(post): put(*(("p2", n1) if i == 0 or opt.rebal else ("q1", n1 + i)), x)
        return n0 + len(ops)
    def fftdata(srd, voff, sreg, step, n0, tag):
        put("q2", n0, f"s_mov_b32 m0, s{sMisc}")
        for n in range(4):
            put("p1", n0 + n, VM(f"buffer_load_dwordx4 v{voff}, {sr(srd,4)}, s{sreg} offen offset:{1024*n} sc1 lds", tag))
            if n < 3: put(*(("p2", n0 + n) if opt.rebal else ("q1", n0 + n + 1)), f"s_add_u32 s{sreg}, s{sreg}, {step}")
    def comp(n0, aT, sst, dtag, ttag, stag):
        put("q2", n0, Wt(vm=dtag)); put("q1", n0 + 4, Wt(vm=ttag))
        for k in range(4):
            for ee in range(2):
                put("p2", n0 + k, LG(f"ds_read_b64_tr_b16 {ar(aD+4*k+2*ee,2)}, v{vFB+(k>>1)} offset:{(k&1)*2048+ee*512}", f"{stag}r{k}"))
        for i in range(8):
            k, nb = i >> 1, i & 1; d = vr(vFD + 16 * nb, 16)
            put("q2", n0 + 4 + i, Wt(lg=f"{stag}r{k}"))
            put("x", n0 + 4 + i, f"v_mfma_f32_32x32x16_bf16 {d}, {ar(aD+4*k,4)}, {ar(aT+16*nb+4*k,4)}, {'0' if k==0 else d}")
        for q in range(4):
            nb, i = q >> 1, q & 1
            for m_ in range(4 * i, 4 * i + 4):
                put("va", n0 + 13 + q, f"v_cvt_pk_bf16_f32 v{vFD+16*nb+m_}, v{vFD+16*nb+2*m_}, v{vFD+16*nb+2*m_+1}")
            put("p1", n0 + 14 + q, VM(f"buffer_store_dwordx4 {vr(vFD+16*nb+4*i,4)}, v{v16}, {sr(WS,4)}, s{sst} offen offset:{1024*q} sc1", stag))
    def putflag(n, sfl, stag):
        put("q2", n, Wt(vm=stag)); put("va", n, f"v_mov_b32 v{vT0}, s{sTAG}")
        put("p2", n, VM(f"buffer_store_dword v{vT0}, v{vOne}, {sr(WS,4)}, s{sfl} offen sc1"))
    def putpoll(n, nchk, spo, tag):
        ld = f"buffer_load_dword v{vPoll}, v{vP4}, {sr(WS,4)}, s{spo} offen sc1"
        put("p2", n, VM(ld, tag))
        put("q1", nchk, Wt(vm=tag)); put("top2" if False else "q2", nchk, g.check(1, vPoll, ld))
    early = {(1, 1): 0, (2, 0): 4}
    t1slot = "p2" if (1, 1) in halves else "p1"
    n = 8
    for hv in halves:
        if hv in early: put_group(dmaKV(*hv), early[hv])
        else: n = put_group(dmaKV(*hv), n)
    assert n == 20
    for (ch, hf), n in {(4, 0): 20, (4, 1): 30, (5, 0): 34, (5, 1): 38, (6, 0): 48, (6, 1): 52, (7, 0): 64, (7, 1): 68}.items():
        put_group(dmaKV(ch, hf), n)
    put("q1", 70, [f"s_mov_b32 s{GW}, s22"]); put("q1", 71, [f"s_and_b32 s{GW+1}, s23, 0xffff"])
    for c, n in ((2, 84), (3, 88), (0, 92), (1, 96), (4, 100), (5, 120), (6, 124)):
        pre, ops, _ = dmaWo(c, ASL[c])
        put("q1", n, pre[1]); put_group(([pre[0]], ops, []), n)
    if not opt.nofft:
        e(f"s_mov_b32 s{sT0}, {TB.OFF_T1}\ns_mov_b32 s{sT1}, {TB.OFF_T1+4096}")
        for m, op in enumerate(tabload(lambda m: ar(aT1 + 4 * m, 4), sT0, 8, "t1")): put(t1slot, m + (1 if t1slot == "p2" else 0), op)
        comp(12, aT1, sSt1, "d1", "t1", "s1")
        putflag(37, sFl1, "s1")
        put("q1", 22, f"s_mov_b32 s{sT0}, s{sTab2}"); put("q1", 23, f"s_add_u32 s{sT1}, s{sTab2}, 4096")
        for m, op in enumerate(tabload(lambda m: ar(aT2 + 4 * m, 4), sT0, 8, "t2")): put("p1", 24 + m if m < 2 else 40 + m, op)
        putpoll(51, 55, sPo1, "po1")
        fftdata(WS, vZ, sF2, 32768 - 1024, 56, "d2")
        put("q1", 53, f"s_mov_b32 s{sT0}, {TB.OFF_T3}"); put("q1", 54, f"s_mov_b32 s{sT1}, {TB.OFF_T3+4096}")
        for m, op in enumerate(tabload(lambda m: ar(aT3 + 4 * m, 4), sT0, 6, "t3")): put("p1", 60 + m if m < 4 else 68 + m, op)
        put("q1", 61, f"s_mov_b32 s{sT2}, {TB.OFF_TX}")
        put("p1", 74, tabload(lambda m: ar(aTX, 4), sT2, 1, "t3"))
        comp(66, aT2, sSt2, "d2", "t2", "s2")
        putflag(91, sFl2, "s2")
        put("q1", 74, f"s_mov_b32 s{sT0}, {TB.OFF_TW}"); put("q1", 75, f"s_mov_b32 s{sT1}, {TB.OFF_TW+4096}")
        for m, op in enumerate(tabload(lambda m: ar(aTW + 4 * m, 4), sT0, 8, "t3")): put("p1", 75 + m if m < 5 else 105 + m, op)
        putpoll(104, 115, sPo2, "po2")
        fftdata(WS, vZ, sF3, 32768 - 1024, 116, "d3")
    if opt.rebal:
        for n in sorted(sl["q1"]):
            for x in [x for x in sl["q1"][n] if isinstance(x, str)]:
                for k, m in (("p2", n - 1), ("q2", n - 1), ("p2", n - 2), ("q2", n - 2)):
                    if (k, m) == ("p2", n - 1) if f"s{sOffW}," in x else not sl[k].get(m):
                        sl["q1"][n].remove(x); put(k, m, x); break
    for k in ("p1",):
        for n_, l in sl[k].items(): assert len(l) <= 1, (k, n_, l)
    if opt.loop2: e("s_mov_b32 s3, 0\nLpass:")
    for n in range(128):
        if opt.loop2 and n == 64:
            e("s_add_u32 s3, s3, 1\ns_cmp_lt_u32 s3, 2\ns_cbranch_scc1 Lpass\ns_branch Lpass_end")
        X = n & 1; Y = 1 - X
        se, sp, sq = S[n % 4], S[(n - 1) % 4], S[(n + 1) % 4]
        tq = ((n + 1) // 2) % 2; tv = ((n - 1) // 2) % 2
        E = [f"v_exp_f32 v{se+i}, v{se+i}" for i in range(16)]
        Q1 = f"v_mfma_f32_32x32x16_bf16 {vr(sq,16)}, {vr(K[tq],4)}, {vr(Q[Y],4)}, {vr(M[Y],16)}"
        Q2 = f"v_mfma_f32_32x32x16_bf16 {vr(sq,16)}, {vr(K[tq]+4,4)}, {vr(Q[Y]+4,4)}, {vr(sq,16)}"
        P1 = f"v_smfmac_f32_32x32x32_bf16 {vr(O[Y],16)}, {vr(V[tv],4)}, {vr(sp,8)}, v{IDX}"
        P2 = f"v_smfmac_f32_32x32x32_bf16 {vr(O[Y],16)}, {vr(V[tv]+4,4)}, {vr(sp+8,8)}, v{IDX}"
        L1 = f"v_smfmac_f32_16x16x64_bf16 {vr(Lr[Y],4)}, {vr(ONES,4)}, {vr(sp,8)}, v{IDX}"
        L2 = f"v_smfmac_f32_16x16x64_bf16 {vr(Lr[Y],4)}, {vr(ONES,4)}, {vr(sp+8,8)}, v{IDX}"
        if n == 0: P1 = P2 = L1 = L2 = None
        if n == 127: Q1 = Q2 = None
        T = n >> 1
        if X == 0: D = [rdKV(K[tq] + 4 * k, T + 2, k, f"h{n}") for k in range(2)] if T + 2 < 64 else [None, None]
        else: D = [rdKV(V[1 - tv] + 4 * k, T + 1, 2 + k, f"h{n}") for k in range(2)] if T + 1 < 64 else [None, None]
        if n % 16 == 0 and n:
            c = n >> 4
            e(Wt(vm=[f"KV{c}b", f"KV{c+1}a"] + ([f"oW{k}" for k in range(5)] if c == 7 else []))); e("s_barrier" if c not in opt.nob else "s_nop 0")
        if opt.afine and n % 8 == 0 and n: g.stamp(f"a{n}")
        if opt.walk and n % opt.walk == 0: put("q2", n, g.pad())
        w = Wt(lg=[f"h{n-2}", "pv"])
        gq = lambda k: sl[k].get(n, [])
        xm = gq("x")
        if xm: a, b, c_, d_ = 8, 9, 12, 13
        else: a, b, c_, d_ = 9, 11, 14, 16
        e([Q1, w] + gq("q1") + E[0:3] + [Q2] + gq("q2") + E[3:6] + [P1] + gq("p1") + E[6:a] + [L1, D[0]] + E[a:b] + gq("va") +
          [P2] + gq("p2") + E[b:c_] + [L2, D[1]] + E[c_:d_] + xm + E[d_:16])
    e(sl["q1"].get(128, []))
    if opt.loop2: e("Lpass_end:")
    e(f"""
    v_rcp_f32 v{vT0}, v{Lr[0]}
    v_smfmac_f32_16x16x64_bf16 {vr(Lr[1],4)}, {vr(ONES,4)}, {vr(S[3],8)}, v{IDX}
    v_smfmac_f32_16x16x64_bf16 {vr(Lr[1],4)}, {vr(ONES,4)}, {vr(S[3]+8,8)}, v{IDX}
    v_smfmac_f32_32x32x32_bf16 {vr(O[1],16)}, {vr(V[1],4)}, {vr(S[3],8)}, v{IDX}
    v_smfmac_f32_32x32x32_bf16 {vr(O[1],16)}, {vr(V[1]+4,4)}, {vr(S[3]+8,8)}, v{IDX}
    s_mov_b32 s{sMode}, 0
    """.replace(f"v_rcp_f32 v{vT0}, v{Lr[0]}\n", "s_nop 0\n"))
    g.stamp("attn end"); g.stamp("attn end", True)
    e("s_nop 2\nLa_norm:")
    for qb in range(2):
        e(f"v_rcp_f32 v{2*qb}, v{Lr[qb]}\ns_nop 0\nv_mov_b32 v{2*qb+1}, v{2*qb}")
        for i in range(8): e(f"v_pk_mul_f32 {vr(O[qb]+2*i,2)}, {vr(O[qb]+2*i,2)}, {vr(2*qb,2)}")
        for i in range(8): e(f"v_cvt_pk_bf16_f32 v{8+8*qb+i}, v{O[qb]+2*i}, v{O[qb]+2*i+1}")
        for k in range(2):
            e(VM(f"buffer_store_dwordx4 {vr(8+8*qb+4*k,4)}, v{v16}, {sr(WS,4)}, s{sOst} offen offset:{2048*qb+1024*k} sc1", "ost"))
    e(f"v_maximum3_f32 v4, v{Lr[0]}, v{Lr[1]}, abs(v{O[0]})")
    for i in range(1, 31, 2): e(f"v_maximum3_f32 v4, v4, abs(v{O[0]+i}), abs(v{O[0]+i+1})")
    e(f"""
    v_maximum3_f32 v4, v4, abs(v{O[0]+31}), v4
    s_mov_b32 s{sT0}, {hex(f2u(2.0**110))}
    v_cmp_nlt_f32 vcc, v4, s{sT0}
    """)
    if opt.force_fb: e("s_nop 1\ns_mov_b64 vcc, -1")
    e(f"""
    s_cmp_eq_u64 vcc, 0
    s_cselect_b32 s{sT0}, 1, s{sMode}
    s_cmp_eq_u32 s{sT0}, 0
    s_cbranch_scc1 Lfb
    """)
    g.stamp("o stored")
    pA = 32; pR = 48; pI = 64; pU = 80; pT = 96; pF = 104; pM = 112; pX = 120; pW = 128
    vAs = 5; vBm = 176; vPO = 7
    p3st = [f"buffer_store_dwordx4 {vr(pF,4)}, v{pX+1}, {sr(OUT,4)}, s{sF1} offen {opt.p3_sc}",
            f"buffer_store_dwordx4 {vr(pF+4,4)}, v{pX+1}, {sr(OUT,4)}, s{sF1} offen offset:512 {opt.p3_sc}",
            f"buffer_store_dwordx4 {vr(pM,4)}, v{pX+2}, {sr(OUT,4)}, s{sF2} offen offset:512 {opt.p3_sc}",
            f"buffer_store_dwordx4 {vr(pM+4,4)}, v{pX+2}, {sr(OUT,4)}, s{sF2} offen {opt.p3_sc}"]
    zero_im = [f"v_mov_b64 {vr(pA+8+i,2)}, 0" for i in range(0, 8, 2)]
    def p3(main):
        L = []; a = L.append
        T = (lambda t, tag: LG(t, tag)) if main else (lambda t, tag: t)
        for k in range(4):
            for ee in range(2):
                a(T(f"ds_read_b64_tr_b16 {vr(pA+4*k+2*ee,2)}, v{vFB+(k>>1)} offset:{(k&1)*2048+ee*512}", f"b{k}"))
        stage = []; stage2 = []; wl = []
        if main:
            L += [f"s_sub_u32 s{sF2}, 2048, s{sRow}", f"s_and_b32 s{sF2}, s{sF2}, 2047", f"s_lshl_b32 s{sF2}, s{sF2}, 12",
                  f"s_lshl_b32 s{sF1}, s{sRow}, 12", f"v_add_u32 v{vAs}, 131072, v{vA}", f"v_add_u32 v{vAs+1}, 131072, v{vA2}", f"s_cmp_eq_u32 s{sRow}, 0", "s_cbranch_scc1 Lp3_real", "Lp3_mm:"]
            for c in range(7):
                hi = ASL[c] // 49152
                r, o = ((vAs, vAs + 1), 0) if hi > 1 else ((vA + hi, vA2 + hi), ASL[c] % 49152)
                for u in range(2):
                    for m in range(2):
                        for ee in range(2):
                            stage.append(LG(f"ds_read_b64_tr_b16 {ar(aW(c)+8*u+4*m+2*ee,2)}, v{r[m]} offset:{o+u*8192+ee*1024}", "stg" if c < 5 else "stg2"))
            stage2 = stage[40:]; stage = stage[:40]
            for c in opt.win: wl += burst(dmaWo(c, WSL[c] * 16384))
        else: L += ["s_waitcnt lgkmcnt(0)"] + zero_im + ["s_nop 1"]
        acc = [f"v_accvgpr_read_b32 v{pW+i}, a{aTW+i}" for i in range(32)] + [f"v_accvgpr_read_b32 v{pX+i}, a{aTX+i}" for i in range(3)] if main else []
        for k in range(4):
            if main: a(Wt(lg=f"b{k}"))
            for nb in range(2):
                d = vr((pR, pI)[nb], 16)
                tb = aT3 + (4 * k if nb == 0 else (16 + 4 * k if k < 2 else 4 * (k - 2)))
                a(f"v_mfma_f32_32x32x16_bf16 {d}, {vr(pA+4*k,4)}, {ar(tb,4)}, {'0' if k==0 else d}")
                for _ in range(5):
                    if stage: a(stage.pop(0))
                for _ in range(3):
                    if acc: a(acc.pop(0))
        if main:
            L += acc + g.stampl("beta") + [Wt(vm="ost", lg="stg"), "s_barrier", f"s_cmp_lg_u32 s{sW}, 1", "s_cbranch_scc1 Lnoofl"] + g.flag(0, sFlO) + ["Lnoofl:"] + g.stampl("oflag")
        else: a("s_nop 11")
        for i in range(8):
            r, im, c, s_ = pR + 2 * i, pI + 2 * i, pW + 2 * i, pW + 16 + 2 * i
            L += stage2[2 * i:2 * i + 2] + (take_vm(wl) if i % 2 else []) + [
                f"v_pk_mul_f32 {vr(pT,2)}, {vr(r,2)}, {vr(c,2)}", f"v_pk_mul_f32 {vr(pT+2,2)}, {vr(im,2)}, {vr(c,2)}",
                f"v_pk_fma_f32 {vr(pT,2)}, {vr(im,2)}, {vr(s_,2)}, {vr(pT,2)}",
                f"v_pk_fma_f32 {vr(pT+2,2)}, {vr(r,2)}, {vr(s_,2)}, {vr(pT+2,2)} neg_lo:[0,1,0] neg_hi:[0,1,0]",
                f"v_cvt_pk_bf16_f32 v{pU+i}, v{pT}, v{pT+1}", f"v_cvt_pk_bf16_f32 v{pU+8+i}, v{pT+2}, v{pT+3}"]
        a("s_nop 0")
        for k in range(4):
            a(f"v_mfma_f32_32x32x16_bf16 {vr(pR,16)}, {vr(pU+4*k,4)}, {ar(aT3+4*k,4)}, {'0' if k==0 else vr(pR,16)}")
            L += take_vm(wl)
        if main:
            L += [f"s_lshl_b32 s{sT2}, s{sRB}, 6", f"s_add_u32 s{sT2}, s{sT2}, s{sW}", f"s_lshl_b32 s{sT2}, s{sT2}, 11",
                  f"s_add_u32 s{sT2}, s{sT2}, {WS_O}", f"s_sub_u32 s{sXb}, s{sXb}, {L_X-L_XO}", f"v_add_u32 v{vOX}, s{sT2}, v{v16}",
                  f"v_and_b32 v{vB}, 15, v{vL}", f"v_bfe_u32 v{vBm}, v{vL}, 4, 1", f"v_lshlrev_b32 v{vB}, 4, v{vB}", f"v_lshl_or_b32 v{vB}, v{vBm}, 10, v{vB}",
                  f"v_lshrrev_b32 v{vBm}, 5, v{vL}", f"v_lshl_or_b32 v{vB}, v{vBm}, 9, v{vB}", f"v_add_u32 v{vBm}, {L_MISC}, v{vB}",
                  f"v_add_u32 v{vB}, {L_XO}, v{vB}", f"v_add_u32 v{vBm+2}, s{sMisc}, v{v16}",
                  f"v_and_b32 v{vPO}, 7, v{vL}", f"v_lshl_or_b32 v{vPO}, v{vPO}, 2, 1", f"v_lshlrev_b32 v{vPO}, {opt.fsp}, v{vPO}"]
        else: a("s_nop 11")
        a(T(f"ds_bpermute_b32 v{pR+16}, v{pX}, v{pR}", "bp"))
        for m_ in range(8):
            a(f"v_cvt_pk_bf16_f32 v{pF+m_}, v{pR+2*m_}, v{pR+2*m_+1}")
            if m_ % 4 == 3: L += take_vm(wl)
        for m_ in range(1, 8): a(f"v_cvt_pk_bf16_f32 v{pM+m_}, v{pR+16-2*m_}, v{pR+15-2*m_}")
        L += take_vm(wl)
        for i in range(4): a(f"v_permlane16_swap_b32 v{pF+i}, v{pF+4+i}")
        L += [Wt(lg="bp") if main else "s_waitcnt lgkmcnt(0)", f"v_cvt_pk_bf16_f32 v{pM}, v{pR+16}, v{pR+15}", "s_nop 1"]
        for i in range(4): a(f"v_permlane16_swap_b32 v{pM+i}, v{pM+4+i}")
        return L + wl
    e(g.pad())
    e(Wt(vm=["d3", "t3"]))
    e(p3(True))
    e(g.pad())
    g.tail += ["Lp3_real:", "s_waitcnt lgkmcnt(0)"] + zero_im + [f"v_xor_b32 v{vFB}, 16, v{vFB}", "s_branch Lp3_mm"]
    g.tail += ["Lp3_again:"] + p3st + [f"s_mov_b32 s{sF1}, {1024<<12}", f"s_mov_b32 s{sF2}, {1024<<12}"] + p3(False) + ["s_branch Lp3_end"]
    e(f"s_cmp_eq_u32 s{sRow}, 0\ns_cbranch_scc1 Lp3_again\nLp3_end:")
    for n in range(4): e(LG(f"ds_write_b128 v{vBm+2}, {vr(8+4*n,4)} offset:{1024*n}", "own"))
    epi = f"""
    v_and_b32 v56, 15, v{vL}
    v_lshrrev_b32 v57, 5, v{vL}
    v_bfe_u32 v58, v{vL}, 4, 1
    v_lshl_or_b32 v57, v58, 1, v57
    v_bfe_u32 v58, v{vL}, 1, 2
    v_xor_b32 v57, v57, v58
    v_lshlrev_b32 v57, 4, v57
    v_lshl_or_b32 v56, v56, 6, v57
    v_add_u32 v56, s{sWb}, v56
    v_lshrrev_b32 v58, 2, v{vL}
    v_bfe_u32 v59, v{vL}, 3, 2
    v_and_b32 v60, 3, v{vL}
    v_xor_b32 v59, v59, v60
    v_lshlrev_b32 v59, 4, v59
    v_lshl_or_b32 v59, v58, 6, v59
    v_add_u32 v59, s{sWb}, v59
    v_lshlrev_b32 v60, 4, v60
    v_lshl_or_b32 v58, v58, 12, v60
    s_lshl_b32 s{sT0}, s{sRB}, 18
    s_lshl2_add_u32 s{sT1}, s{sG}, s{sW}
    s_lshl_b32 s{sT1}, s{sT1}, 6
    s_add_u32 s{sT0}, s{sT0}, s{sT1}
    s_add_u32 s{sT0}, s{sT0}, 2048
    s_add_u32 s{sT1}, s{sT0}, 0x10000
    s_add_u32 s{sT2}, s{sT0}, 0x20000
    s_add_u32 s{sT3}, s{sT0}, 0x30000
    """.strip().split("\n")
    if not opt.epig: e([x.strip() for x in epi])
    g.stamp("p3 done")
    opoll = f"buffer_load_dword v{vPoll}, v{vPO}, {sr(WS,4)}, s{sPoO} offen sc1"
    e([f"s_cmp_lg_u32 s{sW}, 3", "s_cbranch_scc1 Lnopoll", opoll, "s_waitcnt vmcnt(0)"] + g.check(1, vPoll, opoll) + ["Lnopoll:", Wt(lg=["own", "stg2"]), "s_barrier"])
    g.stamp("o flags")
    lead = []
    for c in range(2, 2 + opt.xurg): lead += burst(dmaXo(c))
    e(take_vm(lead, 2))
    og = {-1: take_vm(lead, opt.xpre)}
    i = 0
    while lead: og[i] = take_vm(lead); i += 1
    items = [(0, 8 * c - 8, dmaXo(c)) for c in range(2 + opt.xurg, 10)] + [(8 * (c - 7), 8 * c - 8, dmaXo(c)) for c in range(10, 16)]
    items += [(0, 8 * c - 8, dmaWo(c, WSL[c] * 16384)) for c in range(7, 12) if c not in opt.win]
    items += [(8 * (c - 4), 8 * c - 8, dmaWo(c, WSL[c] * 16384)) for c in range(12, 16)]
    while items:
        av = [it for it in items if it[0] <= i]
        if not av: i = min(it[0] for it in items); continue
        it = min(av, key=lambda it: it[1]); items.remove(it)
        pre, ops, _ = it[2]
        og.setdefault(i, []).extend(pre + ([] if len(pre) > 1 else ["s_nop 0"]))
        for op in ops:
            og.setdefault(i, []).append(op); last = i
            i += opt.pace if it[1] - i > opt.slack else 1
        assert last < it[1] - 6, (last, it[1])
    if opt.epig:
        for n, x in enumerate(epi): og.setdefault(n * 8 // len(epi), []).append(x.strip())
    if opt.ofine:
        for c in range(1, 16): og.setdefault(8 * c - 1, []).extend(g.stampl(f"oc{c}"))
    if opt.fine:
        for i, nm in ((13, "o c2"), (45, "o c5"), (85, "o c10")): og.setdefault(i, []).extend(g.stampl(nm))
    for n, x in enumerate(p3st): og.setdefault(opt.dpos + opt.dsp * n, []).append(VM(x))
    grp = {}
    for i in range(2 * opt.walk, 128, 3 * opt.walk) if opt.walk else []: og.setdefault(i | 1, []).extend(g.pad())
    rest = gemm(g, "o", lambda c: ("a", aW(c)) if c < 7 else ((vA + WSL[c] // 3, vA2 + WSL[c] // 3), (WSL[c] % 3) * 16384),
                lambda c: (vBm, c * 8192, (0, 256, 2048, 2304)) if c < 2 else (vB, ((c - 2) % 8) * 8192, (0, 256, 2048, 2304)),
                {c: [f"oX{c}"] + ([f"oW{c}"] if c > 6 else []) for c in range(2, 16)}, grp, og)
    assert not rest
    g.stamp("out gemm done")
    e("s_nop 1")
    for n in range(4):
        for i in range(4): e(f"v_cvt_pk_bf16_f32 v{64+4*n+i}, v{8*n+2*i}, v{8*n+2*i+1}")
        if n: e([f"v_permlane16_swap_b32 v{60+4*n+i}, v{62+4*n+i}" for i in range(2)] + [LG(f"ds_write_b128 v56, {vr(60+4*n,4)} offset:{1024*(n-1)}", f"ew{n-1}")])
    e(["s_nop 0"] + [f"v_permlane16_swap_b32 v{76+i}, v{78+i}" for i in range(2)] + [LG(f"ds_write_b128 v56, {vr(76,4)} offset:3072", "ew3")])
    for n in range(4):
        e(Wt(lg=f"ew{n}"))
        e(LG(f"ds_read_b128 {vr(80+4*n,4)}, v59 offset:{1024*n}", f"er{n}"))
    for n in range(4):
        e(Wt(lg=f"er{n}"))
        e(f"buffer_store_dwordx4 {vr(80+4*n,4)}, v58, {sr(OUT,4)}, s{sT0+n} offen {opt.out_sc}")
    if opt.stamps:
        e("s_waitcnt vmcnt(0)")
        g.stamp("end")
    if opt.echo:
        e("s_waitcnt vmcnt(0)")
        g.stamp("fin")
        e("""
        s_memrealtime s[6:7]
        s_waitcnt lgkmcnt(0)
        s_lshl_b32 s9, s9, 2
        s_add_u32 s9, s9, s6
        Lecho:
        s_sleep 2
        s_memrealtime s[6:7]
        s_waitcnt lgkmcnt(0)
        s_sub_u32 s10, s6, s9
        s_cmp_lt_i32 s10, 0
        s_cbranch_scc1 Lecho
        """)
    e("Lend:\ns_endpgm")
    e(g.tail)
    e(f"""
    Lfb:
    s_mov_b32 s{sMode}, 1
    v_mov_b32 v{vT0}, 0xff800000
    v_mov_b32 v{vT1}, 0xff800000
    s_mov_b32 s{sC}, 0
    Lfb1:
    buffer_load_dwordx4 {vr(K[0],4)}, v{v16}, {sr(WS,4)}, s{sC} offen sc1
    buffer_load_dwordx4 {vr(K[0]+4,4)}, v{v16}, {sr(WS,4)}, s{sC} offen offset:1024 sc1
    s_waitcnt vmcnt(0)
    """)
    for qb in range(2):
        e(f"v_mfma_f32_32x32x16_bf16 {vr(S[qb],16)}, {vr(K[0],4)}, {vr(Q[qb],4)}, 0")
        e(f"v_mfma_f32_32x32x16_bf16 {vr(S[qb],16)}, {vr(K[0]+4,4)}, {vr(Q[qb]+4,4)}, {vr(S[qb],16)}")
    e("s_nop 15")
    e(maxtree(vT0, S[0], False) + maxtree(vT1, S[1], False))
    e(f"s_add_u32 s{sC}, s{sC}, 4096\ns_cmp_lt_u32 s{sC}, 0x40000\ns_cbranch_scc1 Lfb1")
    finish_max(0.0, [])
    for i in range(O[0], Lr[1] + 4, 2): e(f"v_mov_b64 {vr(i,2)}, 0")
    e(f"s_mov_b32 s{sC}, 0\nLfb2:")
    for k in range(2):
        e(f"buffer_load_dwordx4 {vr(K[0]+4*k,4)}, v{v16}, {sr(WS,4)}, s{sC} offen offset:{1024*k} sc1")
        e(f"buffer_load_dwordx4 {vr(V[0]+4*k,4)}, v{v16}, {sr(WS,4)}, s{sC} offen offset:{2048+1024*k} sc1")
    e("s_waitcnt vmcnt(0)")
    for qb in range(2):
        e(f"v_mfma_f32_32x32x16_bf16 {vr(S[qb],16)}, {vr(K[0],4)}, {vr(Q[qb],4)}, {vr(M[qb],16)}")
        e(f"v_mfma_f32_32x32x16_bf16 {vr(S[qb],16)}, {vr(K[0]+4,4)}, {vr(Q[qb]+4,4)}, {vr(S[qb],16)}")
    e("s_nop 15")
    for i in range(32): e(f"v_exp_f32 v{i}, v{i}")
    e("s_nop 1")
    for qb in range(2):
        for u in range(2):
            e(f"v_smfmac_f32_32x32x32_bf16 {vr(O[qb],16)}, {vr(V[0]+4*u,4)}, {vr(S[qb]+8*u,8)}, v{IDX}")
            e(f"v_smfmac_f32_16x16x64_bf16 {vr(Lr[qb],4)}, {vr(ONES,4)}, {vr(S[qb]+8*u,8)}, v{IDX}")
    e(f"""
    s_add_u32 s{sC}, s{sC}, 4096
    s_cmp_lt_u32 s{sC}, 0x40000
    s_cbranch_scc1 Lfb2
    s_nop 15
    s_branch La_norm
    Lcode_end:
    """)
    txt = g.text()
    for i, l in enumerate(txt):
        if "PADNEXT" in l:
            k = int(l.split("PADNEXT")[1]) + 4
            txt[i] = l.split("PADNEXT")[0] + (f"Lpad{k}" if k < g.npad else "Lwalk_ret")
    a = txt.index("Lkv_done:"); b = txt.index("Lkvflag_b:")
    nld = sum(1 for l in txt[a:b] if l.startswith(" buffer_load"))
    txt[txt.index(" KVFLAGWAIT")] = f" s_waitcnt vmcnt({nld})"
    return txt

def table_text():
    b = TB.blob(); L = []
    for i in range(0, len(b), 128):
        ch = b[i:i + 128]
        L.append(".octa " + ",".join("0x%x" % int.from_bytes(ch[j:j + 16], "little") for j in range(0, 128, 16)))
    return "\n".join(L)

NOTES = """;
;  3. Attention over all 2048 keys: S^T = K Q^T with -m as the C operand, v_exp_f32 in place, P V and the row sums with the
; Hand-offs between workgroups go through d_ws: sc1 stores, vmcnt wait, sc1 flag; consumers poll with sc1 loads, then load
"""
def build(opt):
    ref = open(f"cdna_kernels/{NAME}.s.ref").read().split("\n")
    head = [l for l in ref if l.startswith(";") and "@launch" not in l]
    s = "\n".join(head) + "\n; @launch grid=(256,1,1) block=(256,1,1) lds=163840\n" + NOTES
    s += f""".amdgcn_target "amdgcn-amd-amdhsa--gfx950"
.text
.globl {NAME}_kernel
.p2align 8
.type {NAME}_kernel,@function
"""
    s += "\n".join(gen(opt)) + "\n"
    s += f""".fill {2048 if opt.exp==4 else 256}, 4, 0xbf800000
s_endpgm
.section .rodata,"a"
.p2align 6
.amdhsa_kernel {NAME}_kernel
  .amdhsa_next_free_vgpr 512
  .amdhsa_next_free_sgpr 102
  .amdhsa_accum_offset 256
  .amdhsa_group_segment_fixed_size 0
  .amdhsa_kernarg_size 104
  .amdhsa_user_sgpr_count 2
  .amdhsa_user_sgpr_kernarg_segment_ptr 1
  .amdhsa_system_sgpr_workgroup_id_x 1
.end_amdhsa_kernel
.p2align 8
fn_tables:
"""
    s += table_text() + "\n"
    return s

if __name__ == "__main__":
    opt = Opt()
    out = f"cdna_kernels/{NAME}.s"
    for a in sys.argv[1:]:
        if a.startswith("-o"): out = a[2:]
        else:
            k, v = a.split("=")
            cur = getattr(opt, k)
            setattr(opt, k, type(cur)(int(v)) if isinstance(cur, (bool, int)) else type(cur)(v))
    s = build(opt)
    open(out, "w").write(s)
    if opt.stamps: open(out + ".names", "w").write("\n".join(opt.names))
    print(out, len(s), "bytes")
```

```python
import sys, struct
import tables as TB

NAME = "concat_heads__spectral_fnet__grouped_kv_mqa__prompt"

class Opt:
    stamps = False
    dbg = False
    codepf = True
    spin = 1 << 20
    out_sc = "nt"
    force_fb = False
    off = 100.0
    wgepi = True
    d1nat = True
    rebal = True
    nofill = 0
    epig = True
    loop2 = False
    dsp = 4
    ofine = False
    pnop = 0
    xurg = 4
    pace = 2
    slack = 24
    walk = 0
    wpos = 0
    pf2 = 0
    nobar = ''
    wf = 4
    lead = 5
    nkv = 5
    fgap = 3
    rot = '4821'
    nt = ''
    ntf = 'nt'
    dpos = 104
    xpre = 2
    nwin = 3
    w0n = 0
    poll1 = True
    wgflag = True
    defer = True
    fsp = 2
    slp = 1
    pre1 = 2
    echo = ''
    warm = False
    p3_sc = 'nt'
    d1_sc = ''
    ppos = 21
    afine = False
    exp = 0
    xsc = ''
    fine = False
    mapA = True
    kvb = 11
    nofft = False
    oflag = 0

def f2u(x): return struct.unpack("<I", struct.pack("<f", x))[0]
def vr(b, n): return f"v[{b}:{b+n-1}]"
def ar(b, n): return f"a[{b}:{b+n-1}]"
def sr(b, n): return f"s[{b}:{b+n-1}]"

WS_FL = 0x40000
FL_EPOCH = WS_FL
FL_KV = WS_FL + 0x1000
FL_Z1 = WS_FL + 0x2000
FL_Z2 = WS_FL + 0x3000
FL_O = WS_FL + 0x8000
WS_O = 0x100000
WS_Z1 = 0x800000
WS_Z2 = 0xC00000
WS_ST = 0x1000000
L_X = 96 * 1024; L_MISC = 144 * 1024
KB = [65536, 0, 32768, 98304]
sW, sX, sJ, sRB, sG, sC0 = 30, 31, 32, 33, 34, 35
GX, GW, WS, OUT, XA, TBL, KW = 36, 40, 44, 48, 52, 56, 60
sTAG, sOffW, sTX, sWb, sXb = 64, 65, 66, 67, 68
sRB2, sG2, sC2 = 69, 70, 71
sKV, sKV2, sMisc = 72, 73, 74
sF1, sSt1, sFl1, sPo1, sTab2, sF2, sSt2, sFl2, sPo2, sF3, sRow = 75, 76, 77, 78, 79, 86, 87, 88, 89, 90, 91
sT0, sT1, sT2, sT3, sT4, sT5 = 80, 81, 82, 83, 84, 85
sOst, sOst2, sFlO, sPoO, sOffW2, sFlKV, sCB, sMode, sSpin, sTb = 92, 93, 94, 95, 96, 97, 98, 99, 100, 101
sC = 16
sLow = 69; sOwn = [70, 71]
sIdx = [4, 5, 14, 15, 18, 19, 20, 21, 24, 25, 28, 29, 35, 17]
def idx(c): return sOwn[c] if c < 2 else sIdx[c - 2]
ASL = {2: 65536, 3: 81920, 0: 131072, 1: 0, 4: 16384, 5: 32768, 6: 49152}
def aW(c): return 16 * c if c < 5 else 148 + 16 * (c - 5)
L_XO = 80 * 1024
WSL = {7: 0, 8: 1, 9: 4, 10: 2, 11: 3, 12: 0, 13: 1, 14: 4, 15: 2}
S = [0, 16, 32, 48]; O = [64, 80]; Lr = [96, 100]; M = [104, 120]; Q = [136, 144]; K = [152, 160]; V = [168, 176]
ONES = 184; IDX = 188; vKlo = 230; vKhi = 189
vFD = 196
vFB = 228
v16 = 230; vP1 = 231; vZ = 232; vA = 233; vB = 235; vOW = 238; vOX = 242
vA2 = 190; vPoll = 244; vP4 = 245; vOne = 237
vDummy = 246
vL = 250; vT0 = 251; vT1 = 252; vT2 = 253; vT3 = 254; vT4 = 255
aD, aT1, aT2, aT3, aTX, aTW = 0, 16, 48, 80, 112, 116

NT = {'w': '', 'x': '', 'o': ''}
class I:
    def __init__(s, t, kind=None, tag=None): s.t, s.kind, s.tag = t, kind, tag
class Wt:
    def __init__(s, vm=None, lg=None, must=False): s.vm, s.lg, s.must = vm, lg, must
def VM(t, tag=None): return I(t, "vm", tag)
def LG(t, tag=None): return I(t, "lg", tag)

class G:
    def __init__(self, opt):
        self.o = []; self.opt = opt; self.nst = 0; self.uid = 0; self.tail = []
    def e(self, s):
        if isinstance(s, (list, tuple)):
            for x in s: self.e(x)
        elif isinstance(s, (I, Wt)): self.o.append(s)
        elif s:
            for l in s.strip("\n").split("\n"):
                l = l.strip()
                if l: self.o.append(I(l))
    def lab(self, p):
        self.uid += 1; return f"{p}_{self.uid}"
    def text(self):
        out = []; vq = []; lq = []; seen = set(); waited = set()
        alltags = {x.tag for x in self.o if isinstance(x, I) and x.kind}
        def cnt(q, tags, mx):
            tags = tags if isinstance(tags, (list, tuple)) else [tags]
            for t in tags:
                assert t in seen or t not in alltags, ("wait before issue", t)
                waited.add(t)
            idx = max([i for i, t in enumerate(q) if t in tags], default=-1)
            if idx < 0: return None
            n = min(len(q) - 1 - idx, mx)
            del q[:len(q) - n]
            return n
        for x in self.o:
            if isinstance(x, Wt):
                p = []
                if x.vm is not None:
                    if x.vm == "all": p.append("vmcnt(0)"); vq.clear()
                    else:
                        n = cnt(vq, x.vm, 63)
                        if n is not None: p.append(f"vmcnt({n})")
                if x.lg is not None:
                    if x.lg == "all": p.append("lgkmcnt(0)"); lq.clear()
                    else:
                        n = cnt(lq, x.lg, 15)
                        if n is not None: p.append(f"lgkmcnt({n})")
                if p: out.append(" s_waitcnt " + " ".join(p))
                elif x.must: out.append(" s_nop 0")
            else:
                if x.kind:
                    assert x.tag is None or x.tag not in waited, ("issue after wait", x.tag)
                    seen.add(x.tag)
                if x.kind == "vm": vq.append(x.tag)
                if x.kind == "lg": lq.append(x.tag)
                out.append(x.t if x.t.endswith(":") else " " + x.t)
        return out
    def stamp(self, name, cyc=False):
        if self.opt.echo.startswith("cyc:") and not cyc:
            a, b = self.opt.echo[4:].split("-")
            if name == a: self.e("s_memtime s[6:7]\ns_waitcnt lgkmcnt(0)\ns_mov_b32 s3, s6")
            if name == b: self.e("s_memtime s[6:7]\ns_waitcnt lgkmcnt(0)\ns_sub_u32 s9, s6, s3\ns_lshr_b32 s9, s9, 3")
        if self.opt.echo == name and not cyc:
            self.e("s_memrealtime s[6:7]\ns_waitcnt lgkmcnt(0)\ns_sub_u32 s9, s6, s3")
        if not self.opt.stamps or cyc: return
        k = self.nst; self.nst += 1
        self.opt.names.append(("CYC " if cyc else "") + name)
        if self.opt.dbg:
            lb = self.lab("Lnost")
            self.e(f"""
            s_cmp_lg_u32 s9, 0
            s_cbranch_scc1 {lb}
            s_memrealtime s[6:7]
            s_waitcnt lgkmcnt(0)
            v_mov_b32 v195, s6
            s_mov_b64 exec, 1
            buffer_atomic_umax v195, off, s[12:15], 0 offset:{4*k}
            s_mov_b64 exec, -1
            {lb}:
            """)
            return
        self.e(f"""
        s_memrealtime s[6:7]
        s_memtime s[12:13]
        s_waitcnt lgkmcnt(0)
        v_mov_b32 v194, s6
        v_mov_b32 v195, s12
        buffer_store_dwordx2 v[194:195], off, {sr(WS,4)}, s8 offset:{8*k}
        """)
    def stampl(self, name):
        if name in ("beta", "oflag") and not self.opt.fine: return []
        save = self.o; self.o = []; self.stamp(name); r = self.o; self.o = save; return r
    def pad(self):
        if not self.opt.walk: return []
        self.npad = getattr(self, "npad", 0) + 1
        return [f"Lpad{self.npad-1}:", f"s_cbranch_execz PADNEXT{self.npad-1}"]
    def srd(self, d, lo, size):
        return [f"s_mov_b32 s{d}, s{lo}", f"s_and_b32 s{d+1}, s{lo+1}, 0xffff", f"s_mov_b32 s{d+2}, {size}", f"s_mov_b32 s{d+3}, 0x20000"]
    def flag(self, tmp, soff):
        return [f"v_mov_b32 v{tmp}, s{sTAG}", f"buffer_store_dword v{tmp}, v{vOne}, {sr(WS,4)}, s{soff} offen sc1"]
    def check(self, nreg, reg, load):
        lr = self.lab("Lretry"); lb = self.lab("Lback")
        cmp = [f"v_cmp_ne_u32 vcc, s{sTAG}, v{reg}"]
        for i in range(1, nreg):
            cmp += [f"v_cmp_ne_u32 s[10:11], s{sTAG}, v{reg+i}", "s_or_b64 vcc, vcc, s[10:11]"]
        self.tail += [f"{lr}:", f"s_mov_b32 s{sSpin}, {self.opt.spin}", f"{lr}_l:", f"s_sleep {self.opt.slp}", load, "s_waitcnt vmcnt(0)"] + cmp + [
            "s_cmp_eq_u64 vcc, 0", f"s_cbranch_scc1 {lb}", f"s_sub_u32 s{sSpin}, s{sSpin}, 1", f"s_cbranch_scc0 {lr}_l",
            f"v_mov_b32 v{vDummy}, {self.uid}", f"v_mov_b32 v{vDummy+1}, 0",
            f"global_store_dword v{vDummy+1}, v{vDummy}, s[26:27] offset:60", f"s_branch {lb}"]
        return cmp + ["s_cmp_eq_u64 vcc, 0", f"s_cbranch_scc0 {lr}", f"{lb}:"]

def dmaW(c, soff=sOffW, p=""):
    pre = [f"s_add_u32 m0, s{sWb}, {(c%6)*16384}"]
    ops = [VM(f"buffer_load_dwordx4 v{vOW+n}, {sr(GW,4)}, s{soff} offen offset:{1024*n} {NT['w']} lds", f"{p}W{c}") for n in range(4)]
    post = [f"s_add_u32 s{soff}, s{soff}, 0x20000", f"s_and_b32 s{soff}, s{soff}, 0x1fffff"]
    return pre, ops, post
def dmaX(c, step, mask, adv=1, p=""):
    pre = [f"s_add_u32 m0, s{sXb}, {(c%6)*8192}"]
    ops = [VM(f"buffer_load_dwordx4 v{vOX+n}, {sr(GX,4)}, s{sTX} offen offset:{1024*n} {NT['x']} lds", f"{p}X{c}") for n in range(2)]
    post = [f"s_add_u32 s{sTX}, s{sTX}, {(adv*step)&mask}", f"s_and_b32 s{sTX}, s{sTX}, {mask}"]
    return pre, ops, post
def burst(p):
    pre, ops, post = p
    return pre + ["s_nop 0"] + ops + post
def dmaKV(ch, hf):
    so = sKV2 if hf else sKV
    pre = [f"s_add_u32 m0, s{sWb}, {KB[ch%4]+16384*hf}"]
    ops = [VM(f"buffer_load_dwordx4 v{v16}, {sr(WS,4)}, s{so} offen offset:{1024*n} sc1 lds", f"KV{ch}{'ab'[hf]}") for n in range(4)]
    post = [f"s_add_u32 s{so}, s{so}, 32768", f"s_and_b32 s{so}, s{so}, 0x3ffff"]
    return pre, ops, post

FS = [32, 196, 152]
def gemm(g, pfx, srcA, srcB, waits, groups, gaps):
    e = g.e
    def rd(t):
        c, u = t >> 1, t & 1; f = FS[t % 3]; r, o = srcA(c); rb, ob, nb = srcB(c)
        A = [None] * 4 if r == "a" else [LG(f"ds_read_b64_tr_b16 {vr(f+4*m+2*ee,2)}, v{r[m]} offset:{o+u*8192+ee*1024}", f"{pfx}r{t}") for m in range(2) for ee in range(2)]
        B = [LG(f"ds_read_b128 {vr(f+8+4*n,4)}, v{rb} offset:{ob+u*4096+nb[n]}", f"{pfx}r{t}") for n in range(4)]
        return [x for p in zip(B, A) for x in p]
    extra = {i: list(v) for i, v in gaps.items()}
    if waits.get(0): e(Wt(vm=waits[0])); e("s_barrier")
    for t in range(2): e(rd(t))
    e(extra.pop(-1, []))
    def put(i, l): extra.setdefault(i, []).extend(l)
    i = 0
    for c in range(16):
        i = max(i, 8 * c)
        for pre, ops, post in groups.get(c, []):
            put(i, pre)
            for op in ops:
                i += 1; put(i, [op])
            put(i, post)
    for t in range(32):
        c, u = t >> 1, t & 1; f = FS[t % 3]; r, o = srcA(c)
        nxt = rd(t + 2) if t + 2 < 32 else [None] * 8
        e(Wt(lg=f"{pfx}r{t}"))
        for j in range(8):
            m, n = j & 1, j >> 1
            a = ar(o + 8 * u + 4 * m, 4) if r == "a" else vr(f + 4 * m, 4)
            e(f"v_mfma_f32_16x16x32_bf16 {vr(4*j,4)}, {a}, {vr(f+8+4*n,4)}, {'0' if t == 0 else vr(4*j,4)}")
            if j == 0 and u == 0:
                if waits.get(c + 1): e(Wt(vm=waits[c + 1]))
                if waits.get(c + 1) or groups.get(c): e("s_barrier")
            e(nxt[j])
            if j & 1: e(extra.pop(4 * t + n, []))
    rest = []
    for i in sorted(extra): rest += extra[i]
    return rest
def dmaWo(c, lds):
    pre = [f"s_add_u32 m0, s{sWb}, {lds}", f"s_lshl4_add_u32 s{sOffW}, s{idx(c)}, s{sLow}"]
    ops = [VM(f"buffer_load_dwordx4 v{vOW+n}, {sr(GW,4)}, s{sOffW} offen offset:{1024*n} {NT['o']} lds", f"oW{c}") for n in range(4)]
    return pre, ops, []
def dmaXo(c):
    pre = [f"s_add_u32 m0, s{sXb}, {((c-2)%8)*8192}"]
    ops = [VM(f"buffer_load_dwordx4 v{vOX}, {sr(WS,4)}, s{idx(c)} offen offset:{1024*n} sc1 lds", f"oX{c}") for n in range(2)]
    return pre, ops, []

def gen(opt):
    g = G(opt); e = g.e
    opt.names = []
    opt.nob = [int(x) for x in opt.nobar]
    for k in opt.nt: NT[k] = opt.ntf
    opt.win = [7, 8, 9][:opt.nwin]
    e(f"{NAME}_kernel:")
    if opt.stamps or opt.echo: e("s_memrealtime s[60:61]")
    e(f"""
    s_cmp_ge_u32 s2, 256
    s_cbranch_scc1 Lend
    s_load_dwordx16 s[4:19], s[0:1], 0
    s_load_dwordx8 s[20:27], s[0:1], 64
    s_load_dwordx2 s[28:29], s[0:1], 96
    v_lshrrev_b32 v1, 6, v0
    v_and_b32 v{vL}, 63, v0
    v_readfirstlane_b32 s{sW}, v1
    v_lshlrev_b32 v{v16}, 4, v{vL}
    s_and_b32 s{sX}, s2, 7
    s_lshr_b32 s{sJ}, s2, 3
    """)
    if opt.codepf:
        e(f"""
        s_lshl_b32 s{sT0}, s{sJ}, 2
        s_add_u32 s{sT0}, s{sT0}, s{sW}
        s_lshl_b32 s{sT0}, s{sT0}, 10
        s_cmp_ge_u32 s{sT0}, Lcode_end-Lpc1
        s_cbranch_scc1 Lnopf
        s_getpc_b64 s[{sT2}:{sT3}]
        Lpc1:
        v_add_u32 v13, s{sT0}, v{v16}
        global_load_dwordx4 {vr(vDummy,4)}, v13, s[{sT2}:{sT3}]
        Lnopf:
        """)
    e(f"s_lshl2_add_u32 s{sCB}, s{sX}, s{sW}")
    if opt.mapA:
        e(f"""
        s_and_b32 s{sT0}, s{sJ}, 7
        s_lshr_b32 s{sT1}, s{sX}, 1
        s_lshl3_add_u32 s{sRB}, s{sT1}, s{sT0}
        s_lshr_b32 s{sT1}, s{sJ}, 3
        s_and_b32 s{sT2}, s{sX}, 1
        s_lshl2_add_u32 s{sG}, s{sT2}, s{sT1}
        s_lshl1_add_u32 s{sT0}, s{sT1}, s{sT0}
        s_lshl_b32 s{sT0}, s{sT0}, 1
        s_and_b32 s{sC0}, s{sT0}, 15
        """)
    if opt.rot:
        a, b, c, d = [int(x, 16) for x in opt.rot]
        e(f"""
        s_lshr_b32 s{sT0}, s{sX}, 1
        s_mul_i32 s{sC0}, s{sT0}, {a}
        s_and_b32 s{sT0}, s{sX}, 1
        s_mul_i32 s{sT0}, s{sT0}, {b}
        s_add_u32 s{sC0}, s{sC0}, s{sT0}
        s_lshr_b32 s{sT0}, s{sJ}, 3
        s_mul_i32 s{sT0}, s{sT0}, {c}
        s_add_u32 s{sC0}, s{sC0}, s{sT0}
        s_and_b32 s{sT0}, s{sJ}, 7
        s_mul_i32 s{sT0}, s{sT0}, {d}
        s_lshr_b32 s{sT0}, s{sT0}, 1
        s_add_u32 s{sC0}, s{sC0}, s{sT0}
        s_and_b32 s{sC0}, s{sC0}, 15
        """)
    e(f"""
    v_lshrrev_b32 v1, 5, v{vL}
    v_lshrrev_b32 v2, 4, v{vL}
    v_and_b32 v7, 31, v{vL}
    v_and_b32 v9, 15, v{vL}
    v_xor_b32 v8, v7, v1
    v_lshlrev_b32 v8, 4, v8
    v_lshl_or_b32 v128, v1, 11, v8
    """)
    for n in range(1, 8):
        e(f"v_xor_b32 v{128+n}, {32*n}, v128\nv_add_u32 v{128+n}, {n*4096-1024*(n&3)}, v{128+n}")
    e(f"""
    s_lshl_b32 s{sT2}, s{sW}, 13
    s_add_u32 s{sT2}, s{sT2}, {112*1024}
    s_mov_b32 s{sT3}, {48*1024}
    s_cmp_eq_u32 s{sW}, 1
    s_cselect_b32 s{sT3}, {144*1024}, s{sT3}
    s_cmp_eq_u32 s{sW}, 2
    s_cselect_b32 s{sT3}, {80*1024}, s{sT3}
    s_cmp_eq_u32 s{sW}, 3
    s_cselect_b32 s{sT3}, {64*1024}, s{sT3}
    s_lshr_b32 s{sT0}, s{sG}, 1
    s_lshl2_add_u32 s{sT0}, s{sRB}, s{sT0}
    s_lshl_b32 s{sT4}, s{sT0}, 15
    s_lshl_b32 s{sT0}, s{sW}, 9
    s_add_u32 s{sT4}, s{sT4}, s{sT0}
    s_lshl_b32 s{sT5}, s{sW}, 14
    """)
    e(f"""
    v_lshlrev_b32 v10, 2, v2
    v_xor_b32 v10, v10, v9
    v_lshlrev_b32 v10, 4, v10
    v_lshl_or_b32 v{vOW}, v2, 11, v10
    v_add_u32 v{vOW+1}, 7168, v{vOW}
    v_xor_b32 v10, 32, v{vOW}
    v_add_u32 v{vOW+2}, 14336, v10
    v_add_u32 v{vOW+3}, 21504, v10
    """)
    e(f"""
    s_lshl_b32 s{sWb}, s{sW}, 12
    s_lshl_b32 s{sXb}, s{sW}, 11
    s_add_u32 s{sXb}, s{sXb}, {L_X}
    s_lshl2_add_u32 s{sT0}, s{sC0}, s{sW}
    s_lshl_b32 s{sT0}, s{sT0}, 7
    s_add_u32 s{sT0}, s{sT0}, s{sG}
    s_lshl_b32 s{sOffW}, s{sT0}, 8
    s_lshl_b32 s{sTX}, s{sC0}, 7
    """)
    e(f"""
    s_and_b32 s{sTb}, s{sJ}, 7
    s_lshr_b32 s{sT0}, s{sJ}, 4
    s_lshl3_add_u32 s{sTb}, s{sT0}, s{sTb}
    s_lshl_b32 s{sTb}, s{sTb}, 10
    """)
    e("s_waitcnt lgkmcnt(0)")
    if opt.stamps or opt.echo: e("s_mov_b32 s3, s60")
    e([f"s_bitcmp1_b32 s{sG}, 0", f"s_cselect_b32 s{KW}, s20, s18", f"s_cselect_b32 s{KW+1}, s21, s19",
       f"s_and_b32 s{KW+1}, s{KW+1}, 0xffff", f"s_mov_b32 s{KW+2}, 65536", f"s_mov_b32 s{KW+3}, 0x20000"])
    def kvw1():
        return [f"s_add_u32 m0, s{sT3}, s{sTb}", f"s_add_u32 s{sOst2}, s{sT5}, s{sTb}",
                VM(f"buffer_load_dwordx4 v{v16}, {sr(KW,4)}, s{sOst2} offen lds", "kv"),
                f"s_add_u32 s{sTb}, s{sTb}, 1024", f"s_and_b32 s{sTb}, s{sTb}, 0x3fff"]
    e(kvw1())
    e(g.srd(GX, 14, 4194304))
    for _ in range(opt.wf - 1): e(kvw1())
    kvx = [VM(f"buffer_load_dwordx4 v{128+n}, {sr(GX,4)}, s{sT4} offen offset:{1024*(n&3)} {NT['x']} lds", "kv") for n in range(8)]
    fill = [g.srd(GW, 16, 2097152), g.srd(WS, 28, 0x10000000) + [f"s_mov_b32 s{sMode}, {FL_EPOCH}"]]
    fill.append(f"""
    v_bfe_u32 v3, v{vL}, 2, 2
    v_and_b32 v4, 1, v{vL}
    v_bfe_u32 v5, v{vL}, 1, 1
    v_and_b32 v6, 1, v2
    v_lshlrev_b32 v{vP4}, 2, v7
    v_lshrrev_b32 v11, 3, v{vL}
    """)
    fill.append(f"""
    s_and_b32 s{sT0}, s{sW}, 1
    s_lshl1_add_u32 s{sT0}, s{sRB}, s{sT0}
    s_lshl_b32 s{sT0}, s{sT0}, 16
    s_lshr_b32 s{sT1}, s{sW}, 1
    s_lshl_b32 s{sT1}, s{sT1}, 6
    s_add_u32 s{sT0}, s{sT0}, s{sT1}
    v_lshrrev_b32 v12, 2, v{vL}
    v_and_b32 v13, 3, v{vL}
    v_sub_u32 v14, 0, v2
    v_xor_b32 v14, v13, v14
    v_and_b32 v14, 3, v14
    v_lshlrev_b32 v14, 4, v14
    v_lshl_or_b32 v14, v12, 11, v14
    v_add_u32 v{vOX}, s{sT0}, v14
    v_add_u32 v{vOX+1}, {32768-1024}, v{vOX}
    """)
    fill.append(f"""
    v_xor_b32 v13, v2, v9
    v_lshlrev_b32 v13, 4, v13
    v_lshl_or_b32 v13, v9, 9, v13
    v_add_u32 v136, s{sT2}, v13
    v_xor_b32 v14, 64, v13
    v_add_u32 v137, s{sT2}, v14
    v_xor_b32 v14, 128, v13
    v_add_u32 v138, s{sT2}, v14
    v_xor_b32 v14, 192, v13
    v_add_u32 v139, s{sT2}, v14
    """)
    fill.append(f"""
    v_lshl_add_u32 v13, v2, 3, v3
    v_lshlrev_b32 v13, 6, v13
    v_add_u32 v13, s{sT3}, v13
    v_and_b32 v14, 3, v{vL}
    v_lshlrev_b32 v14, 4, v14
    v_lshlrev_b32 v15, 5, v4
    v_lshl_or_b32 v15, v5, 3, v15
    s_bitcmp1_b32 s{sG}, 0
    s_cselect_b64 vcc, -1, 0
    s_cselect_b32 s{sT1}, 16, 8
    v_cndmask_b32 v14, v14, v15, vcc
    v_add_u32 v140, v13, v14
    v_add_u32 v141, s{sT1}, v140
    """)
    fill.append(f"""
    v_lshl_add_u32 v14, v6, 5, v9
    v_lshlrev_b32 v14, 4, v14
    v_lshl_or_b32 v14, v1, 10, v14
    v_cndmask_b32 v142, v14, v{v16}, vcc
    v_add_u32 v{vKhi}, 65536, v{v16}
    v_min_u32 v{vOne}, 1, v{vL}
    v_lshlrev_b32 v{vOne}, 28, v{vOne}
    """)
    fill.append(f"""
    v_lshl_add_u32 v13, v2, 3, v3
    v_xor_b32 v14, s{sW}, v3
    v_lshl_add_u32 v14, v14, 1, v6
    v_lshl_add_u32 v14, v14, 1, v5
    v_lshl_add_u32 v14, v14, 1, v4
    v_lshlrev_b32 v14, 3, v14
    v_lshl_or_b32 v{vA}, v13, 8, v14
    v_add_u32 v{vA+1}, 49152, v{vA}
    v_xor_b32 v{vA2}, 32, v{vA}
    v_xor_b32 v{vA2+1}, 32, v{vA+1}
    """)
    fill.append(f"""
    v_sub_u32 v13, 0, v3
    v_xor_b32 v13, v13, v2
    v_and_b32 v13, 3, v13
    v_lshlrev_b32 v13, 4, v13
    v_lshl_or_b32 v13, v9, 6, v13
    v_add_u32 v{vB}, {L_X}, v13
    """)
    fill.append(f"""
    v_lshl_add_u32 v13, v1, 3, v3
    v_lshl_add_u32 v14, v6, 1, v4
    v_lshrrev_b32 v15, 1, v3
    v_lshl_add_u32 v14, v14, 1, v15
    v_lshl_add_u32 v14, v14, 1, v5
    v_lshlrev_b32 v14, 3, v14
    v_lshl_or_b32 v13, v13, 7, v14
    s_add_u32 s{sMisc}, s{sWb}, {L_MISC}
    v_add_u32 v{vFB}, s{sMisc}, v13
    v_xor_b32 v{vFB+1}, 16, v{vFB}
    """)
    fill.append(f"""
    v_xor_b32 v13, v4, v6
    v_bfe_u32 v14, v{vL}, 1, 2
    v_lshlrev_b32 v15, 4, v14
    v_lshl_or_b32 v15, v11, 16, v15
    v_lshl_or_b32 v{vP1}, v13, 21, v15
    v_lshlrev_b32 v15, 9, v14
    v_lshl_or_b32 v15, v11, 12, v15
    v_lshl_or_b32 v{vZ}, v13, 4, v15
    """)
    if opt.d1nat:
        fill.append(f"""
        v_lshrrev_b32 v13, 2, v{vL}
        v_and_b32 v14, 3, v{vL}
        v_lshlrev_b32 v14, 4, v14
        v_lshl_or_b32 v{vP1}, v13, 16, v14
        v_lshl_add_u32 v13, v1, 3, v3
        v_lshl_add_u32 v14, v6, 1, v4
        v_lshl_add_u32 v14, v14, 1, v5
        v_lshlrev_b32 v14, 3, v14
        v_lshl_or_b32 v13, v13, 6, v14
        v_add_u32 v192, s{sMisc}, v13
        """)
    fill.append(g.srd(OUT, 24, 8388608) + g.srd(XA, 4, 4194304))
    fill.append(f"""
    s_getpc_b64 s[{TBL}:{TBL+1}]
    s_add_u32 s{TBL}, s{TBL}, fn_tables@rel32@lo+4
    s_addc_u32 s{TBL+1}, s{TBL+1}, fn_tables@rel32@hi+12
    s_and_b32 s{TBL+1}, s{TBL+1}, 0xffff
    s_mov_b32 s{TBL+2}, {TB.TBL_SIZE}
    s_mov_b32 s{TBL+3}, 0x20000
    """)
    fill.append(f"""
    s_lshl3_add_u32 s{sFlKV}, s{sRB}, s{sG}
    s_lshl_b32 s{sFlKV}, s{sFlKV}, 2
    s_add_u32 s{sFlKV}, s{sFlKV}, {FL_KV}
    s_lshl_b32 s{sKV}, s{sX}, 15
    s_add_u32 s{sKV}, s{sKV}, s{sWb}
    s_add_u32 s{sKV2}, s{sKV}, 16384
    s_lshl_b32 s{sF1}, s{sJ}, 5
    s_add_u32 s{sF1}, s{sF1}, s{sCB}
    s_lshl_b32 s{sFl2}, s{sF1}, 2
    s_add_u32 s{sFl2}, s{sFl2}, {FL_Z2}
    s_lshl_b32 s{sSt2}, s{sF1}, 12
    s_add_u32 s{sSt2}, s{sSt2}, {WS_Z2}
    s_lshl_b32 s{sF1}, s{sF1}, 6
    """)
    fill.append(f"""
    s_lshl_b32 s{sSt1}, s{sCB}, 5
    s_add_u32 s{sSt1}, s{sSt1}, s{sJ}
    s_lshl_b32 s{sFl1}, s{sSt1}, 2
    s_add_u32 s{sFl1}, s{sFl1}, {FL_Z1}
    s_lshl_b32 s{sSt1}, s{sSt1}, 12
    s_add_u32 s{sSt1}, s{sSt1}, {WS_Z1}
    s_lshl_b32 s{sPo1}, s{sCB}, 7
    s_add_u32 s{sPo1}, s{sPo1}, {FL_Z1}
    s_lshl_b32 s{sPo2}, s{sJ}, 7
    s_add_u32 s{sPo2}, s{sPo2}, {FL_Z2}
    s_lshl_b32 s{sTab2}, s{sJ}, 13
    s_add_u32 s{sTab2}, s{sTab2}, {TB.OFF_T2}
    """)
    def zoff(dst, hi, lo, base):
        return f"""
        s_lshl_b32 s{dst}, s{hi}, 17
        s_lshr_b32 s{sT1}, s{lo}, 4
        s_lshl_b32 s{sT1}, s{sT1}, 11
        s_add_u32 s{dst}, s{dst}, s{sT1}
        s_and_b32 s{sT1}, s{lo}, 15
        s_lshl_b32 s{sT1}, s{sT1}, 5
        s_add_u32 s{dst}, s{dst}, s{sT1}
        s_add_u32 s{dst}, s{dst}, {base}
        """
    fill.append(zoff(sF2, sCB, sJ, WS_Z1))
    fill.append(zoff(sF3, sJ, sCB, WS_Z2))
    fill.append(f"""
    s_lshl_b32 s{sT1}, s{sCB}, 6
    s_add_u32 s{sRow}, s{sT1}, s{sJ}
    s_sub_u32 s{sOst}, s{sT1}, {1024-32}
    s_cmp_lt_u32 s{sCB}, 16
    s_cselect_b32 s{sT1}, s{sT1}, s{sOst}
    s_cmp_eq_u32 s{sJ}, 0
    s_cselect_b32 s{sRow}, s{sT1}, s{sRow}
    s_lshl2_add_u32 s{sT1}, s{sG}, s{sW}
    s_lshl_b32 s{sOst}, s{sRB}, 5
    s_add_u32 s{sOst}, s{sOst}, s{sT1}
    s_lshl_b32 s{sFlO}, s{sOst}, {opt.fsp}
    s_add_u32 s{sFlO}, s{sFlO}, {FL_O}
    s_lshl_b32 s{sOst}, s{sOst}, 12
    s_add_u32 s{sOst}, s{sOst}, {WS_O}
    """)
    fill.append(f"""
    s_lshl_b32 s{sPoO}, s{sRB}, {5+opt.fsp}
    s_add_u32 s{sPoO}, s{sPoO}, {FL_O}
    s_lshl_b32 s{sLow}, s{sW}, 7
    s_add_u32 s{sLow}, s{sLow}, s{sG}
    s_lshl_b32 s{sLow}, s{sLow}, 8
    s_lshl_b32 s{sOwn[0]}, s{sG}, 14
    s_add_u32 s{sOwn[1]}, s{sOwn[0]}, 8192
    s_and_b32 s{sT0}, s{sJ}, 7
    s_lshl_b32 s{sT0}, s{sT0}, 1
    s_cmp_eq_u32 s{sT0}, 14
    s_cselect_b32 s{sT0}, 0, s{sT0}
    s_lshl1_add_u32 s{sT1}, s{sG}, 2
    """)
    for c0 in range(0, 14, 4):
        L = []
        for c in range(c0, min(c0 + 4, 14)):
            L += [f"s_add_u32 s{sIdx[c]}, s{sT0}, s{sT1}", f"s_and_b32 s{sIdx[c]}, s{sIdx[c]}, 15", f"s_lshl_b32 s{sIdx[c]}, s{sIdx[c]}, 13",
                  f"s_add_u32 s{sT0}, s{sT0}, 1", f"s_cmp_eq_u32 s{sT0}, 14", f"s_cselect_b32 s{sT0}, 0, s{sT0}"]
        fill.append(L)
    XS, XM = 128, 2047
    nfill = len(fill)
    def take_vm(lst, n=1):
        out = []
        while lst and n:
            x = lst.pop(0); out.append(x)
            if isinstance(x, I) and x.kind == "vm": n -= 1
        return out
    for n in range(8):
        if n % 4 == 0: e(f"s_add_u32 m0, s{sT2}, {1024*n}\ns_nop 0")
        e(kvx[n])
        if n >= opt.nofill: e(fill.pop(0))
    w0 = dmaW(0)
    for n in range(opt.w0n): e(w0[1][n]); e(fill.pop(0))
    while len(fill) > nfill - 2: e(fill.pop(0))
    e(VM(f"buffer_load_dword v143, off, {sr(WS,4)}, s{sMode} sc1", "kv"))
    for n in range(16 - opt.wf):
        if opt.walk and n == opt.wpos:
            while len(fill) > 23 - 9: e(fill.pop(0))
            e(["s_mov_b64 exec, 0"] + sum([[f"s_cmp_eq_u32 s{sW}, {w}", f"s_cbranch_scc1 Lpad{w}"] for w in range(3)], []) + ["s_branch Lpad3", "Lwalk_ret:", "s_mov_b64 exec, -1"])
        e(kvw1())
        if fill: e(fill.pop(0))
        if len(fill) > 16 - opt.wf - n - 1: e(fill.pop(0))
    print("fillers left", len(fill), file=sys.stderr) if fill else None
    while fill: e(fill.pop(0))
    if opt.fine: e("s_memrealtime s[10:11]")
    later = w0[0] + ["s_nop 0"] + w0[1][opt.w0n:] + w0[2] + burst(dmaX(0, XS, XM)) + burst(dmaW(1)) + burst(dmaX(1, XS, XM)) + burst(dmaW(2))
    e(take_vm(later, opt.pre1))
    if opt.stamps:
        e(f"s_lshl2_add_u32 s8, s2, s{sW}\ns_lshl_b32 s8, s8, 8\ns_add_u32 s8, s8, {WS_ST}")
        opt.names.append("entry"); g.nst += 1
        if opt.dbg:
            e(g.srd(12, 26, 256))
            e(f"""
            s_or_b32 s9, s{sW}, s{sJ}
            s_cmp_lg_u32 s9, 0
            s_cbranch_scc1 Lnost0
            v_not_b32 v195, s3
            s_mov_b64 exec, 1
            buffer_atomic_umax v195, off, s[12:15], 0
            s_mov_b64 exec, -1
            Lnost0:
            """)
        else:
            e(f"v_mov_b32 v195, s3\nbuffer_store_dword v195, off, {sr(WS,4)}, s8")
            if opt.fine:
                opt.names.append("kv issued"); g.nst += 1
                e(f"s_waitcnt lgkmcnt(0)\nv_mov_b32 v195, s10\nbuffer_store_dword v195, off, {sr(WS,4)}, s8 offset:8")
    e(Wt(vm="kv"))
    g.stamp("kv landed")
    for ks in range(8):
        e(LG(f"ds_read_b128 {vr(4*ks,4)}, v{136+(ks&3)} offset:{256*(ks>>2)}", f"k{ks}"))
        for b in range(2):
            for ee in range(2):
                e(LG(f"ds_read_b64_tr_b16 {vr(64+8*ks+4*b+2*ee,2)}, v{140+b} offset:{2048*ks+256*ee}", f"k{ks}"))
        if ks == 0: e(f"v_readfirstlane_b32 s{sTAG}, v143")
        if ks == 1: e(f"s_mul_i32 s{sTAG}, s{sTAG}, 0x9e3779b1\ns_add_u32 s{sTAG}, s{sTAG}, 0x7f4a7c15")
        e(take_vm(later))
    e(Wt(lg="k4"))
    e(f"s_bitcmp1_b32 s{sG}, 0\ns_cbranch_scc1 Lkv_v")
    mid = [take_vm(later) for _ in range(4)]
    for var in range(2):
        if var == 1: e("Lkv_v:")
        for ks in range(8):
            if ks == 5: e("s_waitcnt lgkmcnt(0)")
            for b in range(2):
                w = vr(64 + 8 * ks + 4 * b, 4); x = vr(4 * ks, 4); d = vr(32 + 4 * b, 4)
                c = "0" if ks == 0 else d
                e(f"v_mfma_f32_16x16x32_bf16 {d}, {w}, {x}, {c}" if var == 0 else f"v_mfma_f32_16x16x32_bf16 {d}, {x}, {w}, {c}")
            if ks % 2 == 0: e(mid[ks >> 1] if var == 0 else [x.t if isinstance(x, I) else x for x in mid[ks >> 1]])
        if var == 0: e("s_branch Lkv_j")
    e("Lkv_j:")
    e(Wt(lg="all"))
    e(f"""
    s_cmp_eq_u32 s{sW}, 3
    s_cselect_b32 s{sT1}, s{sT2}, s{sT3}
    v_add_u32 v13, s{sT1}, v{v16}
    """)
    e(later); later = []
    e(f"""
    s_cmp_eq_u32 s{sW}, 0
    s_cbranch_scc1 Lkv_nw
    s_nop 3
    ds_write_b128 v13, v[32:35]
    ds_write_b128 v13, v[36:39] offset:1024
    s_waitcnt lgkmcnt(0)
    Lkv_nw:
    s_barrier
    s_cmp_lg_u32 s{sW}, 0
    s_cbranch_scc1 Lkv_done
    v_add_u32 v13, {80*1024}, v{v16}
    v_add_u32 v14, {136*1024}, v{v16}
    ds_read_b128 v[40:43], v13
    ds_read_b128 v[44:47], v13 offset:1024
    ds_read_b128 v[48:51], v14
    ds_read_b128 v[52:55], v14 offset:1024
    ds_read_b128 v[56:59], v14 offset:8192
    ds_read_b128 v[60:63], v14 offset:9216
    s_lshr_b32 s{sT1}, s{sG}, 2
    s_lshl1_add_u32 s{sT0}, s{sRB}, s{sT1}
    s_lshl_b32 s{sT0}, s{sT0}, 12
    s_bfe_u32 s{sT1}, s{sG}, 0x10001
    s_lshl_b32 s{sT2}, s{sT1}, 8
    s_lshl_b32 s{sT1}, s{sT1}, 10
    s_add_u32 s{sT1}, s{sT1}, 2048
    s_bitcmp1_b32 s{sG}, 0
    s_cselect_b32 s{sT1}, s{sT1}, s{sT2}
    s_cselect_b32 s{sT2}, 1.0, {hex(f2u(1.4426950408889634/32**0.5))}
    s_mov_b32 s{sT3}, s{sT2}
    s_add_u32 s{sT0}, s{sT0}, s{sT1}
    """)
    for p in range(3):
        e(f"s_waitcnt lgkmcnt({4-2*p})")
        for i in range(4):
            e(f"v_pk_add_f32 {vr(32+2*i,2)}, {vr(32+2*i,2)}, {vr(40+8*p+2*i,2)}")
    for i in range(4): e(f"v_pk_mul_f32 {vr(32+2*i,2)}, {vr(32+2*i,2)}, s[{sT2}:{sT3}]")
    for i in range(4): e(f"v_cvt_pk_bf16_f32 v{40+i}, v{32+2*i}, v{33+2*i}")
    e(f"""
    s_bitcmp1_b32 s{sG}, 0
    s_cbranch_scc0 Lkv_st
    v_permlane16_swap_b32 v40, v42
    v_permlane16_swap_b32 v41, v43
    Lkv_st:
    buffer_store_dwordx4 v[40:43], v142, {sr(WS,4)}, s{sT0} offen sc1
    Lkv_done:
    """)
    LD = opt.lead
    pl = [dmaX(2, XS, XM)]
    for c in range(3, LD): pl += [dmaW(c), dmaX(c, XS, XM)]
    lead = []
    for p in pl: lead += burst(p)
    e(take_vm(lead, max(0, 2 + 6 * (LD - 3) - 3)))
    g.stamp("kv done")
    gaps = {-1: lead}
    g.tail += ["Lkvflag:", "KVFLAGWAIT"] + g.flag(56, sFlKV) + ["s_branch Lkvflag_b"]
    gaps.setdefault(opt.fgap, []).extend([f"s_cmp_eq_u32 s{sW}, 0", "s_cbranch_scc1 Lkvflag", "Lkvflag_b:"])
    init = [f"v_mov_b64 {vr(i,2)}, 0" for i in range(O[0], Lr[1] + 4, 2)]
    init += [f"v_mov_b32 v{IDX}, 0xdddddddd", "v_mov_b32 v60, 0x3f803f80", f"v_and_b32 v61, 7, v{vL}", "v_cmp_eq_u32 vcc, 0, v61",
             "v_cmp_eq_u32 s[10:11], 4, v61", "s_nop 1"]
    init += [f"v_cndmask_b32 v{ONES}, 0, v60, vcc", f"v_cndmask_b32 v{ONES+1}, 0, v60, vcc",
             f"v_cndmask_b32 v{ONES+2}, 0, v60, s[10:11]", f"v_cndmask_b32 v{ONES+3}, 0, v60, s[10:11]"]
    for n, x in enumerate(init): gaps.setdefault(18 + n, []).append(x)
    kvpoll = f"buffer_load_dwordx4 v[56:59], v{v16}, {sr(WS,4)}, s{sT5} offen sc1"
    if opt.pf2:
        fill2 = ["s_getpc_b64 s[8:9]", "Lpc2:", "s_and_b32 s9, s9, 0xffff", "s_mov_b32 s10, Lcode_end-Lpc2", "s_mov_b32 s11, 0x20000",
                 f"s_lshl2_add_u32 s12, s{sJ}, s{sW}", "s_lshl_b32 s12, s12, 10",
                 VM(f"buffer_load_dwordx4 {vr(vDummy,4)}, v{v16}, s[8:11], s12 offen")]
        gaps.setdefault(opt.pf2, []).extend(fill2)
    b0 = opt.kvb
    gaps.setdefault(8 * b0 - 4 - opt.ppos, []).extend([f"s_mov_b32 s{sT5}, {FL_KV}", VM(kvpoll, "kvpoll")])
    if opt.fine:
        gaps.setdefault(5, []).extend(g.stampl("q c0"))
        gaps.setdefault(45, []).extend(g.stampl("q c5"))
        gaps.setdefault(8 * b0 - 2, []).extend(g.stampl("q prechk"))
    gaps.setdefault(8 * b0 - 1, []).extend([Wt(vm="kvpoll")] + g.check(4, 56, kvpoll) + (g.stampl("q postchk") if opt.fine else []))
    halves = [(0, 0), (0, 1), (1, 0), (1, 1), (2, 0), (2, 1), (3, 0), (3, 1)]
    ab = {c: [dmaW(c + LD), dmaX(c + LD, XS, XM)] for c in range(16 - LD)}
    for i in range(opt.nkv):
        ab.setdefault(max(b0, 11 + i), []).append(dmaKV(*halves.pop(0)))
    for i in range(opt.walk, 128, 3 * opt.walk) if opt.walk else []: gaps.setdefault(i | 1, []).extend(g.pad())
    def kvaddr(T, frag):
        a = KB[(T >> 3) % 4] + (T & 7) * 4096 + frag * 1024
        return (vKlo, a) if a < 65536 else (vKhi, a - 65536)
    def rdKV(dst, T, frag, tag):
        r, o = kvaddr(T, frag); return LG(f"ds_read_b128 {vr(dst,4)}, v{r} offset:{o}", tag)
    pre_rd = [rdKV(K[t] + 4 * k, t, k, f"pk{t}") for t in range(2) for k in range(2)] + [rdKV(V[0] + 4 * k, 0, 2 + k, "pv") for k in range(2)]
    for i in range(3): gaps.setdefault(121 + i, []).extend(pre_rd[2 * i:2 * i + 2])
    rest = gemm(g, "q", lambda c: ((vA + (c % 6) // 3, vA2 + (c % 6) // 3), (c % 3) * 16384), lambda c: (vB, (c % 6) * 8192, (0, 1024, 2048, 3072)),
                {**{c: [f"W{c}", f"X{c}"] for c in range(16)}, 16: ["KV0a"]}, ab, gaps)
    g.stamp("q gemm done")
    g.tail += ["Lepoch:", f"s_mov_b32 s{sT0}, {FL_EPOCH}"] + g.flag(56, sT0) + ["s_branch Lepoch_b"]
    e(rest)
    e(f"s_or_b32 s{sT0}, s2, s{sW}\ns_cbranch_scc0 Lepoch\nLepoch_b:")
    if opt.exp == 4:
        e(f"s_getpc_b64 s[{sT2}:{sT3}]\ns_lshl_b32 s{sT0}, s{sW}, 13\nv_add_u32 v60, s{sT0}, v{v16}\nv_add_u32 v61, 4096, v60")
        for n in range(8): e(f"global_load_dwordx4 {vr(vDummy,4)}, v{60+(n>>2)}, s[{sT2}:{sT3}] offset:{1024*(n&3)}")
    def maxtree(dst, s, first):
        L = []
        if first:
            L.append(f"v_max3_f32 v{dst}, v{s}, v{s+1}, v{s+2}")
            L += [f"v_max3_f32 v{dst}, v{dst}, v{s+i}, v{s+i+1}" for i in range(3, 15, 2)]
            L.append(f"v_max_f32 v{dst}, v{dst}, v{s+15}")
        else:
            L += [f"v_max3_f32 v{dst}, v{dst}, v{s+i}, v{s+i+1}" for i in range(0, 16, 2)]
        return L
    def tabload(dst, sreg, n, tag):
        return [VM(f"buffer_load_dwordx4 {dst(m)}, v{v16}, {sr(TBL,4)}, s{sreg+(m>>2)} offen offset:{1024*(m&3)}", tag) for m in range(n)]
    p1 = []
    if not opt.nofft:
        e(f"s_mov_b32 m0, s{sMisc}\ns_nop {opt.pnop}")
        for n in range(4):
            p1 += [[VM(f"buffer_load_dwordx4 v{vP1}, {sr(XA,4)}, s{sF1} offen offset:{1024*n} {opt.d1_sc} lds", "d1")] +
                   ([f"s_add_u32 s{sF1}, s{sF1}, {(1024 if opt.d1nat else 512)*1024-1024}"] if n < 3 else []), []]
    else: e("s_nop 7")
    nx = lambda: p1.pop(0) if p1 else []
    def qcv(qb):
        L = []
        for m in range(2):
            for nn in range(2):
                d = 4 * (2 * (2 * qb + nn) + m)
                L += [f"v_cvt_pk_bf16_f32 v{Q[qb]+4*m+2*nn+i}, v{d+2*i}, v{d+2*i+1}" for i in range(2)]
        return L + [f"v_permlane16_swap_b32 v{Q[qb]+4*m+i}, v{Q[qb]+4*m+2+i}" for m in range(2) for i in range(2)]
    c0_, c1_ = qcv(0), qcv(1)
    def qk0(t, qb, k, s):
        return f"v_mfma_f32_32x32x16_bf16 {vr(s,16)}, {vr(K[t]+4*k,4)}, {vr(Q[qb]+4*k,4)}, {vr(s,16) if k else 0}"
    tA = maxtree(vT0, S[2], True); tB = maxtree(vT0, S[3], False); tC = maxtree(vT1, S[0], True); tD = maxtree(vT1, S[1], False)
    e(c0_ + nx() + [Wt(lg="pk0", must=True), "s_nop 0", qk0(0, 0, 0, S[2])] + c1_[:6] + nx() + [qk0(0, 0, 1, S[2])] + c1_[6:] + nx())
    e([Wt(lg="pk1"), qk0(1, 0, 0, S[3])] + nx() + [qk0(1, 0, 1, S[3])] + nx() + [qk0(0, 1, 0, S[0])] + nx() + ["s_nop 3"] + tA[:2])
    e([qk0(0, 1, 1, S[0])] + tA[2:] + [qk0(1, 1, 0, S[1])] + ["s_nop 0"] + nx() + tB[:4] + [qk0(1, 1, 1, S[1])] + tB[4:] + tC + tD)
    def finish_max(off, mid):
        lit = hex(f2u(-off)) if off else 0
        e(f"""
        v_mov_b32 v{vT2}, v{vT0}
        v_mov_b32 v{vT3}, v{vT1}
        s_nop 0
        v_permlane32_swap_b32 v{vT0}, v{vT2}
        v_permlane32_swap_b32 v{vT1}, v{vT3}
        v_max_f32 v{vT0}, v{vT0}, v{vT2}
        v_max_f32 v{vT1}, v{vT1}, v{vT3}
        v_sub_f32 v{M[0]}, {lit}, v{vT0}
        v_sub_f32 v{M[0]+1}, {lit}, v{vT0}
        """)
        for i in range(2, 16, 2): e(f"v_mov_b64 {vr(M[0]+i,2)}, {vr(M[0],2)}")
        e(f"v_sub_f32 v{M[1]}, {lit}, v{vT1}\nv_sub_f32 v{M[1]+1}, {lit}, v{vT1}")
        e(mid)
        for i in range(2, 16, 2): e(f"v_mov_b64 {vr(M[1]+i,2)}, {vr(M[1],2)}")
    finish_max(opt.off, [f"v_mfma_f32_32x32x16_bf16 {vr(S[0],16)}, {vr(K[0],4)}, {vr(Q[0],4)}, {vr(M[0],16)}",
                         f"v_mfma_f32_32x32x16_bf16 {vr(S[0],16)}, {vr(K[0]+4,4)}, {vr(Q[0]+4,4)}, {vr(S[0],16)}"])
    e("s_nop 3")
    e(Wt(vm=["KV0b", "KV1a"])); e("s_barrier")
    g.stamp("attn start"); g.stamp("attn start", True)
    sl = {k: {} for k in ("q1", "q2", "p1", "p2", "x", "va", "top")}
    def put(kind, n, l): sl[kind].setdefault(n, []).extend(l if isinstance(l, list) else [l])
    def put_group(grp, n0, kind="p1"):
        pre, ops, post = grp
        put("q2", n0, pre)
        for i, op in enumerate(ops): put(kind, n0 + i, op)
        n1 = n0 + len(ops) - 1
        for i, x in enumerate(post): put(*(("p2", n1) if i == 0 or opt.rebal else ("q1", n1 + i)), x)
        return n0 + len(ops)
    def fftdata(srd, voff, sreg, step, n0, tag):
        put("q2", n0, f"s_mov_b32 m0, s{sMisc}")
        for n in range(4):
            put("p1", n0 + n, VM(f"buffer_load_dwordx4 v{voff}, {sr(srd,4)}, s{sreg} offen offset:{1024*n} sc1 lds", tag))
            if n < 3: put(*(("p2", n0 + n) if opt.rebal else ("q1", n0 + n + 1)), f"s_add_u32 s{sreg}, s{sreg}, {step}")
    def comp(n0, aT, sst, dtag, ttag, stag):
        put("q2", n0, Wt(vm=dtag)); put("q1", n0 + 4, Wt(vm=ttag))
        for k in range(4):
            for ee in range(2):
                ad = f"v192 offset:{k*1024+ee*256}" if opt.d1nat and dtag == "d1" else f"v{vFB+(k>>1)} offset:{(k&1)*2048+ee*512}"
                put("p2", n0 + k, LG(f"ds_read_b64_tr_b16 {ar(aD+4*k+2*ee,2)}, {ad}", f"{stag}r{k}"))
        for i in range(8):
            k, nb = i >> 1, i & 1; d = vr(vFD + 16 * nb, 16)
            put("q2", n0 + 4 + i, Wt(lg=f"{stag}r{k}"))
            put("x", n0 + 4 + i, f"v_mfma_f32_32x32x16_bf16 {d}, {ar(aD+4*k,4)}, {ar(aT+16*nb+4*k,4)}, {'0' if k==0 else d}")
        for q in range(4):
            nb, i = q >> 1, q & 1
            for m_ in range(4 * i, 4 * i + 4):
                put("va", n0 + 13 + q, f"v_cvt_pk_bf16_f32 v{vFD+16*nb+m_}, v{vFD+16*nb+2*m_}, v{vFD+16*nb+2*m_+1}")
            put("p1", n0 + 14 + q, VM(f"buffer_store_dwordx4 {vr(vFD+16*nb+4*i,4)}, v{v16}, {sr(WS,4)}, s{sst} offen offset:{1024*q} sc1", stag))
    def putflag(n, sfl, stag):
        put("q2", n, Wt(vm=stag)); put("va", n, f"v_mov_b32 v{vT0}, s{sTAG}")
        put("p2", n, VM(f"buffer_store_dword v{vT0}, v{vOne}, {sr(WS,4)}, s{sfl} offen sc1"))
    def putpoll(n, nchk, spo, tag):
        ld = f"buffer_load_dword v{vPoll}, v{vP4}, {sr(WS,4)}, s{spo} offen sc1"
        put("p2", n, VM(ld, tag))
        put("q1", nchk, Wt(vm=tag)); put("top2" if False else "q2", nchk, g.check(1, vPoll, ld))
    early = {(1, 1): 0, (2, 0): 4}
    t1slot = "p2" if (1, 1) in halves else "p1"
    n = 8
    for hv in halves:
        if hv in early: put_group(dmaKV(*hv), early[hv])
        else: n = put_group(dmaKV(*hv), n)
    assert n == 20
    for (ch, hf), n in {(4, 0): 20, (4, 1): 30, (5, 0): 34, (5, 1): 38, (6, 0): 48, (6, 1): 52, (7, 0): 64, (7, 1): 68}.items():
        put_group(dmaKV(ch, hf), n)
    put("q1", 70, [f"s_mov_b32 s{GW}, s22"]); put("q1", 71, [f"s_and_b32 s{GW+1}, s23, 0xffff"])
    for c, n in ((2, 84), (3, 88), (0, 92), (1, 96), (4, 100), (5, 120), (6, 124)):
        pre, ops, _ = dmaWo(c, ASL[c])
        put("q1", n, pre[1]); put_group(([pre[0]], ops, []), n)
    if not opt.nofft:
        e(f"s_mov_b32 s{sT0}, {TB.OFF_T1}\ns_mov_b32 s{sT1}, {TB.OFF_T1+4096}")
        for m, op in enumerate(tabload(lambda m: ar(aT1 + 4 * m, 4), sT0, 8, "t1")): put(t1slot, m + (1 if t1slot == "p2" else 0), op)
        comp(12, aT1, sSt1, "d1", "t1", "s1")
        putflag(37, sFl1, "s1")
        put("q1", 22, f"s_mov_b32 s{sT0}, s{sTab2}"); put("q1", 23, f"s_add_u32 s{sT1}, s{sTab2}, 4096")
        for m, op in enumerate(tabload(lambda m: ar(aT2 + 4 * m, 4), sT0, 8, "t2")): put("p1", 24 + m if m < 2 else 40 + m, op)
        putpoll(51, 55, sPo1, "po1")
        fftdata(WS, vZ, sF2, 32768 - 1024, 56, "d2")
        put("q1", 53, f"s_mov_b32 s{sT0}, {TB.OFF_T3}"); put("q1", 54, f"s_mov_b32 s{sT1}, {TB.OFF_T3+4096}")
        for m, op in enumerate(tabload(lambda m: ar(aT3 + 4 * m, 4), sT0, 6, "t3")): put("p1", 60 + m if m < 4 else 68 + m, op)
        put("q1", 61, f"s_mov_b32 s{sT2}, {TB.OFF_TX}")
        put("p1", 74, tabload(lambda m: ar(aTX, 4), sT2, 1, "t3"))
        comp(66, aT2, sSt2, "d2", "t2", "s2")
        putflag(91, sFl2, "s2")
        put("q1", 74, f"s_mov_b32 s{sT0}, {TB.OFF_TW}"); put("q1", 75, f"s_mov_b32 s{sT1}, {TB.OFF_TW+4096}")
        for m, op in enumerate(tabload(lambda m: ar(aTW + 4 * m, 4), sT0, 8, "t3")): put("p1", 75 + m if m < 5 else 105 + m, op)
        putpoll(104, 115, sPo2, "po2")
        fftdata(WS, vZ, sF3, 32768 - 1024, 116, "d3")
    if opt.rebal:
        for n in sorted(sl["q1"]):
            for x in [x for x in sl["q1"][n] if isinstance(x, str)]:
                for k, m in (("p2", n - 1), ("q2", n - 1), ("p2", n - 2), ("q2", n - 2)):
                    if (k, m) == ("p2", n - 1) if f"s{sOffW}," in x else not sl[k].get(m):
                        sl["q1"][n].remove(x); put(k, m, x); break
    for k in ("p1",):
        for n_, l in sl[k].items(): assert len(l) <= 1, (k, n_, l)
    if opt.loop2: e("s_mov_b32 s3, 0\nLpass:")
    for n in range(128):
        if opt.loop2 and n == 64:
            e("s_add_u32 s3, s3, 1\ns_cmp_lt_u32 s3, 2\ns_cbranch_scc1 Lpass\ns_branch Lpass_end")
        X = n & 1; Y = 1 - X
        se, sp, sq = S[n % 4], S[(n - 1) % 4], S[(n + 1) % 4]
        tq = ((n + 1) // 2) % 2; tv = ((n - 1) // 2) % 2
        E = [f"v_exp_f32 v{se+i}, v{se+i}" for i in range(16)]
        Q1 = f"v_mfma_f32_32x32x16_bf16 {vr(sq,16)}, {vr(K[tq],4)}, {vr(Q[Y],4)}, {vr(M[Y],16)}"
        Q2 = f"v_mfma_f32_32x32x16_bf16 {vr(sq,16)}, {vr(K[tq]+4,4)}, {vr(Q[Y]+4,4)}, {vr(sq,16)}"
        P1 = f"v_smfmac_f32_32x32x32_bf16 {vr(O[Y],16)}, {vr(V[tv],4)}, {vr(sp,8)}, v{IDX}"
        P2 = f"v_smfmac_f32_32x32x32_bf16 {vr(O[Y],16)}, {vr(V[tv]+4,4)}, {vr(sp+8,8)}, v{IDX}"
        L1 = f"v_smfmac_f32_16x16x64_bf16 {vr(Lr[Y],4)}, {vr(ONES,4)}, {vr(sp,8)}, v{IDX}"
        L2 = f"v_smfmac_f32_16x16x64_bf16 {vr(Lr[Y],4)}, {vr(ONES,4)}, {vr(sp+8,8)}, v{IDX}"
        if n == 0: P1 = P2 = L1 = L2 = None
        if n == 127: Q1 = Q2 = None
        T = n >> 1
        if X == 0: D = [rdKV(K[tq] + 4 * k, T + 2, k, f"h{n}") for k in range(2)] if T + 2 < 64 else [None, None]
        else: D = [rdKV(V[1 - tv] + 4 * k, T + 1, 2 + k, f"h{n}") for k in range(2)] if T + 1 < 64 else [None, None]
        if n % 16 == 0 and n:
            c = n >> 4
            e(Wt(vm=[f"KV{c}b", f"KV{c+1}a"] + ([f"oW{k}" for k in range(5)] if c == 7 else []))); e("s_barrier" if c not in opt.nob else "s_nop 0")
        if opt.afine and n % 8 == 0 and n: g.stamp(f"a{n}")
        if opt.walk and n % opt.walk == 0: put("q2", n, g.pad())
        w = Wt(lg=[f"h{n-2}", "pv"])
        gq = lambda k: sl[k].get(n, [])
        xm = gq("x")
        if xm: a, b, c_, d_ = 8, 9, 12, 13
        else: a, b, c_, d_ = 9, 11, 14, 16
        e([Q1, w] + gq("q1") + E[0:3] + [Q2] + gq("q2") + E[3:6] + [P1] + gq("p1") + E[6:a] + [L1, D[0]] + E[a:b] + gq("va") +
          [P2] + gq("p2") + E[b:c_] + [L2, D[1]] + E[c_:d_] + xm + E[d_:16])
    e(sl["q1"].get(128, []))
    if opt.loop2: e("Lpass_end:")
    e(f"""
    v_rcp_f32 v{vT0}, v{Lr[0]}
    v_smfmac_f32_16x16x64_bf16 {vr(Lr[1],4)}, {vr(ONES,4)}, {vr(S[3],8)}, v{IDX}
    v_smfmac_f32_16x16x64_bf16 {vr(Lr[1],4)}, {vr(ONES,4)}, {vr(S[3]+8,8)}, v{IDX}
    v_smfmac_f32_32x32x32_bf16 {vr(O[1],16)}, {vr(V[1],4)}, {vr(S[3],8)}, v{IDX}
    v_smfmac_f32_32x32x32_bf16 {vr(O[1],16)}, {vr(V[1]+4,4)}, {vr(S[3]+8,8)}, v{IDX}
    s_mov_b32 s{sMode}, 0
    """.replace(f"v_rcp_f32 v{vT0}, v{Lr[0]}\n", "s_nop 0\n"))
    g.stamp("attn end"); g.stamp("attn end", True)
    e("s_nop 2\nLa_norm:")
    for qb in range(2):
        e(f"v_rcp_f32 v{2*qb}, v{Lr[qb]}\ns_nop 0\nv_mov_b32 v{2*qb+1}, v{2*qb}")
        for i in range(8): e(f"v_pk_mul_f32 {vr(O[qb]+2*i,2)}, {vr(O[qb]+2*i,2)}, {vr(2*qb,2)}")
        for i in range(8): e(f"v_cvt_pk_bf16_f32 v{8+8*qb+i}, v{O[qb]+2*i}, v{O[qb]+2*i+1}")
        for k in range(2):
            e(VM(f"buffer_store_dwordx4 {vr(8+8*qb+4*k,4)}, v{v16}, {sr(WS,4)}, s{sOst} offen offset:{2048*qb+1024*k} sc1", "ost"))
    e(f"v_maximum3_f32 v4, v{Lr[0]}, v{Lr[1]}, abs(v{O[0]})")
    for i in range(1, 31, 2): e(f"v_maximum3_f32 v4, v4, abs(v{O[0]+i}), abs(v{O[0]+i+1})")
    e(f"""
    v_maximum3_f32 v4, v4, abs(v{O[0]+31}), v4
    s_mov_b32 s{sT0}, {hex(f2u(2.0**110))}
    v_cmp_nlt_f32 vcc, v4, s{sT0}
    """)
    if opt.force_fb: e("s_nop 1\ns_mov_b64 vcc, -1")
    e(f"""
    s_cmp_eq_u64 vcc, 0
    s_cselect_b32 s{sT0}, 1, s{sMode}
    s_cmp_eq_u32 s{sT0}, 0
    s_cbranch_scc1 Lfb
    """)
    g.stamp("o stored")
    pA = 32; pR = 48; pI = 64; pU = 80; pT = 96; pF = 104; pM = 112; pX = 120; pW = 128
    vAs = 5; vBm = 176; vPO = 7
    p3st = [f"buffer_store_dwordx4 {vr(pF,4)}, v{pX+1}, {sr(OUT,4)}, s{sF1} offen {opt.p3_sc}",
            f"buffer_store_dwordx4 {vr(pF+4,4)}, v{pX+1}, {sr(OUT,4)}, s{sF1} offen offset:512 {opt.p3_sc}",
            f"buffer_store_dwordx4 {vr(pM,4)}, v{pX+2}, {sr(OUT,4)}, s{sF2} offen offset:512 {opt.p3_sc}",
            f"buffer_store_dwordx4 {vr(pM+4,4)}, v{pX+2}, {sr(OUT,4)}, s{sF2} offen {opt.p3_sc}"]
    zero_im = [f"v_mov_b64 {vr(pA+8+i,2)}, 0" for i in range(0, 8, 2)]
    def p3(main):
        L = []; a = L.append
        T = (lambda t, tag: LG(t, tag)) if main else (lambda t, tag: t)
        for k in range(4):
            for ee in range(2):
                a(T(f"ds_read_b64_tr_b16 {vr(pA+4*k+2*ee,2)}, v{vFB+(k>>1)} offset:{(k&1)*2048+ee*512}", f"b{k}"))
        stage = []; stage2 = []; wl = []
        if main:
            L += [f"s_sub_u32 s{sF2}, 2048, s{sRow}", f"s_and_b32 s{sF2}, s{sF2}, 2047", f"s_lshl_b32 s{sF2}, s{sF2}, 12",
                  f"s_lshl_b32 s{sF1}, s{sRow}, 12", f"v_add_u32 v{vAs}, 131072, v{vA}", f"v_add_u32 v{vAs+1}, 131072, v{vA2}", f"s_cmp_eq_u32 s{sRow}, 0", "s_cbranch_scc1 Lp3_real", "Lp3_mm:"]
            for c in range(7):
                hi = ASL[c] // 49152
                r, o = ((vAs, vAs + 1), 0) if hi > 1 else ((vA + hi, vA2 + hi), ASL[c] % 49152)
                for u in range(2):
                    for m in range(2):
                        for ee in range(2):
                            stage.append(LG(f"ds_read_b64_tr_b16 {ar(aW(c)+8*u+4*m+2*ee,2)}, v{r[m]} offset:{o+u*8192+ee*1024}", "stg" if c < 5 else "stg2"))
            stage2 = stage[40:]; stage = stage[:40]
            for c in opt.win: wl += burst(dmaWo(c, WSL[c] * 16384))
        else: L += ["s_waitcnt lgkmcnt(0)"] + zero_im + ["s_nop 1"]
        acc = [f"v_accvgpr_read_b32 v{pW+i}, a{aTW+i}" for i in range(32)] + [f"v_accvgpr_read_b32 v{pX+i}, a{aTX+i}" for i in range(3)] if main else []
        for k in range(4):
            if main: a(Wt(lg=f"b{k}"))
            for nb in range(2):
                d = vr((pR, pI)[nb], 16)
                tb = aT3 + (4 * k if nb == 0 else (16 + 4 * k if k < 2 else 4 * (k - 2)))
                a(f"v_mfma_f32_32x32x16_bf16 {d}, {vr(pA+4*k,4)}, {ar(tb,4)}, {'0' if k==0 else d}")
                for _ in range(5):
                    if stage: a(stage.pop(0))
                for _ in range(3):
                    if acc: a(acc.pop(0))
        if main:
            L += acc + g.stampl("beta") + [Wt(vm="ost", lg="stg"), "s_barrier", f"s_cmp_lg_u32 s{sW}, 1", "s_cbranch_scc1 Lnoofl"] + g.flag(0, sFlO) + ["Lnoofl:"] + g.stampl("oflag")
        else: a("s_nop 11")
        for i in range(8):
            r, im, c, s_ = pR + 2 * i, pI + 2 * i, pW + 2 * i, pW + 16 + 2 * i
            L += stage2[2 * i:2 * i + 2] + (take_vm(wl) if i % 2 else []) + [
                f"v_pk_mul_f32 {vr(pT,2)}, {vr(r,2)}, {vr(c,2)}", f"v_pk_mul_f32 {vr(pT+2,2)}, {vr(im,2)}, {vr(c,2)}",
                f"v_pk_fma_f32 {vr(pT,2)}, {vr(im,2)}, {vr(s_,2)}, {vr(pT,2)}",
                f"v_pk_fma_f32 {vr(pT+2,2)}, {vr(r,2)}, {vr(s_,2)}, {vr(pT+2,2)} neg_lo:[0,1,0] neg_hi:[0,1,0]",
                f"v_cvt_pk_bf16_f32 v{pU+i}, v{pT}, v{pT+1}", f"v_cvt_pk_bf16_f32 v{pU+8+i}, v{pT+2}, v{pT+3}"]
        a("s_nop 0")
        for k in range(4):
            a(f"v_mfma_f32_32x32x16_bf16 {vr(pR,16)}, {vr(pU+4*k,4)}, {ar(aT3+4*k,4)}, {'0' if k==0 else vr(pR,16)}")
            L += take_vm(wl)
        if main:
            L += [f"s_lshl_b32 s{sT2}, s{sRB}, 6", f"s_add_u32 s{sT2}, s{sT2}, s{sW}", f"s_lshl_b32 s{sT2}, s{sT2}, 11",
                  f"s_add_u32 s{sT2}, s{sT2}, {WS_O}", f"s_sub_u32 s{sXb}, s{sXb}, {L_X-L_XO}", f"v_add_u32 v{vOX}, s{sT2}, v{v16}",
                  f"v_and_b32 v{vB}, 15, v{vL}", f"v_bfe_u32 v{vBm}, v{vL}, 4, 1", f"v_lshlrev_b32 v{vB}, 4, v{vB}", f"v_lshl_or_b32 v{vB}, v{vBm}, 10, v{vB}",
                  f"v_lshrrev_b32 v{vBm}, 5, v{vL}", f"v_lshl_or_b32 v{vB}, v{vBm}, 9, v{vB}", f"v_add_u32 v{vBm}, {L_MISC}, v{vB}",
                  f"v_add_u32 v{vB}, {L_XO}, v{vB}", f"v_add_u32 v{vBm+2}, s{sMisc}, v{v16}",
                  f"v_and_b32 v{vPO}, 7, v{vL}", f"v_lshl_or_b32 v{vPO}, v{vPO}, 2, 1", f"v_lshlrev_b32 v{vPO}, {opt.fsp}, v{vPO}"]
        else: a("s_nop 11")
        a(T(f"ds_bpermute_b32 v{pR+16}, v{pX}, v{pR}", "bp"))
        for m_ in range(8):
            a(f"v_cvt_pk_bf16_f32 v{pF+m_}, v{pR+2*m_}, v{pR+2*m_+1}")
            if m_ % 4 == 3: L += take_vm(wl)
        for m_ in range(1, 8): a(f"v_cvt_pk_bf16_f32 v{pM+m_}, v{pR+16-2*m_}, v{pR+15-2*m_}")
        L += take_vm(wl)
        for i in range(4): a(f"v_permlane16_swap_b32 v{pF+i}, v{pF+4+i}")
        L += [Wt(lg="bp") if main else "s_waitcnt lgkmcnt(0)", f"v_cvt_pk_bf16_f32 v{pM}, v{pR+16}, v{pR+15}", "s_nop 1"]
        for i in range(4): a(f"v_permlane16_swap_b32 v{pM+i}, v{pM+4+i}")
        return L + wl
    e(g.pad())
    e(Wt(vm=["d3", "t3"]))
    e(p3(True))
    e(g.pad())
    g.tail += ["Lp3_real:", "s_waitcnt lgkmcnt(0)"] + zero_im + [f"v_xor_b32 v{vFB}, 16, v{vFB}", "s_branch Lp3_mm"]
    g.tail += ["Lp3_again:"] + p3st + [f"s_mov_b32 s{sF1}, {1024<<12}", f"s_mov_b32 s{sF2}, {1024<<12}"] + p3(False) + ["s_branch Lp3_end"]
    e(f"s_cmp_eq_u32 s{sRow}, 0\ns_cbranch_scc1 Lp3_again\nLp3_end:")
    for n in range(4): e(LG(f"ds_write_b128 v{vBm+2}, {vr(8+4*n,4)} offset:{1024*n}", "own"))
    epi = f"""
    v_and_b32 v56, 15, v{vL}
    v_lshrrev_b32 v57, 5, v{vL}
    v_bfe_u32 v58, v{vL}, 4, 1
    v_lshl_or_b32 v57, v58, 1, v57
    v_bfe_u32 v58, v{vL}, 1, 2
    v_xor_b32 v57, v57, v58
    v_lshlrev_b32 v57, 4, v57
    v_lshl_or_b32 v56, v56, 6, v57
    v_add_u32 v56, s{sWb}, v56
    v_lshrrev_b32 v58, 2, v{vL}
    v_bfe_u32 v59, v{vL}, 3, 2
    v_and_b32 v60, 3, v{vL}
    v_xor_b32 v59, v59, v60
    v_lshlrev_b32 v59, 4, v59
    v_lshl_or_b32 v59, v58, 6, v59
    v_add_u32 v59, s{sWb}, v59
    v_lshlrev_b32 v60, 4, v60
    v_lshl_or_b32 v58, v58, 12, v60
    s_lshl_b32 s{sT0}, s{sRB}, 18
    s_lshl2_add_u32 s{sT1}, s{sG}, s{sW}
    s_lshl_b32 s{sT1}, s{sT1}, 6
    s_add_u32 s{sT0}, s{sT0}, s{sT1}
    s_add_u32 s{sT0}, s{sT0}, 2048
    s_add_u32 s{sT1}, s{sT0}, 0x10000
    s_add_u32 s{sT2}, s{sT0}, 0x20000
    s_add_u32 s{sT3}, s{sT0}, 0x30000
    """.strip().split("\n")
    if opt.wgepi:
        epi = f"""
        v_and_b32 v56, 15, v{vL}
        v_lshrrev_b32 v57, 5, v{vL}
        v_bfe_u32 v58, v{vL}, 4, 1
        v_lshl_or_b32 v57, v58, 1, v57
        v_lshl_or_b32 v57, s{sW}, 2, v57
        v_and_b32 v58, 7, v{vL}
        v_xor_b32 v57, v57, v58
        v_lshlrev_b32 v57, 4, v57
        v_lshl_or_b32 v57, v56, 8, v57
        v_lshrrev_b32 v58, 4, v{vL}
        v_xor_b32 v59, v56, v58
        v_lshlrev_b32 v59, 4, v59
        v_lshl_or_b32 v59, v58, 8, v59
        v_add_u32 v59, s{sWb}, v59
        v_xor_b32 v60, 64, v59
        v_lshlrev_b32 v56, 4, v56
        v_lshl_or_b32 v58, v58, 12, v56
        s_lshl2_add_u32 s{sT0}, s{sRB}, s{sW}
        s_lshl_b32 s{sT0}, s{sT0}, 16
        s_lshl_b32 s{sT1}, s{sG}, 8
        s_add_u32 s{sT0}, s{sT0}, s{sT1}
        s_add_u32 s{sT0}, s{sT0}, 2048
        s_add_u32 s{sT1}, s{sT0}, 0x4000
        s_add_u32 s{sT2}, s{sT0}, 0x8000
        s_add_u32 s{sT3}, s{sT0}, 0xc000
        """.strip().split("\n")
    if not opt.epig: e([x.strip() for x in epi])
    g.stamp("p3 done")
    opoll = f"buffer_load_dword v{vPoll}, v{vPO}, {sr(WS,4)}, s{sPoO} offen sc1"
    e([f"s_cmp_lg_u32 s{sW}, 3", "s_cbranch_scc1 Lnopoll", opoll, "s_waitcnt vmcnt(0)"] + g.check(1, vPoll, opoll) + ["Lnopoll:", Wt(lg=["own", "stg2"]), "s_barrier"])
    g.stamp("o flags")
    lead = []
    for c in range(2, 2 + opt.xurg): lead += burst(dmaXo(c))
    e(take_vm(lead, 2))
    og = {-1: take_vm(lead, opt.xpre)}
    i = 0
    while lead: og[i] = take_vm(lead); i += 1
    items = [(0, 8 * c - 8, dmaXo(c)) for c in range(2 + opt.xurg, 10)] + [(8 * (c - 7), 8 * c - 8, dmaXo(c)) for c in range(10, 16)]
    items += [(0, 8 * c - 8, dmaWo(c, WSL[c] * 16384)) for c in range(7, 12) if c not in opt.win]
    items += [(8 * (c - 4), 8 * c - 8, dmaWo(c, WSL[c] * 16384)) for c in range(12, 16)]
    while items:
        av = [it for it in items if it[0] <= i]
        if not av: i = min(it[0] for it in items); continue
        it = min(av, key=lambda it: it[1]); items.remove(it)
        pre, ops, _ = it[2]
        og.setdefault(i, []).extend(pre + ([] if len(pre) > 1 else ["s_nop 0"]))
        for op in ops:
            og.setdefault(i, []).append(op); last = i
            i += opt.pace if it[1] - i > opt.slack else 1
        assert last < it[1] - 6, (last, it[1])
    if opt.epig:
        for n, x in enumerate(epi): og.setdefault(n * 8 // len(epi), []).append(x.strip())
    if opt.ofine:
        for c in range(1, 16): og.setdefault(8 * c - 1, []).extend(g.stampl(f"oc{c}"))
    if opt.fine:
        for i, nm in ((13, "o c2"), (45, "o c5"), (85, "o c10")): og.setdefault(i, []).extend(g.stampl(nm))
    for n, x in enumerate(p3st): og.setdefault(opt.dpos + opt.dsp * n, []).append(VM(x))
    grp = {}
    for i in range(2 * opt.walk, 128, 3 * opt.walk) if opt.walk else []: og.setdefault(i | 1, []).extend(g.pad())
    rest = gemm(g, "o", lambda c: ("a", aW(c)) if c < 7 else ((vA + WSL[c] // 3, vA2 + WSL[c] // 3), (WSL[c] % 3) * 16384),
                lambda c: (vBm, c * 8192, (0, 256, 2048, 2304)) if c < 2 else (vB, ((c - 2) % 8) * 8192, (0, 256, 2048, 2304)),
                {c: [f"oX{c}"] + ([f"oW{c}"] if c > 6 else []) for c in range(2, 16)}, grp, og)
    assert not rest
    g.stamp("out gemm done")
    e("s_nop 1")
    for n in range(4):
        for i in range(4): e(f"v_cvt_pk_bf16_f32 v{64+4*n+i}, v{8*n+2*i}, v{8*n+2*i+1}")
        if n: e([f"v_permlane16_swap_b32 v{60+4*n+i}, v{62+4*n+i}" for i in range(2)] + [LG(f"ds_write_b128 v{57 if opt.wgepi else 56}, {vr(60+4*n,4)} offset:{(4096 if opt.wgepi else 1024)*(n-1)}", f"ew{n-1}")])
    e(["s_nop 0"] + [f"v_permlane16_swap_b32 v{76+i}, v{78+i}" for i in range(2)] + [LG(f"ds_write_b128 v{57 if opt.wgepi else 56}, {vr(76,4)} offset:{12288 if opt.wgepi else 3072}", "ew3")])
    if opt.wgepi: e([Wt(lg="ew3"), "s_barrier"])
    for n in range(4):
        e(Wt(lg=f"ew{n}"))
        e(LG(f"ds_read_b128 {vr(80+4*n,4)}, v{59+(n&1) if opt.wgepi else 59} offset:{1024*n}", f"er{n}"))
    for n in range(4):
        e(Wt(lg=f"er{n}"))
        e(f"buffer_store_dwordx4 {vr(80+4*n,4)}, v58, {sr(OUT,4)}, s{sT0+n} offen {opt.out_sc}")
    if opt.stamps:
        e("s_waitcnt vmcnt(0)")
        g.stamp("end")
    if opt.echo:
        e("s_waitcnt vmcnt(0)")
        g.stamp("fin")
        e("""
        s_memrealtime s[6:7]
        s_waitcnt lgkmcnt(0)
        s_lshl_b32 s9, s9, 2
        s_add_u32 s9, s9, s6
        Lecho:
        s_sleep 2
        s_memrealtime s[6:7]
        s_waitcnt lgkmcnt(0)
        s_sub_u32 s10, s6, s9
        s_cmp_lt_i32 s10, 0
        s_cbranch_scc1 Lecho
        """)
    e("Lend:\ns_endpgm")
    e(g.tail)
    e(f"""
    Lfb:
    s_mov_b32 s{sMode}, 1
    v_mov_b32 v{vT0}, 0xff800000
    v_mov_b32 v{vT1}, 0xff800000
    s_mov_b32 s{sC}, 0
    Lfb1:
    buffer_load_dwordx4 {vr(K[0],4)}, v{v16}, {sr(WS,4)}, s{sC} offen sc1
    buffer_load_dwordx4 {vr(K[0]+4,4)}, v{v16}, {sr(WS,4)}, s{sC} offen offset:1024 sc1
    s_waitcnt vmcnt(0)
    """)
    for qb in range(2):
        e(f"v_mfma_f32_32x32x16_bf16 {vr(S[qb],16)}, {vr(K[0],4)}, {vr(Q[qb],4)}, 0")
        e(f"v_mfma_f32_32x32x16_bf16 {vr(S[qb],16)}, {vr(K[0]+4,4)}, {vr(Q[qb]+4,4)}, {vr(S[qb],16)}")
    e("s_nop 15")
    e(maxtree(vT0, S[0], False) + maxtree(vT1, S[1], False))
    e(f"s_add_u32 s{sC}, s{sC}, 4096\ns_cmp_lt_u32 s{sC}, 0x40000\ns_cbranch_scc1 Lfb1")
    finish_max(0.0, [])
    for i in range(O[0], Lr[1] + 4, 2): e(f"v_mov_b64 {vr(i,2)}, 0")
    e(f"s_mov_b32 s{sC}, 0\nLfb2:")
    for k in range(2):
        e(f"buffer_load_dwordx4 {vr(K[0]+4*k,4)}, v{v16}, {sr(WS,4)}, s{sC} offen offset:{1024*k} sc1")
        e(f"buffer_load_dwordx4 {vr(V[0]+4*k,4)}, v{v16}, {sr(WS,4)}, s{sC} offen offset:{2048+1024*k} sc1")
    e("s_waitcnt vmcnt(0)")
    for qb in range(2):
        e(f"v_mfma_f32_32x32x16_bf16 {vr(S[qb],16)}, {vr(K[0],4)}, {vr(Q[qb],4)}, {vr(M[qb],16)}")
        e(f"v_mfma_f32_32x32x16_bf16 {vr(S[qb],16)}, {vr(K[0]+4,4)}, {vr(Q[qb]+4,4)}, {vr(S[qb],16)}")
    e("s_nop 15")
    for i in range(32): e(f"v_exp_f32 v{i}, v{i}")
    e("s_nop 1")
    for qb in range(2):
        for u in range(2):
            e(f"v_smfmac_f32_32x32x32_bf16 {vr(O[qb],16)}, {vr(V[0]+4*u,4)}, {vr(S[qb]+8*u,8)}, v{IDX}")
            e(f"v_smfmac_f32_16x16x64_bf16 {vr(Lr[qb],4)}, {vr(ONES,4)}, {vr(S[qb]+8*u,8)}, v{IDX}")
    e(f"""
    s_add_u32 s{sC}, s{sC}, 4096
    s_cmp_lt_u32 s{sC}, 0x40000
    s_cbranch_scc1 Lfb2
    s_nop 15
    s_branch La_norm
    Lcode_end:
    """)
    txt = g.text()
    for i, l in enumerate(txt):
        if "PADNEXT" in l:
            k = int(l.split("PADNEXT")[1]) + 4
            txt[i] = l.split("PADNEXT")[0] + (f"Lpad{k}" if k < g.npad else "Lwalk_ret")
    a = txt.index("Lkv_done:"); b = txt.index("Lkvflag_b:")
    nld = sum(1 for l in txt[a:b] if l.startswith(" buffer_load"))
    txt[txt.index(" KVFLAGWAIT")] = f" s_waitcnt vmcnt({nld})"
    return txt

def table_text():
    b = TB.blob(); L = []
    for i in range(0, len(b), 128):
        ch = b[i:i + 128]
        L.append(".octa " + ",".join("0x%x" % int.from_bytes(ch[j:j + 16], "little") for j in range(0, 128, 16)))
    return "\n".join(L)

NOTES = """;
;  3. Attention over all 2048 keys: S^T = K Q^T with -m as the C operand, v_exp_f32 in place, P V and the row sums with the
; Hand-offs between workgroups go through d_ws: sc1 stores, vmcnt wait, sc1 flag; consumers poll with sc1 loads, then load
"""
def build(opt):
    ref = open(f"cdna_kernels/{NAME}.s.ref").read().split("\n")
    head = [l for l in ref if l.startswith(";") and "@launch" not in l]
    s = "\n".join(head) + "\n; @launch grid=(256,1,1) block=(256,1,1) lds=163840\n" + NOTES
    s += f""".amdgcn_target "amdgcn-amd-amdhsa--gfx950"
.text
.globl {NAME}_kernel
.p2align 8
.type {NAME}_kernel,@function
"""
    s += "\n".join(gen(opt)) + "\n"
    s += f""".fill {2048 if opt.exp==4 else 256}, 4, 0xbf800000
s_endpgm
.section .rodata,"a"
.p2align 6
.amdhsa_kernel {NAME}_kernel
  .amdhsa_next_free_vgpr 512
  .amdhsa_next_free_sgpr 102
  .amdhsa_accum_offset 256
  .amdhsa_group_segment_fixed_size 0
  .amdhsa_kernarg_size 104
  .amdhsa_user_sgpr_count 2
  .amdhsa_user_sgpr_kernarg_segment_ptr 1
  .amdhsa_system_sgpr_workgroup_id_x 1
.end_amdhsa_kernel
.p2align 8
fn_tables:
"""
    s += table_text() + "\n"
    return s

if __name__ == "__main__":
    opt = Opt()
    out = f"cdna_kernels/{NAME}.s"
    for a in sys.argv[1:]:
        if a.startswith("-o"): out = a[2:]
        else:
            k, v = a.split("=")
            cur = getattr(opt, k)
            setattr(opt, k, type(cur)(int(v)) if isinstance(cur, (bool, int)) else type(cur)(v))
    s = build(opt)
    open(out, "w").write(s)
    if opt.stamps: open(out + ".names", "w").write("\n".join(opt.names))
    print(out, len(s), "bytes")
```

```python
import sys, struct
import tables as TB

NAME = "concat_heads__spectral_fnet__grouped_kv_mqa__prompt"

class Opt:
    stamps = False
    dbg = False
    codepf = True
    spin = 1 << 20
    out_sc = "nt"
    force_fb = False
    off = 100.0
    bpos = 0
    wgepi = True
    d1nat = True
    rebal = True
    nofill = 0
    epig = True
    loop2 = False
    dsp = 4
    ofine = False
    pnop = 0
    xurg = 4
    pace = 2
    slack = 24
    walk = 0
    wpos = 0
    pf2 = 0
    nobar = ''
    wf = 4
    lead = 5
    nkv = 5
    fgap = 3
    rot = '4821'
    nt = ''
    ntf = 'nt'
    dpos = 104
    xpre = 2
    nwin = 3
    w0n = 0
    poll1 = True
    wgflag = True
    defer = True
    fsp = 2
    slp = 0
    pre1 = 2
    echo = ''
    warm = False
    p3_sc = 'nt'
    d1_sc = ''
    ppos = 21
    afine = False
    exp = 0
    xsc = ''
    fine = False
    mapA = True
    kvb = 11
    nofft = False
    oflag = 0

def f2u(x): return struct.unpack("<I", struct.pack("<f", x))[0]
def vr(b, n): return f"v[{b}:{b+n-1}]"
def ar(b, n): return f"a[{b}:{b+n-1}]"
def sr(b, n): return f"s[{b}:{b+n-1}]"

WS_FL = 0x40000
FL_EPOCH = WS_FL
FL_KV = WS_FL + 0x1000
FL_Z1 = WS_FL + 0x2000
FL_Z2 = WS_FL + 0x3000
FL_O = WS_FL + 0x8000
WS_O = 0x100000
WS_Z1 = 0x800000
WS_Z2 = 0xC00000
WS_ST = 0x1000000
L_X = 96 * 1024; L_MISC = 144 * 1024
KB = [65536, 0, 32768, 98304]
sW, sX, sJ, sRB, sG, sC0 = 30, 31, 32, 33, 34, 35
GX, GW, WS, OUT, XA, TBL, KW = 36, 40, 44, 48, 52, 56, 60
sTAG, sOffW, sTX, sWb, sXb = 64, 65, 66, 67, 68
sRB2, sG2, sC2 = 69, 70, 71
sKV, sKV2, sMisc = 72, 73, 74
sF1, sSt1, sFl1, sPo1, sTab2, sF2, sSt2, sFl2, sPo2, sF3, sRow = 75, 76, 77, 78, 79, 86, 87, 88, 89, 90, 91
sT0, sT1, sT2, sT3, sT4, sT5 = 80, 81, 82, 83, 84, 85
sOst, sOst2, sFlO, sPoO, sOffW2, sFlKV, sCB, sMode, sSpin, sTb = 92, 93, 94, 95, 96, 97, 98, 99, 100, 101
sC = 16
sLow = 69; sOwn = [70, 71]
sIdx = [4, 5, 14, 15, 18, 19, 20, 21, 24, 25, 28, 29, 35, 17]
def idx(c): return sOwn[c] if c < 2 else sIdx[c - 2]
ASL = {2: 65536, 3: 81920, 0: 131072, 1: 0, 4: 16384, 5: 32768, 6: 49152}
def aW(c): return 16 * c if c < 5 else 148 + 16 * (c - 5)
L_XO = 80 * 1024
WSL = {7: 0, 8: 1, 9: 4, 10: 2, 11: 3, 12: 0, 13: 1, 14: 4, 15: 2}
S = [0, 16, 32, 48]; O = [64, 80]; Lr = [96, 100]; M = [104, 120]; Q = [136, 144]; K = [152, 160]; V = [168, 176]
ONES = 184; IDX = 188; vKlo = 230; vKhi = 189
vFD = 196
vFB = 228
v16 = 230; vP1 = 231; vZ = 232; vA = 233; vB = 235; vOW = 238; vOX = 242
vA2 = 190; vPoll = 244; vP4 = 245; vOne = 237
vDummy = 246
vL = 250; vT0 = 251; vT1 = 252; vT2 = 253; vT3 = 254; vT4 = 255
aD, aT1, aT2, aT3, aTX, aTW = 0, 16, 48, 80, 112, 116

NT = {'w': '', 'x': '', 'o': ''}
class I:
    def __init__(s, t, kind=None, tag=None): s.t, s.kind, s.tag = t, kind, tag
class Wt:
    def __init__(s, vm=None, lg=None, must=False): s.vm, s.lg, s.must = vm, lg, must
def VM(t, tag=None): return I(t, "vm", tag)
def LG(t, tag=None): return I(t, "lg", tag)

class G:
    def __init__(self, opt):
        self.o = []; self.opt = opt; self.nst = 0; self.uid = 0; self.tail = []
    def e(self, s):
        if isinstance(s, (list, tuple)):
            for x in s: self.e(x)
        elif isinstance(s, (I, Wt)): self.o.append(s)
        elif s:
            for l in s.strip("\n").split("\n"):
                l = l.strip()
                if l: self.o.append(I(l))
    def lab(self, p):
        self.uid += 1; return f"{p}_{self.uid}"
    def text(self):
        out = []; vq = []; lq = []; seen = set(); waited = set()
        alltags = {x.tag for x in self.o if isinstance(x, I) and x.kind}
        def cnt(q, tags, mx):
            tags = tags if isinstance(tags, (list, tuple)) else [tags]
            for t in tags:
                assert t in seen or t not in alltags, ("wait before issue", t)
                waited.add(t)
            idx = max([i for i, t in enumerate(q) if t in tags], default=-1)
            if idx < 0: return None
            n = min(len(q) - 1 - idx, mx)
            del q[:len(q) - n]
            return n
        for x in self.o:
            if isinstance(x, Wt):
                p = []
                if x.vm is not None:
                    if x.vm == "all": p.append("vmcnt(0)"); vq.clear()
                    else:
                        n = cnt(vq, x.vm, 63)
                        if n is not None: p.append(f"vmcnt({n})")
                if x.lg is not None:
                    if x.lg == "all": p.append("lgkmcnt(0)"); lq.clear()
                    else:
                        n = cnt(lq, x.lg, 15)
                        if n is not None: p.append(f"lgkmcnt({n})")
                if p: out.append(" s_waitcnt " + " ".join(p))
                elif x.must: out.append(" s_nop 0")
            else:
                if x.kind:
                    assert x.tag is None or x.tag not in waited, ("issue after wait", x.tag)
                    seen.add(x.tag)
                if x.kind == "vm": vq.append(x.tag)
                if x.kind == "lg": lq.append(x.tag)
                out.append(x.t if x.t.endswith(":") else " " + x.t)
        return out
    def stamp(self, name, cyc=False):
        if self.opt.echo.startswith("cyc:") and not cyc:
            a, b = self.opt.echo[4:].split("-")
            if name == a: self.e("s_memtime s[6:7]\ns_waitcnt lgkmcnt(0)\ns_mov_b32 s3, s6")
            if name == b: self.e("s_memtime s[6:7]\ns_waitcnt lgkmcnt(0)\ns_sub_u32 s9, s6, s3\ns_lshr_b32 s9, s9, 3")
        if self.opt.echo == name and not cyc:
            self.e("s_memrealtime s[6:7]\ns_waitcnt lgkmcnt(0)\ns_sub_u32 s9, s6, s3")
        if not self.opt.stamps or cyc: return
        k = self.nst; self.nst += 1
        self.opt.names.append(("CYC " if cyc else "") + name)
        if self.opt.dbg:
            lb = self.lab("Lnost")
            self.e(f"""
            s_cmp_lg_u32 s9, 0
            s_cbranch_scc1 {lb}
            s_memrealtime s[6:7]
            s_waitcnt lgkmcnt(0)
            v_mov_b32 v195, s6
            s_mov_b64 exec, 1
            buffer_atomic_umax v195, off, s[12:15], 0 offset:{4*k}
            s_mov_b64 exec, -1
            {lb}:
            """)
            return
        self.e(f"""
        s_memrealtime s[6:7]
        s_memtime s[12:13]
        s_waitcnt lgkmcnt(0)
        v_mov_b32 v194, s6
        v_mov_b32 v195, s12
        buffer_store_dwordx2 v[194:195], off, {sr(WS,4)}, s8 offset:{8*k}
        """)
    def stampl(self, name):
        if name in ("beta", "oflag") and not self.opt.fine: return []
        save = self.o; self.o = []; self.stamp(name); r = self.o; self.o = save; return r
    def pad(self):
        if not self.opt.walk: return []
        self.npad = getattr(self, "npad", 0) + 1
        return [f"Lpad{self.npad-1}:", f"s_cbranch_execz PADNEXT{self.npad-1}"]
    def srd(self, d, lo, size):
        return [f"s_mov_b32 s{d}, s{lo}", f"s_and_b32 s{d+1}, s{lo+1}, 0xffff", f"s_mov_b32 s{d+2}, {size}", f"s_mov_b32 s{d+3}, 0x20000"]
    def flag(self, tmp, soff):
        return [f"v_mov_b32 v{tmp}, s{sTAG}", f"buffer_store_dword v{tmp}, v{vOne}, {sr(WS,4)}, s{soff} offen sc1"]
    def check(self, nreg, reg, load):
        lr = self.lab("Lretry"); lb = self.lab("Lback")
        cmp = [f"v_cmp_ne_u32 vcc, s{sTAG}, v{reg}"]
        for i in range(1, nreg):
            cmp += [f"v_cmp_ne_u32 s[10:11], s{sTAG}, v{reg+i}", "s_or_b64 vcc, vcc, s[10:11]"]
        self.tail += [f"{lr}:", f"s_mov_b32 s{sSpin}, {self.opt.spin}", f"{lr}_l:", f"s_sleep {self.opt.slp}" if self.opt.slp else None, load, "s_waitcnt vmcnt(0)"] + cmp + [
            "s_cmp_eq_u64 vcc, 0", f"s_cbranch_scc1 {lb}", f"s_sub_u32 s{sSpin}, s{sSpin}, 1", f"s_cbranch_scc0 {lr}_l",
            f"v_mov_b32 v{vDummy}, {self.uid}", f"v_mov_b32 v{vDummy+1}, 0",
            f"global_store_dword v{vDummy+1}, v{vDummy}, s[26:27] offset:60", f"s_branch {lb}"]
        return cmp + ["s_cmp_eq_u64 vcc, 0", f"s_cbranch_scc0 {lr}", f"{lb}:"]

def dmaW(c, soff=sOffW, p=""):
    pre = [f"s_add_u32 m0, s{sWb}, {(c%6)*16384}"]
    ops = [VM(f"buffer_load_dwordx4 v{vOW+n}, {sr(GW,4)}, s{soff} offen offset:{1024*n} {NT['w']} lds", f"{p}W{c}") for n in range(4)]
    post = [f"s_add_u32 s{soff}, s{soff}, 0x20000", f"s_and_b32 s{soff}, s{soff}, 0x1fffff"]
    return pre, ops, post
def dmaX(c, step, mask, adv=1, p=""):
    pre = [f"s_add_u32 m0, s{sXb}, {(c%6)*8192}"]
    ops = [VM(f"buffer_load_dwordx4 v{vOX+n}, {sr(GX,4)}, s{sTX} offen offset:{1024*n} {NT['x']} lds", f"{p}X{c}") for n in range(2)]
    post = [f"s_add_u32 s{sTX}, s{sTX}, {(adv*step)&mask}", f"s_and_b32 s{sTX}, s{sTX}, {mask}"]
    return pre, ops, post
pKV = [60, 62]; gW_ = 36; gT_ = 38
def base(p, srd, off): return [f"s_add_u32 s{p}, s{srd}, {off}", f"s_addc_u32 s{p+1}, s{srd+1}, 0"]
def gKV(ch, hf):
    pre, ops, post = dmaKV(ch, hf)
    ops = [VM(f"global_load_lds_dwordx4 v{v16}, s[{pKV[hf]}:{pKV[hf]+1}] offset:{1024*n} sc1", ops[n].tag) for n in range(4)]
    return pre, ops, post + [base(pKV[hf], WS, f"s{(sKV, sKV2)[hf]}")]
def burst(p):
    pre, ops, post = p
    return pre + ["s_nop 0"] + ops + post
def dmaKV(ch, hf):
    so = sKV2 if hf else sKV
    pre = [f"s_add_u32 m0, s{sWb}, {KB[ch%4]+16384*hf}"]
    ops = [VM(f"buffer_load_dwordx4 v{v16}, {sr(WS,4)}, s{so} offen offset:{1024*n} sc1 lds", f"KV{ch}{'ab'[hf]}") for n in range(4)]
    post = [f"s_add_u32 s{so}, s{so}, 32768", f"s_and_b32 s{so}, s{so}, 0x3ffff"]
    return pre, ops, post

FS = [32, 196, 152]
def gemm(g, pfx, srcA, srcB, waits, groups, gaps):
    e = g.e
    def rd(t):
        c, u = t >> 1, t & 1; f = FS[t % 3]; r, o = srcA(c); rb, ob, nb = srcB(c)
        A = [None] * 4 if r == "a" else [LG(f"ds_read_b64_tr_b16 {vr(f+4*m+2*ee,2)}, v{r[m]} offset:{o+u*8192+ee*1024}", f"{pfx}r{t}") for m in range(2) for ee in range(2)]
        B = [LG(f"ds_read_b128 {vr(f+8+4*n,4)}, v{rb} offset:{ob+u*4096+nb[n]}", f"{pfx}r{t}") for n in range(4)]
        return [x for p in zip(B, A) for x in p]
    extra = {i: list(v) for i, v in gaps.items()}
    if waits.get(0): e(Wt(vm=waits[0])); e("s_barrier")
    for t in range(2): e(rd(t))
    e(extra.pop(-1, []))
    def put(i, l): extra.setdefault(i, []).extend(l)
    i = 0
    for c in range(16):
        i = max(i, 8 * c)
        for pre, ops, post in groups.get(c, []):
            put(i, pre)
            for op in ops:
                i += 1; put(i, [op])
            put(i, post)
    for t in range(32):
        c, u = t >> 1, t & 1; f = FS[t % 3]; r, o = srcA(c)
        nxt = rd(t + 2) if t + 2 < 32 else [None] * 8
        e(Wt(lg=f"{pfx}r{t}"))
        for j in range(8):
            m, n = j & 1, j >> 1
            a = ar(o + 8 * u + 4 * m, 4) if r == "a" else vr(f + 4 * m, 4)
            e(f"v_mfma_f32_16x16x32_bf16 {vr(4*j,4)}, {a}, {vr(f+8+4*n,4)}, {'0' if t == 0 else vr(4*j,4)}")
            if j == 0 and u == 0:
                if waits.get(c + 1): e(Wt(vm=waits[c + 1]))
                if waits.get(c + 1) or groups.get(c): e("s_barrier")
            e(nxt[j])
            if j & 1: e(extra.pop(4 * t + n, []))
    rest = []
    for i in sorted(extra): rest += extra[i]
    return rest
def dmaWo(c, lds):
    pre = [f"s_add_u32 m0, s{sWb}, {lds}", f"s_lshl4_add_u32 s{sOffW}, s{idx(c)}, s{sLow}"]
    ops = [VM(f"buffer_load_dwordx4 v{vOW+n}, {sr(GW,4)}, s{sOffW} offen offset:{1024*n} {NT['o']} lds", f"oW{c}") for n in range(4)]
    return pre, ops, []
def dmaXo(c):
    pre = [f"s_add_u32 m0, s{sXb}, {((c-2)%8)*8192}"]
    ops = [VM(f"buffer_load_dwordx4 v{vOX}, {sr(WS,4)}, s{idx(c)} offen offset:{1024*n} sc1 lds", f"oX{c}") for n in range(2)]
    return pre, ops, []

def gen(opt):
    g = G(opt); e = g.e
    opt.names = []
    opt.nob = [int(x) for x in opt.nobar]
    for k in opt.nt: NT[k] = opt.ntf
    opt.win = [7, 8, 9][:opt.nwin]
    e(f"{NAME}_kernel:")
    if opt.stamps or opt.echo: e("s_memrealtime s[60:61]")
    e(f"""
    s_cmp_ge_u32 s2, 256
    s_cbranch_scc1 Lend
    s_load_dwordx16 s[4:19], s[0:1], 0
    s_load_dwordx8 s[20:27], s[0:1], 64
    s_load_dwordx2 s[28:29], s[0:1], 96
    v_lshrrev_b32 v1, 6, v0
    v_and_b32 v{vL}, 63, v0
    v_readfirstlane_b32 s{sW}, v1
    v_lshlrev_b32 v{v16}, 4, v{vL}
    s_and_b32 s{sX}, s2, 7
    s_lshr_b32 s{sJ}, s2, 3
    """)
    if opt.codepf:
        e(f"""
        s_lshl_b32 s{sT0}, s{sJ}, 2
        s_add_u32 s{sT0}, s{sT0}, s{sW}
        s_lshl_b32 s{sT0}, s{sT0}, 10
        s_cmp_ge_u32 s{sT0}, Lcode_end-Lpc1
        s_cbranch_scc1 Lnopf
        s_getpc_b64 s[{sT2}:{sT3}]
        Lpc1:
        v_add_u32 v13, s{sT0}, v{v16}
        global_load_dwordx4 {vr(vDummy,4)}, v13, s[{sT2}:{sT3}]
        Lnopf:
        """)
    e(f"s_lshl2_add_u32 s{sCB}, s{sX}, s{sW}")
    if opt.mapA:
        e(f"""
        s_and_b32 s{sT0}, s{sJ}, 7
        s_lshr_b32 s{sT1}, s{sX}, 1
        s_lshl3_add_u32 s{sRB}, s{sT1}, s{sT0}
        s_lshr_b32 s{sT1}, s{sJ}, 3
        s_and_b32 s{sT2}, s{sX}, 1
        s_lshl2_add_u32 s{sG}, s{sT2}, s{sT1}
        s_lshl1_add_u32 s{sT0}, s{sT1}, s{sT0}
        s_lshl_b32 s{sT0}, s{sT0}, 1
        s_and_b32 s{sC0}, s{sT0}, 15
        """)
    if opt.rot:
        a, b, c, d = [int(x, 16) for x in opt.rot]
        e(f"""
        s_lshr_b32 s{sT0}, s{sX}, 1
        s_mul_i32 s{sC0}, s{sT0}, {a}
        s_and_b32 s{sT0}, s{sX}, 1
        s_mul_i32 s{sT0}, s{sT0}, {b}
        s_add_u32 s{sC0}, s{sC0}, s{sT0}
        s_lshr_b32 s{sT0}, s{sJ}, 3
        s_mul_i32 s{sT0}, s{sT0}, {c}
        s_add_u32 s{sC0}, s{sC0}, s{sT0}
        s_and_b32 s{sT0}, s{sJ}, 7
        s_mul_i32 s{sT0}, s{sT0}, {d}
        s_lshr_b32 s{sT0}, s{sT0}, 1
        s_add_u32 s{sC0}, s{sC0}, s{sT0}
        s_and_b32 s{sC0}, s{sC0}, 15
        """)
    e(f"""
    v_lshrrev_b32 v1, 5, v{vL}
    v_lshrrev_b32 v2, 4, v{vL}
    v_and_b32 v7, 31, v{vL}
    v_and_b32 v9, 15, v{vL}
    v_xor_b32 v8, v7, v1
    v_lshlrev_b32 v8, 4, v8
    v_lshl_or_b32 v128, v1, 11, v8
    """)
    for n in range(1, 8):
        e(f"v_xor_b32 v{128+n}, {32*n}, v128\nv_add_u32 v{128+n}, {n*4096-1024*(n&3)}, v{128+n}")
    e(f"""
    s_lshl_b32 s{sT2}, s{sW}, 13
    s_add_u32 s{sT2}, s{sT2}, {112*1024}
    s_mov_b32 s{sT3}, {48*1024}
    s_cmp_eq_u32 s{sW}, 1
    s_cselect_b32 s{sT3}, {144*1024}, s{sT3}
    s_cmp_eq_u32 s{sW}, 2
    s_cselect_b32 s{sT3}, {80*1024}, s{sT3}
    s_cmp_eq_u32 s{sW}, 3
    s_cselect_b32 s{sT3}, {64*1024}, s{sT3}
    s_lshr_b32 s{sT0}, s{sG}, 1
    s_lshl2_add_u32 s{sT0}, s{sRB}, s{sT0}
    s_lshl_b32 s{sT4}, s{sT0}, 15
    s_lshl_b32 s{sT0}, s{sW}, 9
    s_add_u32 s{sT4}, s{sT4}, s{sT0}
    s_lshl_b32 s{sT5}, s{sW}, 14
    """)
    e(f"""
    v_lshlrev_b32 v10, 2, v2
    v_xor_b32 v10, v10, v9
    v_lshlrev_b32 v10, 4, v10
    v_lshl_or_b32 v{vOW}, v2, 11, v10
    v_add_u32 v{vOW+1}, 7168, v{vOW}
    v_xor_b32 v10, 32, v{vOW}
    v_add_u32 v{vOW+2}, 14336, v10
    v_add_u32 v{vOW+3}, 21504, v10
    """)
    e(f"""
    s_lshl_b32 s{sWb}, s{sW}, 12
    s_lshl_b32 s{sXb}, s{sW}, 11
    s_add_u32 s{sXb}, s{sXb}, {L_X}
    s_lshl2_add_u32 s{sT0}, s{sC0}, s{sW}
    s_lshl_b32 s{sT0}, s{sT0}, 7
    s_add_u32 s{sT0}, s{sT0}, s{sG}
    s_lshl_b32 s{sOffW}, s{sT0}, 8
    s_lshl_b32 s{sTX}, s{sC0}, 7
    """)
    e(f"""
    s_and_b32 s{sTb}, s{sJ}, 7
    s_lshr_b32 s{sT0}, s{sJ}, 4
    s_lshl3_add_u32 s{sTb}, s{sT0}, s{sTb}
    s_lshl_b32 s{sTb}, s{sTb}, 10
    """)
    e("s_waitcnt lgkmcnt(0)")
    if opt.stamps or opt.echo: e("s_mov_b32 s3, s60")
    e([f"s_bitcmp1_b32 s{sG}, 0", f"s_cselect_b32 s{KW}, s20, s18", f"s_cselect_b32 s{KW+1}, s21, s19",
       f"s_and_b32 s{KW+1}, s{KW+1}, 0xffff", f"s_mov_b32 s{KW+2}, 65536", f"s_mov_b32 s{KW+3}, 0x20000"])
    def kvw1():
        return [f"s_add_u32 m0, s{sT3}, s{sTb}", f"s_add_u32 s{sOst2}, s{sT5}, s{sTb}",
                VM(f"buffer_load_dwordx4 v{v16}, {sr(KW,4)}, s{sOst2} offen lds", "kv"),
                f"s_add_u32 s{sTb}, s{sTb}, 1024", f"s_and_b32 s{sTb}, s{sTb}, 0x3fff"]
    e(kvw1())
    e(g.srd(GX, 14, 4194304))
    for _ in range(opt.wf - 1): e(kvw1())
    kvx = [VM(f"buffer_load_dwordx4 v{128+n}, {sr(GX,4)}, s{sT4} offen offset:{1024*(n&3)} {NT['x']} lds", "kv") for n in range(8)]
    fill = [g.srd(GW, 16, 2097152), g.srd(WS, 28, 0x10000000) + [f"s_mov_b32 s{sMode}, {FL_EPOCH}"]]
    fill.append(f"""
    v_bfe_u32 v3, v{vL}, 2, 2
    v_and_b32 v4, 1, v{vL}
    v_bfe_u32 v5, v{vL}, 1, 1
    v_and_b32 v6, 1, v2
    v_lshlrev_b32 v{vP4}, 2, v7
    v_lshrrev_b32 v11, 3, v{vL}
    """)
    fill.append(f"""
    s_and_b32 s{sT0}, s{sW}, 1
    s_lshl1_add_u32 s{sT0}, s{sRB}, s{sT0}
    s_lshl_b32 s{sT0}, s{sT0}, 16
    s_lshr_b32 s{sT1}, s{sW}, 1
    s_lshl_b32 s{sT1}, s{sT1}, 6
    s_add_u32 s{sT0}, s{sT0}, s{sT1}
    v_lshrrev_b32 v12, 2, v{vL}
    v_and_b32 v13, 3, v{vL}
    v_sub_u32 v14, 0, v2
    v_xor_b32 v14, v13, v14
    v_and_b32 v14, 3, v14
    v_lshlrev_b32 v14, 4, v14
    v_lshl_or_b32 v14, v12, 11, v14
    v_add_u32 v{vOX}, s{sT0}, v14
    v_add_u32 v{vOX+1}, {32768-1024}, v{vOX}
    """)
    fill.append(f"""
    v_xor_b32 v13, v2, v9
    v_lshlrev_b32 v13, 4, v13
    v_lshl_or_b32 v13, v9, 9, v13
    v_add_u32 v136, s{sT2}, v13
    v_xor_b32 v14, 64, v13
    v_add_u32 v137, s{sT2}, v14
    v_xor_b32 v14, 128, v13
    v_add_u32 v138, s{sT2}, v14
    v_xor_b32 v14, 192, v13
    v_add_u32 v139, s{sT2}, v14
    """)
    fill.append(f"""
    v_lshl_add_u32 v13, v2, 3, v3
    v_lshlrev_b32 v13, 6, v13
    v_add_u32 v13, s{sT3}, v13
    v_and_b32 v14, 3, v{vL}
    v_lshlrev_b32 v14, 4, v14
    v_lshlrev_b32 v15, 5, v4
    v_lshl_or_b32 v15, v5, 3, v15
    s_bitcmp1_b32 s{sG}, 0
    s_cselect_b64 vcc, -1, 0
    s_cselect_b32 s{sT1}, 16, 8
    v_cndmask_b32 v14, v14, v15, vcc
    v_add_u32 v140, v13, v14
    v_add_u32 v141, s{sT1}, v140
    """)
    fill.append(f"""
    v_lshl_add_u32 v14, v6, 5, v9
    v_lshlrev_b32 v14, 4, v14
    v_lshl_or_b32 v14, v1, 10, v14
    v_cndmask_b32 v142, v14, v{v16}, vcc
    v_add_u32 v{vKhi}, 65536, v{v16}
    v_min_u32 v{vOne}, 1, v{vL}
    v_lshlrev_b32 v{vOne}, 28, v{vOne}
    """)
    fill.append(f"""
    v_lshl_add_u32 v13, v2, 3, v3
    v_xor_b32 v14, s{sW}, v3
    v_lshl_add_u32 v14, v14, 1, v6
    v_lshl_add_u32 v14, v14, 1, v5
    v_lshl_add_u32 v14, v14, 1, v4
    v_lshlrev_b32 v14, 3, v14
    v_lshl_or_b32 v{vA}, v13, 8, v14
    v_add_u32 v{vA+1}, 49152, v{vA}
    v_xor_b32 v{vA2}, 32, v{vA}
    v_xor_b32 v{vA2+1}, 32, v{vA+1}
    """)
    fill.append(f"""
    v_sub_u32 v13, 0, v3
    v_xor_b32 v13, v13, v2
    v_and_b32 v13, 3, v13
    v_lshlrev_b32 v13, 4, v13
    v_lshl_or_b32 v13, v9, 6, v13
    v_add_u32 v{vB}, {L_X}, v13
    """)
    fill.append(f"""
    v_lshl_add_u32 v13, v1, 3, v3
    v_lshl_add_u32 v14, v6, 1, v4
    v_lshrrev_b32 v15, 1, v3
    v_lshl_add_u32 v14, v14, 1, v15
    v_lshl_add_u32 v14, v14, 1, v5
    v_lshlrev_b32 v14, 3, v14
    v_lshl_or_b32 v13, v13, 7, v14
    s_add_u32 s{sMisc}, s{sWb}, {L_MISC}
    v_add_u32 v{vFB}, s{sMisc}, v13
    v_xor_b32 v{vFB+1}, 16, v{vFB}
    """)
    fill.append(f"""
    v_xor_b32 v13, v4, v6
    v_bfe_u32 v14, v{vL}, 1, 2
    v_lshlrev_b32 v15, 4, v14
    v_lshl_or_b32 v15, v11, 16, v15
    v_lshl_or_b32 v{vP1}, v13, 21, v15
    v_lshlrev_b32 v15, 9, v14
    v_lshl_or_b32 v15, v11, 12, v15
    v_lshl_or_b32 v{vZ}, v13, 4, v15
    """)
    if opt.d1nat:
        fill.append(f"""
        v_lshrrev_b32 v13, 2, v{vL}
        v_and_b32 v14, 3, v{vL}
        v_lshlrev_b32 v14, 4, v14
        v_lshl_or_b32 v{vP1}, v13, 16, v14
        v_lshl_add_u32 v13, v1, 3, v3
        v_lshl_add_u32 v14, v6, 1, v4
        v_lshl_add_u32 v14, v14, 1, v5
        v_lshlrev_b32 v14, 3, v14
        v_lshl_or_b32 v13, v13, 6, v14
        v_add_u32 v192, s{sMisc}, v13
        """)
    fill.append(g.srd(OUT, 24, 8388608) + g.srd(XA, 4, 4194304))
    fill.append(f"""
    s_getpc_b64 s[{TBL}:{TBL+1}]
    s_add_u32 s{TBL}, s{TBL}, fn_tables@rel32@lo+4
    s_addc_u32 s{TBL+1}, s{TBL+1}, fn_tables@rel32@hi+12
    s_and_b32 s{TBL+1}, s{TBL+1}, 0xffff
    s_mov_b32 s{TBL+2}, {TB.TBL_SIZE}
    s_mov_b32 s{TBL+3}, 0x20000
    """)
    fill.append(f"""
    s_lshl3_add_u32 s{sFlKV}, s{sRB}, s{sG}
    s_lshl_b32 s{sFlKV}, s{sFlKV}, 2
    s_add_u32 s{sFlKV}, s{sFlKV}, {FL_KV}
    s_lshl_b32 s{sKV}, s{sX}, 15
    s_add_u32 s{sKV}, s{sKV}, s{sWb}
    s_add_u32 s{sKV2}, s{sKV}, 16384
    s_lshl_b32 s{sF1}, s{sJ}, 5
    s_add_u32 s{sF1}, s{sF1}, s{sCB}
    s_lshl_b32 s{sFl2}, s{sF1}, 2
    s_add_u32 s{sFl2}, s{sFl2}, {FL_Z2}
    s_lshl_b32 s{sSt2}, s{sF1}, 12
    s_add_u32 s{sSt2}, s{sSt2}, {WS_Z2}
    s_lshl_b32 s{sF1}, s{sF1}, 6
    """)
    fill.append(f"""
    s_lshl_b32 s{sSt1}, s{sCB}, 5
    s_add_u32 s{sSt1}, s{sSt1}, s{sJ}
    s_lshl_b32 s{sFl1}, s{sSt1}, 2
    s_add_u32 s{sFl1}, s{sFl1}, {FL_Z1}
    s_lshl_b32 s{sSt1}, s{sSt1}, 12
    s_add_u32 s{sSt1}, s{sSt1}, {WS_Z1}
    s_lshl_b32 s{sPo1}, s{sCB}, 7
    s_add_u32 s{sPo1}, s{sPo1}, {FL_Z1}
    s_lshl_b32 s{sPo2}, s{sJ}, 7
    s_add_u32 s{sPo2}, s{sPo2}, {FL_Z2}
    s_lshl_b32 s{sTab2}, s{sJ}, 13
    s_add_u32 s{sTab2}, s{sTab2}, {TB.OFF_T2}
    """)
    def zoff(dst, hi, lo, base):
        return f"""
        s_lshl_b32 s{dst}, s{hi}, 17
        s_lshr_b32 s{sT1}, s{lo}, 4
        s_lshl_b32 s{sT1}, s{sT1}, 11
        s_add_u32 s{dst}, s{dst}, s{sT1}
        s_and_b32 s{sT1}, s{lo}, 15
        s_lshl_b32 s{sT1}, s{sT1}, 5
        s_add_u32 s{dst}, s{dst}, s{sT1}
        s_add_u32 s{dst}, s{dst}, {base}
        """
    fill.append(zoff(sF2, sCB, sJ, WS_Z1))
    fill.append(zoff(sF3, sJ, sCB, WS_Z2))
    fill.append(f"""
    s_lshl_b32 s{sT1}, s{sCB}, 6
    s_add_u32 s{sRow}, s{sT1}, s{sJ}
    s_sub_u32 s{sOst}, s{sT1}, {1024-32}
    s_cmp_lt_u32 s{sCB}, 16
    s_cselect_b32 s{sT1}, s{sT1}, s{sOst}
    s_cmp_eq_u32 s{sJ}, 0
    s_cselect_b32 s{sRow}, s{sT1}, s{sRow}
    s_lshl2_add_u32 s{sT1}, s{sG}, s{sW}
    s_lshl_b32 s{sOst}, s{sRB}, 5
    s_add_u32 s{sOst}, s{sOst}, s{sT1}
    s_lshl_b32 s{sFlO}, s{sOst}, {opt.fsp}
    s_add_u32 s{sFlO}, s{sFlO}, {FL_O}
    s_lshl_b32 s{sOst}, s{sOst}, 12
    s_add_u32 s{sOst}, s{sOst}, {WS_O}
    """)
    fill.append(f"""
    s_lshl_b32 s{sPoO}, s{sRB}, {5+opt.fsp}
    s_add_u32 s{sPoO}, s{sPoO}, {FL_O}
    s_lshl_b32 s{sLow}, s{sW}, 7
    s_add_u32 s{sLow}, s{sLow}, s{sG}
    s_lshl_b32 s{sLow}, s{sLow}, 8
    s_lshl_b32 s{sOwn[0]}, s{sG}, 14
    s_add_u32 s{sOwn[1]}, s{sOwn[0]}, 8192
    s_and_b32 s{sT0}, s{sJ}, 7
    s_lshl_b32 s{sT0}, s{sT0}, 1
    s_cmp_eq_u32 s{sT0}, 14
    s_cselect_b32 s{sT0}, 0, s{sT0}
    s_lshl1_add_u32 s{sT1}, s{sG}, 2
    """)
    for c0 in range(0, 14, 4):
        L = []
        for c in range(c0, min(c0 + 4, 14)):
            L += [f"s_add_u32 s{sIdx[c]}, s{sT0}, s{sT1}", f"s_and_b32 s{sIdx[c]}, s{sIdx[c]}, 15", f"s_lshl_b32 s{sIdx[c]}, s{sIdx[c]}, 13",
                  f"s_add_u32 s{sT0}, s{sT0}, 1", f"s_cmp_eq_u32 s{sT0}, 14", f"s_cselect_b32 s{sT0}, 0, s{sT0}"]
        fill.append(L)
    XS, XM = 128, 2047
    nfill = len(fill)
    def take_vm(lst, n=1):
        out = []
        while lst and n:
            x = lst.pop(0); out.append(x)
            if isinstance(x, I) and x.kind == "vm": n -= 1
        return out
    for n in range(8):
        if n % 4 == 0: e(f"s_add_u32 m0, s{sT2}, {1024*n}\ns_nop 0")
        e(kvx[n])
        if n >= opt.nofill: e(fill.pop(0))
    w0 = dmaW(0)
    for n in range(opt.w0n): e(w0[1][n]); e(fill.pop(0))
    while len(fill) > nfill - 2: e(fill.pop(0))
    e(VM(f"buffer_load_dword v143, off, {sr(WS,4)}, s{sMode} sc1", "kv"))
    for n in range(16 - opt.wf):
        if opt.walk and n == opt.wpos:
            while len(fill) > 23 - 9: e(fill.pop(0))
            e(["s_mov_b64 exec, 0"] + sum([[f"s_cmp_eq_u32 s{sW}, {w}", f"s_cbranch_scc1 Lpad{w}"] for w in range(3)], []) + ["s_branch Lpad3", "Lwalk_ret:", "s_mov_b64 exec, -1"])
        e(kvw1())
        if fill: e(fill.pop(0))
        if len(fill) > 16 - opt.wf - n - 1: e(fill.pop(0))
    print("fillers left", len(fill), file=sys.stderr) if fill else None
    while fill: e(fill.pop(0))
    if opt.fine: e("s_memrealtime s[10:11]")
    later = w0[0] + ["s_nop 0"] + w0[1][opt.w0n:] + w0[2] + burst(dmaX(0, XS, XM)) + burst(dmaW(1)) + burst(dmaX(1, XS, XM)) + burst(dmaW(2))
    e(take_vm(later, opt.pre1))
    if opt.stamps:
        e(f"s_lshl2_add_u32 s8, s2, s{sW}\ns_lshl_b32 s8, s8, 8\ns_add_u32 s8, s8, {WS_ST}")
        opt.names.append("entry"); g.nst += 1
        if opt.dbg:
            e(g.srd(12, 26, 256))
            e(f"""
            s_or_b32 s9, s{sW}, s{sJ}
            s_cmp_lg_u32 s9, 0
            s_cbranch_scc1 Lnost0
            v_not_b32 v195, s3
            s_mov_b64 exec, 1
            buffer_atomic_umax v195, off, s[12:15], 0
            s_mov_b64 exec, -1
            Lnost0:
            """)
        else:
            e(f"v_mov_b32 v195, s3\nbuffer_store_dword v195, off, {sr(WS,4)}, s8")
            if opt.fine:
                opt.names.append("kv issued"); g.nst += 1
                e(f"s_waitcnt lgkmcnt(0)\nv_mov_b32 v195, s10\nbuffer_store_dword v195, off, {sr(WS,4)}, s8 offset:8")
    e(Wt(vm="kv"))
    g.stamp("kv landed")
    for ks in range(8):
        e(LG(f"ds_read_b128 {vr(4*ks,4)}, v{136+(ks&3)} offset:{256*(ks>>2)}", f"k{ks}"))
        for b in range(2):
            for ee in range(2):
                e(LG(f"ds_read_b64_tr_b16 {vr(64+8*ks+4*b+2*ee,2)}, v{140+b} offset:{2048*ks+256*ee}", f"k{ks}"))
        if ks == 0: e(f"v_readfirstlane_b32 s{sTAG}, v143")
        if ks == 1: e(f"s_mul_i32 s{sTAG}, s{sTAG}, 0x9e3779b1\ns_add_u32 s{sTAG}, s{sTAG}, 0x7f4a7c15")
        e(take_vm(later))
    e(Wt(lg="k4"))
    e(f"s_bitcmp1_b32 s{sG}, 0\ns_cbranch_scc1 Lkv_v")
    mid = [take_vm(later) for _ in range(4)]
    for var in range(2):
        if var == 1: e("Lkv_v:")
        for ks in range(8):
            if ks == 5: e("s_waitcnt lgkmcnt(0)")
            for b in range(2):
                w = vr(64 + 8 * ks + 4 * b, 4); x = vr(4 * ks, 4); d = vr(32 + 4 * b, 4)
                c = "0" if ks == 0 else d
                e(f"v_mfma_f32_16x16x32_bf16 {d}, {w}, {x}, {c}" if var == 0 else f"v_mfma_f32_16x16x32_bf16 {d}, {x}, {w}, {c}")
            if ks % 2 == 0: e(mid[ks >> 1] if var == 0 else [x.t if isinstance(x, I) else x for x in mid[ks >> 1]])
        if var == 0: e("s_branch Lkv_j")
    e("Lkv_j:")
    e(Wt(lg="all"))
    e(f"""
    s_cmp_eq_u32 s{sW}, 3
    s_cselect_b32 s{sT1}, s{sT2}, s{sT3}
    v_add_u32 v13, s{sT1}, v{v16}
    """)
    e(later); later = []
    e(f"""
    s_cmp_eq_u32 s{sW}, 0
    s_cbranch_scc1 Lkv_nw
    s_nop 3
    ds_write_b128 v13, v[32:35]
    ds_write_b128 v13, v[36:39] offset:1024
    s_waitcnt lgkmcnt(0)
    Lkv_nw:
    s_barrier
    s_cmp_lg_u32 s{sW}, 0
    s_cbranch_scc1 Lkv_done
    v_add_u32 v13, {80*1024}, v{v16}
    v_add_u32 v14, {136*1024}, v{v16}
    ds_read_b128 v[40:43], v13
    ds_read_b128 v[44:47], v13 offset:1024
    ds_read_b128 v[48:51], v14
    ds_read_b128 v[52:55], v14 offset:1024
    ds_read_b128 v[56:59], v14 offset:8192
    ds_read_b128 v[60:63], v14 offset:9216
    s_lshr_b32 s{sT1}, s{sG}, 2
    s_lshl1_add_u32 s{sT0}, s{sRB}, s{sT1}
    s_lshl_b32 s{sT0}, s{sT0}, 12
    s_bfe_u32 s{sT1}, s{sG}, 0x10001
    s_lshl_b32 s{sT2}, s{sT1}, 8
    s_lshl_b32 s{sT1}, s{sT1}, 10
    s_add_u32 s{sT1}, s{sT1}, 2048
    s_bitcmp1_b32 s{sG}, 0
    s_cselect_b32 s{sT1}, s{sT1}, s{sT2}
    s_cselect_b32 s{sT2}, 1.0, {hex(f2u(1.4426950408889634/32**0.5))}
    s_mov_b32 s{sT3}, s{sT2}
    s_add_u32 s{sT0}, s{sT0}, s{sT1}
    """)
    for p in range(3):
        e(f"s_waitcnt lgkmcnt({4-2*p})")
        for i in range(4):
            e(f"v_pk_add_f32 {vr(32+2*i,2)}, {vr(32+2*i,2)}, {vr(40+8*p+2*i,2)}")
    for i in range(4): e(f"v_pk_mul_f32 {vr(32+2*i,2)}, {vr(32+2*i,2)}, s[{sT2}:{sT3}]")
    for i in range(4): e(f"v_cvt_pk_bf16_f32 v{40+i}, v{32+2*i}, v{33+2*i}")
    e(f"""
    s_bitcmp1_b32 s{sG}, 0
    s_cbranch_scc0 Lkv_st
    v_permlane16_swap_b32 v40, v42
    v_permlane16_swap_b32 v41, v43
    Lkv_st:
    buffer_store_dwordx4 v[40:43], v142, {sr(WS,4)}, s{sT0} offen sc1
    Lkv_done:
    """)
    LD = opt.lead
    pl = [dmaX(2, XS, XM)]
    for c in range(3, LD): pl += [dmaW(c), dmaX(c, XS, XM)]
    lead = []
    for p in pl: lead += burst(p)
    e(take_vm(lead, max(0, 2 + 6 * (LD - 3) - 3)))
    g.stamp("kv done")
    gaps = {-1: lead}
    g.tail += ["Lkvflag:", "KVFLAGWAIT"] + g.flag(56, sFlKV) + ["s_branch Lkvflag_b"]
    gaps.setdefault(opt.fgap, []).extend([f"s_cmp_eq_u32 s{sW}, 0", "s_cbranch_scc1 Lkvflag", "Lkvflag_b:"])
    init = [f"v_mov_b64 {vr(i,2)}, 0" for i in range(O[0], Lr[1] + 4, 2)]
    init += [f"v_mov_b32 v{IDX}, 0xdddddddd", "v_mov_b32 v60, 0x3f803f80", f"v_and_b32 v61, 7, v{vL}", "v_cmp_eq_u32 vcc, 0, v61",
             "v_cmp_eq_u32 s[10:11], 4, v61", "s_nop 1"]
    init += [f"v_cndmask_b32 v{ONES}, 0, v60, vcc", f"v_cndmask_b32 v{ONES+1}, 0, v60, vcc",
             f"v_cndmask_b32 v{ONES+2}, 0, v60, s[10:11]", f"v_cndmask_b32 v{ONES+3}, 0, v60, s[10:11]"]
    for n, x in enumerate(init): gaps.setdefault(18 + n, []).append(x)
    kvpoll = f"buffer_load_dwordx4 v[56:59], v{v16}, {sr(WS,4)}, s{sT5} offen sc1"
    if opt.pf2:
        fill2 = ["s_getpc_b64 s[8:9]", "Lpc2:", "s_and_b32 s9, s9, 0xffff", "s_mov_b32 s10, Lcode_end-Lpc2", "s_mov_b32 s11, 0x20000",
                 f"s_lshl2_add_u32 s12, s{sJ}, s{sW}", "s_lshl_b32 s12, s12, 10",
                 VM(f"buffer_load_dwordx4 {vr(vDummy,4)}, v{v16}, s[8:11], s12 offen")]
        gaps.setdefault(opt.pf2, []).extend(fill2)
    b0 = opt.kvb
    gaps.setdefault(8 * b0 - 4 - opt.ppos, []).extend([f"s_mov_b32 s{sT5}, {FL_KV}", VM(kvpoll, "kvpoll")])
    if opt.fine:
        gaps.setdefault(5, []).extend(g.stampl("q c0"))
        gaps.setdefault(45, []).extend(g.stampl("q c5"))
        gaps.setdefault(8 * b0 - 2, []).extend(g.stampl("q prechk"))
    gaps.setdefault(8 * b0 - 1, []).extend([Wt(vm="kvpoll")] + g.check(4, 56, kvpoll) + (g.stampl("q postchk") if opt.fine else []))
    halves = [(0, 0), (0, 1), (1, 0), (1, 1), (2, 0), (2, 1), (3, 0), (3, 1)]
    ab = {c: [dmaW(c + LD), dmaX(c + LD, XS, XM)] for c in range(16 - LD)}
    for i in range(opt.nkv):
        ab.setdefault(max(b0, 11 + i), []).append(dmaKV(*halves.pop(0)))
    for i in range(opt.walk, 128, 3 * opt.walk) if opt.walk else []: gaps.setdefault(i | 1, []).extend(g.pad())
    def kvaddr(T, frag):
        a = KB[(T >> 3) % 4] + (T & 7) * 4096 + frag * 1024
        return (vKlo, a) if a < 65536 else (vKhi, a - 65536)
    def rdKV(dst, T, frag, tag):
        r, o = kvaddr(T, frag); return LG(f"ds_read_b128 {vr(dst,4)}, v{r} offset:{o}", tag)
    pre_rd = [rdKV(K[t] + 4 * k, t, k, f"pk{t}") for t in range(2) for k in range(2)] + [rdKV(V[0] + 4 * k, 0, 2 + k, "pv") for k in range(2)]
    for i in range(3): gaps.setdefault(121 + i, []).extend(pre_rd[2 * i:2 * i + 2])
    rest = gemm(g, "q", lambda c: ((vA + (c % 6) // 3, vA2 + (c % 6) // 3), (c % 3) * 16384), lambda c: (vB, (c % 6) * 8192, (0, 1024, 2048, 3072)),
                {**{c: [f"W{c}", f"X{c}"] for c in range(16)}, 16: ["KV0a"]}, ab, gaps)
    g.stamp("q gemm done")
    g.tail += ["Lepoch:", f"s_mov_b32 s{sT0}, {FL_EPOCH}"] + g.flag(56, sT0) + ["s_branch Lepoch_b"]
    e(rest)
    e(f"s_or_b32 s{sT0}, s2, s{sW}\ns_cbranch_scc0 Lepoch\nLepoch_b:")
    if opt.exp == 4:
        e(f"s_getpc_b64 s[{sT2}:{sT3}]\ns_lshl_b32 s{sT0}, s{sW}, 13\nv_add_u32 v60, s{sT0}, v{v16}\nv_add_u32 v61, 4096, v60")
        for n in range(8): e(f"global_load_dwordx4 {vr(vDummy,4)}, v{60+(n>>2)}, s[{sT2}:{sT3}] offset:{1024*(n&3)}")
    def maxtree(dst, s, first):
        L = []
        if first:
            L.append(f"v_max3_f32 v{dst}, v{s}, v{s+1}, v{s+2}")
            L += [f"v_max3_f32 v{dst}, v{dst}, v{s+i}, v{s+i+1}" for i in range(3, 15, 2)]
            L.append(f"v_max_f32 v{dst}, v{dst}, v{s+15}")
        else:
            L += [f"v_max3_f32 v{dst}, v{dst}, v{s+i}, v{s+i+1}" for i in range(0, 16, 2)]
        return L
    def tabload(dst, n, tag, o0=-4096):
        return [VM(f"global_load_dwordx4 {dst(m)}, v{v16}, s[{gT_}:{gT_+1}] offset:{o0+1024*m}", tag) for m in range(n)]
    p1 = []
    if not opt.nofft:
        e(f"s_mov_b32 m0, s{sMisc}\ns_nop {opt.pnop}")
        for n in range(4):
            p1 += [[VM(f"buffer_load_dwordx4 v{vP1}, {sr(XA,4)}, s{sF1} offen offset:{1024*n} {opt.d1_sc} lds", "d1")] +
                   ([f"s_add_u32 s{sF1}, s{sF1}, {(1024 if opt.d1nat else 512)*1024-1024}"] if n < 3 else []), []]
    else: e("s_nop 7")
    nx = lambda: p1.pop(0) if p1 else []
    def qcv(qb):
        L = []
        for m in range(2):
            for nn in range(2):
                d = 4 * (2 * (2 * qb + nn) + m)
                L += [f"v_cvt_pk_bf16_f32 v{Q[qb]+4*m+2*nn+i}, v{d+2*i}, v{d+2*i+1}" for i in range(2)]
        return L + [f"v_permlane16_swap_b32 v{Q[qb]+4*m+i}, v{Q[qb]+4*m+2+i}" for m in range(2) for i in range(2)]
    c0_, c1_ = qcv(0), qcv(1)
    def qk0(t, qb, k, s):
        return f"v_mfma_f32_32x32x16_bf16 {vr(s,16)}, {vr(K[t]+4*k,4)}, {vr(Q[qb]+4*k,4)}, {vr(s,16) if k else 0}"
    tA = maxtree(vT0, S[2], True); tB = maxtree(vT0, S[3], False); tC = maxtree(vT1, S[0], True); tD = maxtree(vT1, S[1], False)
    e(c0_ + nx() + [Wt(lg="pk0", must=True), "s_nop 0", qk0(0, 0, 0, S[2])] + c1_[:6] + nx() + [qk0(0, 0, 1, S[2])] + c1_[6:] + nx())
    e([Wt(lg="pk1"), qk0(1, 0, 0, S[3])] + nx() + [qk0(1, 0, 1, S[3])] + nx() + [qk0(0, 1, 0, S[0])] + nx() + ["s_nop 3"] + tA[:2])
    e([qk0(0, 1, 1, S[0])] + tA[2:] + [qk0(1, 1, 0, S[1])] + ["s_nop 0"] + nx() + tB[:4] + [qk0(1, 1, 1, S[1])] + tB[4:] + tC + tD)
    def finish_max(off, mid):
        lit = hex(f2u(-off)) if off else 0
        e(f"""
        v_mov_b32 v{vT2}, v{vT0}
        v_mov_b32 v{vT3}, v{vT1}
        s_nop 0
        v_permlane32_swap_b32 v{vT0}, v{vT2}
        v_permlane32_swap_b32 v{vT1}, v{vT3}
        v_max_f32 v{vT0}, v{vT0}, v{vT2}
        v_max_f32 v{vT1}, v{vT1}, v{vT3}
        v_sub_f32 v{M[0]}, {lit}, v{vT0}
        v_sub_f32 v{M[0]+1}, {lit}, v{vT0}
        """)
        for i in range(2, 16, 2): e(f"v_mov_b64 {vr(M[0]+i,2)}, {vr(M[0],2)}")
        e(f"v_sub_f32 v{M[1]}, {lit}, v{vT1}\nv_sub_f32 v{M[1]+1}, {lit}, v{vT1}")
        e(mid)
        for i in range(2, 16, 2): e(f"v_mov_b64 {vr(M[1]+i,2)}, {vr(M[1],2)}")
    finish_max(opt.off, [f"v_mfma_f32_32x32x16_bf16 {vr(S[0],16)}, {vr(K[0],4)}, {vr(Q[0],4)}, {vr(M[0],16)}",
                         f"v_mfma_f32_32x32x16_bf16 {vr(S[0],16)}, {vr(K[0]+4,4)}, {vr(Q[0]+4,4)}, {vr(S[0],16)}"])
    e(base(pKV[0], WS, f"s{sKV}") + base(pKV[1], WS, f"s{sKV2}") + base(gT_, TBL, TB.OFF_T1 + 4096))
    e(Wt(vm=["KV0b", "KV1a"])); e("s_barrier")
    g.stamp("attn start"); g.stamp("attn start", True)
    sl = {k: {} for k in ("q1", "q2", "p1", "p2", "x", "va", "top")}
    def put(kind, n, l): sl[kind].setdefault(n, []).extend(l if isinstance(l, list) else [l])
    later_ = []
    def put_group(grp, n0, kind="p1"):
        pre, ops, post = grp
        put("q2", n0, pre)
        for i, op in enumerate(ops): put(kind, n0 + i, op)
        n1 = n0 + len(ops) - 1
        for i, x in enumerate(post):
            if i < 2: put("p2", n1, x)
            else: later_.append((n1 + 1, x))
        return n0 + len(ops)
    def fftdata(srd, voff, sreg, step, n0, tag):
        put("q2", n0, f"s_mov_b32 m0, s{sMisc}")
        for n in range(4):
            put("p1", n0 + n, VM(f"buffer_load_dwordx4 v{voff}, {sr(srd,4)}, s{sreg} offen offset:{1024*n} sc1 lds", tag))
            if n < 3: put(*(("p2", n0 + n) if opt.rebal else ("q1", n0 + n + 1)), f"s_add_u32 s{sreg}, s{sreg}, {step}")
    def comp(n0, aT, sst, dtag, ttag, stag):
        put("q2", n0, Wt(vm=dtag)); put("q1", n0 + 4, Wt(vm=ttag))
        for k in range(4):
            for ee in range(2):
                ad = f"v192 offset:{k*1024+ee*256}" if opt.d1nat and dtag == "d1" else f"v{vFB+(k>>1)} offset:{(k&1)*2048+ee*512}"
                put("p2", n0 + k, LG(f"ds_read_b64_tr_b16 {ar(aD+4*k+2*ee,2)}, {ad}", f"{stag}r{k}"))
        for i in range(8):
            k, nb = i >> 1, i & 1; d = vr(vFD + 16 * nb, 16)
            put("q2", n0 + 4 + i, Wt(lg=f"{stag}r{k}"))
            put("x", n0 + 4 + i, f"v_mfma_f32_32x32x16_bf16 {d}, {ar(aD+4*k,4)}, {ar(aT+16*nb+4*k,4)}, {'0' if k==0 else d}")
        for q in range(4):
            nb, i = q >> 1, q & 1
            for m_ in range(4 * i, 4 * i + 4):
                put("va", n0 + 13 + q, f"v_cvt_pk_bf16_f32 v{vFD+16*nb+m_}, v{vFD+16*nb+2*m_}, v{vFD+16*nb+2*m_+1}")
            put("p1", n0 + 14 + q, VM(f"buffer_store_dwordx4 {vr(vFD+16*nb+4*i,4)}, v{v16}, {sr(WS,4)}, s{sst} offen offset:{1024*q} sc1", stag))
    def putflag(n, sfl, stag):
        put("q2", n, Wt(vm=stag)); put("va", n, f"v_mov_b32 v{vT0}, s{sTAG}")
        put("p2", n, VM(f"buffer_store_dword v{vT0}, v{vOne}, {sr(WS,4)}, s{sfl} offen sc1"))
    def putpoll(n, nchk, spo, tag):
        ld = f"buffer_load_dword v{vPoll}, v{vP4}, {sr(WS,4)}, s{spo} offen sc1"
        put("p2", n, VM(ld, tag))
        put("q1", nchk, Wt(vm=tag)); put("top2" if False else "q2", nchk, g.check(1, vPoll, ld))
    early = {(1, 1): 0, (2, 0): 4}
    t1slot = "p2" if (1, 1) in halves else "p1"
    n = 8
    for hv in halves:
        n = put_group(gKV(*hv), n)
    assert n == 20
    for (ch, hf), n in {(4, 0): 20, (4, 1): 30, (5, 0): 34, (5, 1): 38, (6, 0): 48, (6, 1): 52, (7, 0): 64, (7, 1): 68}.items():
        put_group(gKV(ch, hf), n)
    put("q1", 70, [f"s_mov_b32 s{GW}, s22"]); put("q1", 71, [f"s_and_b32 s{GW+1}, s23, 0xffff"])
    for c, n in ((2, 84), (3, 88), (0, 92), (1, 96), (4, 100), (5, 120), (6, 124)):
        pre, ops, _ = dmaWo(c, ASL[c])
        ops = [VM(f"global_load_lds_dwordx4 v{vOW+k}, s[{gW_}:{gW_+1}] offset:{1024*k}", ops[k].tag) for k in range(4)]
        put("q2", n - 1, pre[1]); put("p2", n - 1, base(gW_, GW, f"s{sOffW}")); put_group(([pre[0]], ops, []), n)
    if not opt.nofft:
        for m, op in enumerate(tabload(lambda m: ar(aT1 + 4 * m, 4), 8, "t1")): put("p1", m, op)
        comp(12, aT1, sSt1, "d1", "t1", "s1")
        putflag(37, sFl1, "s1")
        put("q2", 21, f"s_add_u32 s{sTab2}, s{sTab2}, 4096"); put("q2", 22, base(gT_, TBL, f"s{sTab2}"))
        for m, op in enumerate(tabload(lambda m: ar(aT2 + 4 * m, 4), 8, "t2")): put("p1", 24 + m if m < 2 else 40 + m, op)
        putpoll(51, 55, sPo1, "po1")
        fftdata(WS, vZ, sF2, 32768 - 1024, 56, "d2")
        put("q2", 53, base(gT_, TBL, TB.OFF_T3 + 4096))
        for m, op in enumerate(tabload(lambda m: ar(aT3 + 4 * m, 4), 6, "t3")): put("p1", 60 + m if m < 4 else 68 + m, op)
        comp(66, aT2, sSt2, "d2", "t2", "s2")
        putflag(91, sFl2, "s2")
        put("p2", 73, base(gT_, TBL, TB.OFF_TW + 4096))
        for m, op in enumerate(tabload(lambda m: ar(aTW + 4 * m, 4), 8, "t3")): put("p1", 74 + m if m < 6 else 104 + m, op)
        put("p2", 111, base(gT_, TBL, TB.OFF_TX))
        put("p1", 112, tabload(lambda m: ar(aTX, 4), 1, "t3", 0))
        putpoll(104, 115, sPo2, "po2")
        fftdata(WS, vZ, sF3, 32768 - 1024, 116, "d3")
    for n, x in later_:
        k, m = next((k, m) for m in range(n, n + 3) for k in ("q2", "p2") if not sl[k].get(m))
        put(k, m, x)
    if opt.rebal:
        for n in sorted(sl["q1"]):
            for x in [x for x in sl["q1"][n] if isinstance(x, str)]:
                for k, m in (("p2", n - 1), ("q2", n - 1), ("p2", n - 2), ("q2", n - 2)):
                    if (k, m) == ("p2", n - 1) if f"s{sOffW}," in x else not sl[k].get(m):
                        sl["q1"][n].remove(x); put(k, m, x); break
    for k in ("p1",):
        for n_, l in sl[k].items(): assert len(l) <= 1, (k, n_, l)
    if opt.loop2: e("s_mov_b32 s3, 0\nLpass:")
    for n in range(128):
        if opt.loop2 and n == 64:
            e("s_add_u32 s3, s3, 1\ns_cmp_lt_u32 s3, 2\ns_cbranch_scc1 Lpass\ns_branch Lpass_end")
        X = n & 1; Y = 1 - X
        se, sp, sq = S[n % 4], S[(n - 1) % 4], S[(n + 1) % 4]
        tq = ((n + 1) // 2) % 2; tv = ((n - 1) // 2) % 2
        E = [f"v_exp_f32 v{se+i}, v{se+i}" for i in range(16)]
        Q1 = f"v_mfma_f32_32x32x16_bf16 {vr(sq,16)}, {vr(K[tq],4)}, {vr(Q[Y],4)}, {vr(M[Y],16)}"
        Q2 = f"v_mfma_f32_32x32x16_bf16 {vr(sq,16)}, {vr(K[tq]+4,4)}, {vr(Q[Y]+4,4)}, {vr(sq,16)}"
        P1 = f"v_smfmac_f32_32x32x32_bf16 {vr(O[Y],16)}, {vr(V[tv],4)}, {vr(sp,8)}, v{IDX}"
        P2 = f"v_smfmac_f32_32x32x32_bf16 {vr(O[Y],16)}, {vr(V[tv]+4,4)}, {vr(sp+8,8)}, v{IDX}"
        L1 = f"v_smfmac_f32_16x16x64_bf16 {vr(Lr[Y],4)}, {vr(ONES,4)}, {vr(sp,8)}, v{IDX}"
        L2 = f"v_smfmac_f32_16x16x64_bf16 {vr(Lr[Y],4)}, {vr(ONES,4)}, {vr(sp+8,8)}, v{IDX}"
        if n == 0: P1 = P2 = L1 = L2 = None
        if n == 127: Q1 = Q2 = None
        T = n >> 1
        if X == 0: D = [rdKV(K[tq] + 4 * k, T + 2, k, f"h{n}") for k in range(2)] if T + 2 < 64 else [None, None]
        else: D = [rdKV(V[1 - tv] + 4 * k, T + 1, 2 + k, f"h{n}") for k in range(2)] if T + 1 < 64 else [None, None]
        bw = None
        if n % 16 == 0 and n:
            c = n >> 4
            bw = [f"KV{c}b", f"KV{c+1}a"] + ([f"oW{k}" for k in range(5)] if c == 7 else [])
            if opt.bpos == 0: e(Wt(vm=bw)); e("s_barrier")
            elif opt.bpos == 2: sl["q2"][n] = ["s_barrier"] + sl["q2"].get(n, [])
            else: sl["q1"][n] = ["s_barrier"] + sl["q1"].get(n, [])
        if opt.afine and n % 8 == 0 and n: g.stamp(f"a{n}")
        if opt.walk and n % opt.walk == 0: put("q2", n, g.pad())
        w = Wt(lg=[f"h{n-2}", "pv"], vm=bw if opt.bpos else None)
        gq = lambda k: sl[k].get(n, [])
        xm = gq("x")
        if xm: a, b, c_, d_ = 8, 9, 12, 13
        else: a, b, c_, d_ = 9, 11, 14, 16
        e([Q1, w] + gq("q1") + E[0:3] + [Q2] + gq("q2") + E[3:6] + [P1] + gq("p1") + E[6:a] + [L1, D[0]] + E[a:b] + gq("va") +
          [P2] + gq("p2") + E[b:c_] + [L2, D[1]] + E[c_:d_] + xm + E[d_:16])
    e(sl["q1"].get(128, []))
    if opt.loop2: e("Lpass_end:")
    e(f"""
    v_rcp_f32 v{vT0}, v{Lr[0]}
    v_smfmac_f32_16x16x64_bf16 {vr(Lr[1],4)}, {vr(ONES,4)}, {vr(S[3],8)}, v{IDX}
    v_smfmac_f32_16x16x64_bf16 {vr(Lr[1],4)}, {vr(ONES,4)}, {vr(S[3]+8,8)}, v{IDX}
    v_smfmac_f32_32x32x32_bf16 {vr(O[1],16)}, {vr(V[1],4)}, {vr(S[3],8)}, v{IDX}
    v_smfmac_f32_32x32x32_bf16 {vr(O[1],16)}, {vr(V[1]+4,4)}, {vr(S[3]+8,8)}, v{IDX}
    s_mov_b32 s{sMode}, 0
    """.replace(f"v_rcp_f32 v{vT0}, v{Lr[0]}\n", "s_nop 0\n"))
    g.stamp("attn end"); g.stamp("attn end", True)
    e("s_nop 2\nLa_norm:")
    for qb in range(2):
        e(f"v_rcp_f32 v{2*qb}, v{Lr[qb]}\ns_nop 0\nv_mov_b32 v{2*qb+1}, v{2*qb}")
        for i in range(8): e(f"v_pk_mul_f32 {vr(O[qb]+2*i,2)}, {vr(O[qb]+2*i,2)}, {vr(2*qb,2)}")
        for i in range(8): e(f"v_cvt_pk_bf16_f32 v{8+8*qb+i}, v{O[qb]+2*i}, v{O[qb]+2*i+1}")
        for k in range(2):
            e(VM(f"buffer_store_dwordx4 {vr(8+8*qb+4*k,4)}, v{v16}, {sr(WS,4)}, s{sOst} offen offset:{2048*qb+1024*k} sc1", "ost"))
    for qb in range(2):
        e(f"v_maximum3_f32 v{4+qb}, abs(v{O[qb]}), abs(v{O[qb]+1}), abs(v{O[qb]+2})")
        for i in range(3, 15, 2): e(f"v_maximum3_f32 v{4+qb}, v{4+qb}, abs(v{O[qb]+i}), abs(v{O[qb]+i+1})")
        e(f"v_maximum3_f32 v{4+qb}, v{4+qb}, abs(v{O[qb]+15}), v{4+qb}")
    e(f"""
    v_mul_f32 v6, v4, v{Lr[0]}
    v_mul_f32 v7, v5, v{Lr[1]}
    v_maximum3_f32 v4, v4, v5, v{Lr[0]}
    v_min_f32 v6, v6, v7
    v_maximum3_f32 v4, v4, v{Lr[1]}, v4
    s_mov_b32 s{sT0}, {hex(f2u(2.0**-108))}
    v_cmp_nge_f32 s[10:11], v6, s{sT0}
    s_mov_b32 s{sT0}, {hex(f2u(2.0**110))}
    v_cmp_nlt_f32 vcc, v4, s{sT0}
    s_or_b64 vcc, vcc, s[10:11]
    """)
    if opt.force_fb: e("s_nop 1\ns_mov_b64 vcc, -1")
    e(f"""
    s_cmp_eq_u64 vcc, 0
    s_cselect_b32 s{sT0}, 1, s{sMode}
    s_cmp_eq_u32 s{sT0}, 0
    s_cbranch_scc1 Lfb
    """)
    g.stamp("o stored")
    pA = 32; pR = 48; pI = 64; pU = 80; pT = 96; pF = 104; pM = 112; pX = 120; pW = 128
    vAs = 5; vBm = 176; vPO = 7
    p3st = [f"buffer_store_dwordx4 {vr(pF,4)}, v{pX+1}, {sr(OUT,4)}, s{sF1} offen {opt.p3_sc}",
            f"buffer_store_dwordx4 {vr(pF+4,4)}, v{pX+1}, {sr(OUT,4)}, s{sF1} offen offset:512 {opt.p3_sc}",
            f"buffer_store_dwordx4 {vr(pM,4)}, v{pX+2}, {sr(OUT,4)}, s{sF2} offen offset:512 {opt.p3_sc}",
            f"buffer_store_dwordx4 {vr(pM+4,4)}, v{pX+2}, {sr(OUT,4)}, s{sF2} offen {opt.p3_sc}"]
    zero_im = [f"v_mov_b64 {vr(pA+8+i,2)}, 0" for i in range(0, 8, 2)]
    def p3(main):
        L = []; a = L.append
        T = (lambda t, tag: LG(t, tag)) if main else (lambda t, tag: t)
        for k in range(4):
            for ee in range(2):
                a(T(f"ds_read_b64_tr_b16 {vr(pA+4*k+2*ee,2)}, v{vFB+(k>>1)} offset:{(k&1)*2048+ee*512}", f"b{k}"))
        stage = []; stage2 = []; wl = []
        if main:
            L += [f"s_sub_u32 s{sF2}, 2048, s{sRow}", f"s_and_b32 s{sF2}, s{sF2}, 2047", f"s_lshl_b32 s{sF2}, s{sF2}, 12",
                  f"s_lshl_b32 s{sF1}, s{sRow}, 12", f"v_add_u32 v{vAs}, 131072, v{vA}", f"v_add_u32 v{vAs+1}, 131072, v{vA2}", f"s_cmp_eq_u32 s{sRow}, 0", "s_cbranch_scc1 Lp3_real", "Lp3_mm:"]
            for c in range(7):
                hi = ASL[c] // 49152
                r, o = ((vAs, vAs + 1), 0) if hi > 1 else ((vA + hi, vA2 + hi), ASL[c] % 49152)
                for u in range(2):
                    for m in range(2):
                        for ee in range(2):
                            stage.append(LG(f"ds_read_b64_tr_b16 {ar(aW(c)+8*u+4*m+2*ee,2)}, v{r[m]} offset:{o+u*8192+ee*1024}", "stg" if c < 5 else "stg2"))
            stage2 = stage[40:]; stage = stage[:40]
            for c in opt.win: wl += burst(dmaWo(c, WSL[c] * 16384))
        else: L += ["s_waitcnt lgkmcnt(0)"] + zero_im + ["s_nop 1"]
        acc = [f"v_accvgpr_read_b32 v{pW+i}, a{aTW+i}" for i in range(32)] + [f"v_accvgpr_read_b32 v{pX+i}, a{aTX+i}" for i in range(3)] if main else []
        for k in range(4):
            if main: a(Wt(lg=f"b{k}"))
            for nb in range(2):
                d = vr((pR, pI)[nb], 16)
                tb = aT3 + (4 * k if nb == 0 else (16 + 4 * k if k < 2 else 4 * (k - 2)))
                a(f"v_mfma_f32_32x32x16_bf16 {d}, {vr(pA+4*k,4)}, {ar(tb,4)}, {'0' if k==0 else d}")
                for _ in range(5):
                    if stage: a(stage.pop(0))
                for _ in range(3):
                    if acc: a(acc.pop(0))
        if main:
            L += acc + g.stampl("beta") + [Wt(vm="ost", lg="stg"), "s_barrier", f"s_cmp_lg_u32 s{sW}, 1", "s_cbranch_scc1 Lnoofl"] + g.flag(0, sFlO) + ["Lnoofl:"] + g.stampl("oflag")
        else: a("s_nop 11")
        for i in range(8):
            r, im, c, s_ = pR + 2 * i, pI + 2 * i, pW + 2 * i, pW + 16 + 2 * i
            L += stage2[2 * i:2 * i + 2] + (take_vm(wl) if i % 2 else []) + [
                f"v_pk_mul_f32 {vr(pT,2)}, {vr(r,2)}, {vr(c,2)}", f"v_pk_mul_f32 {vr(pT+2,2)}, {vr(im,2)}, {vr(c,2)}",
                f"v_pk_fma_f32 {vr(pT,2)}, {vr(im,2)}, {vr(s_,2)}, {vr(pT,2)}",
                f"v_pk_fma_f32 {vr(pT+2,2)}, {vr(r,2)}, {vr(s_,2)}, {vr(pT+2,2)} neg_lo:[0,1,0] neg_hi:[0,1,0]",
                f"v_cvt_pk_bf16_f32 v{pU+i}, v{pT}, v{pT+1}", f"v_cvt_pk_bf16_f32 v{pU+8+i}, v{pT+2}, v{pT+3}"]
        a("s_nop 0")
        for k in range(4):
            a(f"v_mfma_f32_32x32x16_bf16 {vr(pR,16)}, {vr(pU+4*k,4)}, {ar(aT3+4*k,4)}, {'0' if k==0 else vr(pR,16)}")
            L += take_vm(wl)
        if main:
            L += [f"s_lshl_b32 s{sT2}, s{sRB}, 6", f"s_add_u32 s{sT2}, s{sT2}, s{sW}", f"s_lshl_b32 s{sT2}, s{sT2}, 11",
                  f"s_add_u32 s{sT2}, s{sT2}, {WS_O}", f"s_sub_u32 s{sXb}, s{sXb}, {L_X-L_XO}", f"v_add_u32 v{vOX}, s{sT2}, v{v16}",
                  f"v_and_b32 v{vB}, 15, v{vL}", f"v_bfe_u32 v{vBm}, v{vL}, 4, 1", f"v_lshlrev_b32 v{vB}, 4, v{vB}", f"v_lshl_or_b32 v{vB}, v{vBm}, 10, v{vB}",
                  f"v_lshrrev_b32 v{vBm}, 5, v{vL}", f"v_lshl_or_b32 v{vB}, v{vBm}, 9, v{vB}", f"v_add_u32 v{vBm}, {L_MISC}, v{vB}",
                  f"v_add_u32 v{vB}, {L_XO}, v{vB}", f"v_add_u32 v{vBm+2}, s{sMisc}, v{v16}",
                  f"v_and_b32 v{vPO}, 7, v{vL}", f"v_lshl_or_b32 v{vPO}, v{vPO}, 2, 1", f"v_lshlrev_b32 v{vPO}, {opt.fsp}, v{vPO}"]
        else: a("s_nop 11")
        a(T(f"ds_bpermute_b32 v{pR+16}, v{pX}, v{pR}", "bp"))
        for m_ in range(8):
            a(f"v_cvt_pk_bf16_f32 v{pF+m_}, v{pR+2*m_}, v{pR+2*m_+1}")
            if m_ % 4 == 3: L += take_vm(wl)
        for m_ in range(1, 8): a(f"v_cvt_pk_bf16_f32 v{pM+m_}, v{pR+16-2*m_}, v{pR+15-2*m_}")
        L += take_vm(wl)
        for i in range(4): a(f"v_permlane16_swap_b32 v{pF+i}, v{pF+4+i}")
        L += [Wt(lg="bp") if main else "s_waitcnt lgkmcnt(0)", f"v_cvt_pk_bf16_f32 v{pM}, v{pR+16}, v{pR+15}", "s_nop 1"]
        for i in range(4): a(f"v_permlane16_swap_b32 v{pM+i}, v{pM+4+i}")
        return L + wl
    e(g.pad())
    e(Wt(vm=["d3", "t3"]))
    e(p3(True))
    e(g.pad())
    g.tail += ["Lp3_real:", "s_waitcnt lgkmcnt(0)"] + zero_im + [f"v_xor_b32 v{vFB}, 16, v{vFB}", "s_branch Lp3_mm"]
    g.tail += ["Lp3_again:"] + p3st + [f"s_mov_b32 s{sF1}, {1024<<12}", f"s_mov_b32 s{sF2}, {1024<<12}"] + p3(False) + ["s_branch Lp3_end"]
    e(f"s_cmp_eq_u32 s{sRow}, 0\ns_cbranch_scc1 Lp3_again\nLp3_end:")
    for n in range(4): e(LG(f"ds_write_b128 v{vBm+2}, {vr(8+4*n,4)} offset:{1024*n}", "own"))
    epi = f"""
    v_and_b32 v56, 15, v{vL}
    v_lshrrev_b32 v57, 5, v{vL}
    v_bfe_u32 v58, v{vL}, 4, 1
    v_lshl_or_b32 v57, v58, 1, v57
    v_bfe_u32 v58, v{vL}, 1, 2
    v_xor_b32 v57, v57, v58
    v_lshlrev_b32 v57, 4, v57
    v_lshl_or_b32 v56, v56, 6, v57
    v_add_u32 v56, s{sWb}, v56
    v_lshrrev_b32 v58, 2, v{vL}
    v_bfe_u32 v59, v{vL}, 3, 2
    v_and_b32 v60, 3, v{vL}
    v_xor_b32 v59, v59, v60
    v_lshlrev_b32 v59, 4, v59
    v_lshl_or_b32 v59, v58, 6, v59
    v_add_u32 v59, s{sWb}, v59
    v_lshlrev_b32 v60, 4, v60
    v_lshl_or_b32 v58, v58, 12, v60
    s_lshl_b32 s{sT0}, s{sRB}, 18
    s_lshl2_add_u32 s{sT1}, s{sG}, s{sW}
    s_lshl_b32 s{sT1}, s{sT1}, 6
    s_add_u32 s{sT0}, s{sT0}, s{sT1}
    s_add_u32 s{sT0}, s{sT0}, 2048
    s_add_u32 s{sT1}, s{sT0}, 0x10000
    s_add_u32 s{sT2}, s{sT0}, 0x20000
    s_add_u32 s{sT3}, s{sT0}, 0x30000
    """.strip().split("\n")
    if opt.wgepi:
        epi = f"""
        v_and_b32 v56, 15, v{vL}
        v_lshrrev_b32 v57, 5, v{vL}
        v_bfe_u32 v58, v{vL}, 4, 1
        v_lshl_or_b32 v57, v58, 1, v57
        v_lshl_or_b32 v57, s{sW}, 2, v57
        v_and_b32 v58, 7, v{vL}
        v_xor_b32 v57, v57, v58
        v_lshlrev_b32 v57, 4, v57
        v_lshl_or_b32 v57, v56, 8, v57
        v_lshrrev_b32 v58, 4, v{vL}
        v_xor_b32 v59, v56, v58
        v_lshlrev_b32 v59, 4, v59
        v_lshl_or_b32 v59, v58, 8, v59
        v_add_u32 v59, s{sWb}, v59
        v_xor_b32 v60, 64, v59
        v_lshlrev_b32 v56, 4, v56
        v_lshl_or_b32 v58, v58, 12, v56
        s_lshl2_add_u32 s{sT0}, s{sRB}, s{sW}
        s_lshl_b32 s{sT0}, s{sT0}, 16
        s_lshl_b32 s{sT1}, s{sG}, 8
        s_add_u32 s{sT0}, s{sT0}, s{sT1}
        s_add_u32 s{sT0}, s{sT0}, 2048
        s_add_u32 s{sT1}, s{sT0}, 0x4000
        s_add_u32 s{sT2}, s{sT0}, 0x8000
        s_add_u32 s{sT3}, s{sT0}, 0xc000
        """.strip().split("\n")
    if not opt.epig: e([x.strip() for x in epi])
    g.stamp("p3 done")
    opoll = f"buffer_load_dword v{vPoll}, v{vPO}, {sr(WS,4)}, s{sPoO} offen sc1"
    e([f"s_cmp_lg_u32 s{sW}, 3", "s_cbranch_scc1 Lnopoll", opoll, "s_waitcnt vmcnt(0)"] + g.check(1, vPoll, opoll) + ["Lnopoll:", Wt(lg=["own", "stg2"]), "s_barrier"])
    g.stamp("o flags")
    lead = []
    for c in range(2, 2 + opt.xurg): lead += burst(dmaXo(c))
    e(take_vm(lead, 2))
    og = {-1: take_vm(lead, opt.xpre)}
    i = 0
    while lead: og[i] = take_vm(lead); i += 1
    items = [(0, 8 * c - 8, dmaXo(c)) for c in range(2 + opt.xurg, 10)] + [(8 * (c - 7), 8 * c - 8, dmaXo(c)) for c in range(10, 16)]
    items += [(0, 8 * c - 8, dmaWo(c, WSL[c] * 16384)) for c in range(7, 12) if c not in opt.win]
    items += [(8 * (c - 4), 8 * c - 8, dmaWo(c, WSL[c] * 16384)) for c in range(12, 16)]
    while items:
        av = [it for it in items if it[0] <= i]
        if not av: i = min(it[0] for it in items); continue
        it = min(av, key=lambda it: it[1]); items.remove(it)
        pre, ops, _ = it[2]
        og.setdefault(i, []).extend(pre + ([] if len(pre) > 1 else ["s_nop 0"]))
        for op in ops:
            og.setdefault(i, []).append(op); last = i
            i += opt.pace if it[1] - i > opt.slack else 1
        assert last < it[1] - 6, (last, it[1])
    if opt.epig:
        for n, x in enumerate(epi): og.setdefault(n * 8 // len(epi), []).append(x.strip())
    if opt.ofine:
        for c in range(1, 16): og.setdefault(8 * c - 1, []).extend(g.stampl(f"oc{c}"))
    if opt.fine:
        for i, nm in ((13, "o c2"), (45, "o c5"), (85, "o c10")): og.setdefault(i, []).extend(g.stampl(nm))
    for n, x in enumerate(p3st): og.setdefault(opt.dpos + opt.dsp * n, []).append(VM(x))
    grp = {}
    for i in range(2 * opt.walk, 128, 3 * opt.walk) if opt.walk else []: og.setdefault(i | 1, []).extend(g.pad())
    rest = gemm(g, "o", lambda c: ("a", aW(c)) if c < 7 else ((vA + WSL[c] // 3, vA2 + WSL[c] // 3), (WSL[c] % 3) * 16384),
                lambda c: (vBm, c * 8192, (0, 256, 2048, 2304)) if c < 2 else (vB, ((c - 2) % 8) * 8192, (0, 256, 2048, 2304)),
                {c: [f"oX{c}"] + ([f"oW{c}"] if c > 6 else []) for c in range(2, 16)}, grp, og)
    assert not rest
    g.stamp("out gemm done")
    e("s_nop 1")
    for n in range(4):
        for i in range(4): e(f"v_cvt_pk_bf16_f32 v{64+4*n+i}, v{8*n+2*i}, v{8*n+2*i+1}")
        if n: e([f"v_permlane16_swap_b32 v{60+4*n+i}, v{62+4*n+i}" for i in range(2)] + [LG(f"ds_write_b128 v{57 if opt.wgepi else 56}, {vr(60+4*n,4)} offset:{(4096 if opt.wgepi else 1024)*(n-1)}", f"ew{n-1}")])
    e(["s_nop 0"] + [f"v_permlane16_swap_b32 v{76+i}, v{78+i}" for i in range(2)] + [LG(f"ds_write_b128 v{57 if opt.wgepi else 56}, {vr(76,4)} offset:{12288 if opt.wgepi else 3072}", "ew3")])
    if opt.wgepi: e([Wt(lg="ew3"), "s_barrier"])
    for n in range(4):
        e(Wt(lg=f"ew{n}"))
        e(LG(f"ds_read_b128 {vr(80+4*n,4)}, v{59+(n&1) if opt.wgepi else 59} offset:{1024*n}", f"er{n}"))
    for n in range(4):
        e(Wt(lg=f"er{n}"))
        e(f"buffer_store_dwordx4 {vr(80+4*n,4)}, v58, {sr(OUT,4)}, s{sT0+n} offen {opt.out_sc}")
    if opt.stamps:
        e("s_waitcnt vmcnt(0)")
        g.stamp("end")
    if opt.echo:
        e("s_waitcnt vmcnt(0)")
        g.stamp("fin")
        e("""
        s_memrealtime s[6:7]
        s_waitcnt lgkmcnt(0)
        s_lshl_b32 s9, s9, 2
        s_add_u32 s9, s9, s6
        Lecho:
        s_sleep 2
        s_memrealtime s[6:7]
        s_waitcnt lgkmcnt(0)
        s_sub_u32 s10, s6, s9
        s_cmp_lt_i32 s10, 0
        s_cbranch_scc1 Lecho
        """)
    e("Lend:\ns_endpgm")
    e(g.tail)
    e(f"""
    Lfb:
    s_mov_b32 s{sMode}, 1
    v_mov_b32 v{vT0}, 0xff800000
    v_mov_b32 v{vT1}, 0xff800000
    s_mov_b32 s{sC}, 0
    Lfb1:
    buffer_load_dwordx4 {vr(K[0],4)}, v{v16}, {sr(WS,4)}, s{sC} offen sc1
    buffer_load_dwordx4 {vr(K[0]+4,4)}, v{v16}, {sr(WS,4)}, s{sC} offen offset:1024 sc1
    s_waitcnt vmcnt(0)
    """)
    for qb in range(2):
        e(f"v_mfma_f32_32x32x16_bf16 {vr(S[qb],16)}, {vr(K[0],4)}, {vr(Q[qb],4)}, 0")
        e(f"v_mfma_f32_32x32x16_bf16 {vr(S[qb],16)}, {vr(K[0]+4,4)}, {vr(Q[qb]+4,4)}, {vr(S[qb],16)}")
    e("s_nop 15")
    e(maxtree(vT0, S[0], False) + maxtree(vT1, S[1], False))
    e(f"s_add_u32 s{sC}, s{sC}, 4096\ns_cmp_lt_u32 s{sC}, 0x40000\ns_cbranch_scc1 Lfb1")
    finish_max(0.0, [])
    for i in range(O[0], Lr[1] + 4, 2): e(f"v_mov_b64 {vr(i,2)}, 0")
    e(f"s_mov_b32 s{sC}, 0\nLfb2:")
    for k in range(2):
        e(f"buffer_load_dwordx4 {vr(K[0]+4*k,4)}, v{v16}, {sr(WS,4)}, s{sC} offen offset:{1024*k} sc1")
        e(f"buffer_load_dwordx4 {vr(V[0]+4*k,4)}, v{v16}, {sr(WS,4)}, s{sC} offen offset:{2048+1024*k} sc1")
    e("s_waitcnt vmcnt(0)")
    for qb in range(2):
        e(f"v_mfma_f32_32x32x16_bf16 {vr(S[qb],16)}, {vr(K[0],4)}, {vr(Q[qb],4)}, {vr(M[qb],16)}")
        e(f"v_mfma_f32_32x32x16_bf16 {vr(S[qb],16)}, {vr(K[0]+4,4)}, {vr(Q[qb]+4,4)}, {vr(S[qb],16)}")
    e("s_nop 15")
    for i in range(32): e(f"v_exp_f32 v{i}, v{i}")
    e("s_nop 1")
    for qb in range(2):
        for u in range(2):
            e(f"v_smfmac_f32_32x32x32_bf16 {vr(O[qb],16)}, {vr(V[0]+4*u,4)}, {vr(S[qb]+8*u,8)}, v{IDX}")
            e(f"v_smfmac_f32_16x16x64_bf16 {vr(Lr[qb],4)}, {vr(ONES,4)}, {vr(S[qb]+8*u,8)}, v{IDX}")
    e(f"""
    s_add_u32 s{sC}, s{sC}, 4096
    s_cmp_lt_u32 s{sC}, 0x40000
    s_cbranch_scc1 Lfb2
    s_nop 15
    s_branch La_norm
    Lcode_end:
    """)
    txt = g.text()
    for i, l in enumerate(txt):
        if "PADNEXT" in l:
            k = int(l.split("PADNEXT")[1]) + 4
            txt[i] = l.split("PADNEXT")[0] + (f"Lpad{k}" if k < g.npad else "Lwalk_ret")
    a = txt.index("Lkv_done:"); b = txt.index("Lkvflag_b:")
    nld = sum(1 for l in txt[a:b] if l.startswith(" buffer_load"))
    txt[txt.index(" KVFLAGWAIT")] = f" s_waitcnt vmcnt({nld})"
    return txt

def table_text():
    b = TB.blob(); L = []
    for i in range(0, len(b), 128):
        ch = b[i:i + 128]
        L.append(".octa " + ",".join("0x%x" % int.from_bytes(ch[j:j + 16], "little") for j in range(0, 128, 16)))
    return "\n".join(L)

NOTES = """;
;  3. Attention over all 2048 keys: S^T = K Q^T with -m as the C operand, v_exp_f32 in place, P V and the row sums with the
; Hand-offs between workgroups go through d_ws: sc1 stores, vmcnt wait, sc1 flag; consumers poll with sc1 loads, then load
"""
def build(opt):
    ref = open(f"cdna_kernels/{NAME}.s.ref").read().split("\n")
    head = [l for l in ref if l.startswith(";") and "@launch" not in l]
    s = "\n".join(head) + "\n; @launch grid=(256,1,1) block=(256,1,1) lds=163840\n" + NOTES
    s += f""".amdgcn_target "amdgcn-amd-amdhsa--gfx950"
.text
.globl {NAME}_kernel
.p2align 8
.type {NAME}_kernel,@function
"""
    s += "\n".join(gen(opt)) + "\n"
    s += f""".fill {2048 if opt.exp==4 else 256}, 4, 0xbf800000
s_endpgm
.section .rodata,"a"
.p2align 6
.amdhsa_kernel {NAME}_kernel
  .amdhsa_next_free_vgpr 512
  .amdhsa_next_free_sgpr 102
  .amdhsa_accum_offset 256
  .amdhsa_group_segment_fixed_size 0
  .amdhsa_kernarg_size 104
  .amdhsa_user_sgpr_count 2
  .amdhsa_user_sgpr_kernarg_segment_ptr 1
  .amdhsa_system_sgpr_workgroup_id_x 1
.end_amdhsa_kernel
.p2align 8
fn_tables:
"""
    s += table_text() + "\n"
    return s

if __name__ == "__main__":
    opt = Opt()
    out = f"cdna_kernels/{NAME}.s"
    for a in sys.argv[1:]:
        if a.startswith("-o"): out = a[2:]
        else:
            k, v = a.split("=")
            cur = getattr(opt, k)
            setattr(opt, k, type(cur)(int(v)) if isinstance(cur, (bool, int)) else type(cur)(v))
    s = build(opt)
    open(out, "w").write(s)
    if opt.stamps: open(out + ".names", "w").write("\n".join(opt.names))
    print(out, len(s), "bytes")
```

```python
import sys, struct
import tables as TB

NAME = "concat_heads__spectral_fnet__grouped_kv_mqa__prompt"

class Opt:
    stamps = False
    dbg = False
    codepf = True
    spin = 1 << 20
    out_sc = "nt"
    force_fb = False
    off = 100.0
    ap = 3
    bpos = 0
    wgepi = True
    d1nat = True
    rebal = True
    nofill = 0
    epig = True
    loop2 = False
    dsp = 4
    ofine = False
    pnop = 0
    xurg = 4
    pace = 2
    slack = 24
    walk = 0
    wpos = 0
    pf2 = 0
    nobar = ''
    wf = 4
    lead = 5
    nkv = 5
    fgap = 3
    rot = '4821'
    nt = ''
    ntf = 'nt'
    dpos = 104
    xpre = 2
    nwin = 3
    w0n = 0
    poll1 = True
    wgflag = True
    defer = True
    fsp = 2
    slp = 0
    pre1 = 2
    echo = ''
    warm = False
    p3_sc = 'nt'
    d1_sc = ''
    ppos = 21
    afine = False
    exp = 0
    xsc = ''
    fine = False
    mapA = True
    kvb = 11
    nofft = False
    oflag = 0

def f2u(x): return struct.unpack("<I", struct.pack("<f", x))[0]
def vr(b, n): return f"v[{b}:{b+n-1}]"
def ar(b, n): return f"a[{b}:{b+n-1}]"
def sr(b, n): return f"s[{b}:{b+n-1}]"

WS_FL = 0x40000
FL_EPOCH = WS_FL
FL_KV = WS_FL + 0x1000
FL_Z1 = WS_FL + 0x2000
FL_Z2 = WS_FL + 0x3000
FL_O = WS_FL + 0x8000
WS_O = 0x100000
WS_Z1 = 0x800000
WS_Z2 = 0xC00000
WS_ST = 0x1000000
L_X = 96 * 1024; L_MISC = 144 * 1024
KB = [65536, 0, 32768, 98304]
sW, sX, sJ, sRB, sG, sC0 = 30, 31, 32, 33, 34, 35
GX, GW, WS, OUT, XA, TBL, KW = 36, 40, 44, 48, 52, 56, 60
sTAG, sOffW, sTX, sWb, sXb = 64, 65, 66, 67, 68
sRB2, sG2, sC2 = 69, 70, 71
sKV, sKV2, sMisc = 72, 73, 74
sF1, sSt1, sFl1, sPo1, sTab2, sF2, sSt2, sFl2, sPo2, sF3, sRow = 75, 76, 77, 78, 79, 86, 87, 88, 89, 90, 91
sT0, sT1, sT2, sT3, sT4, sT5 = 80, 81, 82, 83, 84, 85
sOst, sOst2, sFlO, sPoO, sOffW2, sFlKV, sCB, sMode, sSpin, sTb = 92, 93, 94, 95, 96, 97, 98, 99, 100, 101
sC = 16
sLow = 69; sOwn = [70, 71]
sIdx = [4, 5, 14, 15, 18, 19, 20, 21, 24, 25, 28, 29, 35, 17]
def idx(c): return sOwn[c] if c < 2 else sIdx[c - 2]
ASL = {2: 65536, 3: 81920, 0: 131072, 1: 0, 4: 16384, 5: 32768, 6: 49152}
def aW(c): return 16 * c if c < 5 else 148 + 16 * (c - 5)
L_XO = 80 * 1024
WSL = {7: 0, 8: 1, 9: 4, 10: 2, 11: 3, 12: 0, 13: 1, 14: 4, 15: 2}
S = [0, 16, 32, 48]; O = [64, 80]; Lr = [96, 100]; M = [104, 120]; Q = [136, 144]; K = [152, 160]; V = [168, 176]
ONES = 184; IDX = 188; vKlo = 230; vKhi = 189
vFD = 196
vFB = 228
v16 = 230; vP1 = 231; vZ = 232; vA = 233; vB = 235; vOW = 238; vOX = 242
vA2 = 190; vPoll = 244; vP4 = 245; vOne = 237
vDummy = 246
vL = 250; vT0 = 251; vT1 = 252; vT2 = 253; vT3 = 254; vT4 = 255
aD, aT1, aT2, aT3, aTX, aTW = 0, 16, 48, 80, 112, 116

NT = {'w': '', 'x': '', 'o': ''}
class I:
    def __init__(s, t, kind=None, tag=None): s.t, s.kind, s.tag = t, kind, tag
class Wt:
    def __init__(s, vm=None, lg=None, must=False): s.vm, s.lg, s.must = vm, lg, must
def VM(t, tag=None): return I(t, "vm", tag)
def LG(t, tag=None): return I(t, "lg", tag)

class G:
    def __init__(self, opt):
        self.o = []; self.opt = opt; self.nst = 0; self.uid = 0; self.tail = []
    def e(self, s):
        if isinstance(s, (list, tuple)):
            for x in s: self.e(x)
        elif isinstance(s, (I, Wt)): self.o.append(s)
        elif s:
            for l in s.strip("\n").split("\n"):
                l = l.strip()
                if l: self.o.append(I(l))
    def lab(self, p):
        self.uid += 1; return f"{p}_{self.uid}"
    def text(self):
        out = []; vq = []; lq = []; seen = set(); waited = set()
        alltags = {x.tag for x in self.o if isinstance(x, I) and x.kind}
        def cnt(q, tags, mx):
            tags = tags if isinstance(tags, (list, tuple)) else [tags]
            for t in tags:
                assert t in seen or t not in alltags, ("wait before issue", t)
                waited.add(t)
            idx = max([i for i, t in enumerate(q) if t in tags], default=-1)
            if idx < 0: return None
            n = min(len(q) - 1 - idx, mx)
            del q[:len(q) - n]
            return n
        for x in self.o:
            if isinstance(x, Wt):
                p = []
                if x.vm is not None:
                    if x.vm == "all": p.append("vmcnt(0)"); vq.clear()
                    else:
                        n = cnt(vq, x.vm, 63)
                        if n is not None: p.append(f"vmcnt({n})")
                if x.lg is not None:
                    if x.lg == "all": p.append("lgkmcnt(0)"); lq.clear()
                    else:
                        n = cnt(lq, x.lg, 15)
                        if n is not None: p.append(f"lgkmcnt({n})")
                if p: out.append(" s_waitcnt " + " ".join(p))
                elif x.must: out.append(" s_nop 0")
            else:
                if x.kind:
                    assert x.tag is None or x.tag not in waited, ("issue after wait", x.tag)
                    seen.add(x.tag)
                if x.kind == "vm": vq.append(x.tag)
                if x.kind == "lg": lq.append(x.tag)
                out.append(x.t if x.t.endswith(":") else " " + x.t)
        return out
    def stamp(self, name, cyc=False):
        if self.opt.echo.startswith("cyc:") and not cyc:
            a, b = self.opt.echo[4:].split("-")
            if name == a: self.e("s_memtime s[6:7]\ns_waitcnt lgkmcnt(0)\ns_mov_b32 s3, s6")
            if name == b: self.e("s_memtime s[6:7]\ns_waitcnt lgkmcnt(0)\ns_sub_u32 s9, s6, s3\ns_lshr_b32 s9, s9, 3")
        if self.opt.echo == name and not cyc:
            self.e("s_memrealtime s[6:7]\ns_waitcnt lgkmcnt(0)\ns_sub_u32 s9, s6, s3")
        if not self.opt.stamps or cyc: return
        k = self.nst; self.nst += 1
        self.opt.names.append(("CYC " if cyc else "") + name)
        if self.opt.dbg:
            lb = self.lab("Lnost")
            self.e(f"""
            s_cmp_lg_u32 s9, 0
            s_cbranch_scc1 {lb}
            s_memrealtime s[6:7]
            s_waitcnt lgkmcnt(0)
            v_mov_b32 v195, s6
            s_mov_b64 exec, 1
            buffer_atomic_umax v195, off, s[12:15], 0 offset:{4*k}
            s_mov_b64 exec, -1
            {lb}:
            """)
            return
        self.e(f"""
        s_memrealtime s[6:7]
        s_memtime s[12:13]
        s_waitcnt lgkmcnt(0)
        v_mov_b32 v194, s6
        v_mov_b32 v195, s12
        buffer_store_dwordx2 v[194:195], off, {sr(WS,4)}, s8 offset:{8*k}
        """)
    def stampl(self, name):
        if name in ("beta", "oflag") and not self.opt.fine: return []
        save = self.o; self.o = []; self.stamp(name); r = self.o; self.o = save; return r
    def pad(self):
        if not self.opt.walk: return []
        self.npad = getattr(self, "npad", 0) + 1
        return [f"Lpad{self.npad-1}:", f"s_cbranch_execz PADNEXT{self.npad-1}"]
    def srd(self, d, lo, size):
        return [f"s_mov_b32 s{d}, s{lo}", f"s_and_b32 s{d+1}, s{lo+1}, 0xffff", f"s_mov_b32 s{d+2}, {size}", f"s_mov_b32 s{d+3}, 0x20000"]
    def flag(self, tmp, soff):
        return [f"v_mov_b32 v{tmp}, s{sTAG}", f"buffer_store_dword v{tmp}, v{vOne}, {sr(WS,4)}, s{soff} offen sc1"]
    def check(self, nreg, reg, load):
        lr = self.lab("Lretry"); lb = self.lab("Lback")
        cmp = [f"v_cmp_ne_u32 vcc, s{sTAG}, v{reg}"]
        for i in range(1, nreg):
            cmp += [f"v_cmp_ne_u32 s[10:11], s{sTAG}, v{reg+i}", "s_or_b64 vcc, vcc, s[10:11]"]
        self.nchk = getattr(self, "nchk", 0) + 1
        mark = [f"v_mov_b32 v195, s{sTAG}", f"buffer_store_dword v195, off, {sr(WS,4)}, s8 offset:{8*(27+self.nchk)}"] if self.opt.stamps else []
        self.tail += [f"{lr}:"] + mark + [f"s_mov_b32 s{sSpin}, {self.opt.spin}", f"{lr}_l:", f"s_sleep {self.opt.slp}" if self.opt.slp else None, load, "s_waitcnt vmcnt(0)"] + cmp + [
            "s_cmp_eq_u64 vcc, 0", f"s_cbranch_scc1 {lb}", f"s_sub_u32 s{sSpin}, s{sSpin}, 1", f"s_cbranch_scc0 {lr}_l",
            f"v_mov_b32 v{vDummy}, {self.uid}", f"v_mov_b32 v{vDummy+1}, 0",
            f"global_store_dword v{vDummy+1}, v{vDummy}, s[26:27] offset:60", f"s_branch {lb}"]
        return cmp + ["s_cmp_eq_u64 vcc, 0", f"s_cbranch_scc0 {lr}", f"{lb}:"]

def dmaW(c, soff=sOffW, p=""):
    pre = [f"s_add_u32 m0, s{sWb}, {(c%6)*16384}"]
    ops = [VM(f"buffer_load_dwordx4 v{vOW+n}, {sr(GW,4)}, s{soff} offen offset:{1024*n} {NT['w']} lds", f"{p}W{c}") for n in range(4)]
    post = [f"s_add_u32 s{soff}, s{soff}, 0x20000", f"s_and_b32 s{soff}, s{soff}, 0x1fffff"]
    return pre, ops, post
def dmaX(c, step, mask, adv=1, p=""):
    pre = [f"s_add_u32 m0, s{sXb}, {(c%6)*8192}"]
    ops = [VM(f"buffer_load_dwordx4 v{vOX+n}, {sr(GX,4)}, s{sTX} offen offset:{1024*n} {NT['x']} lds", f"{p}X{c}") for n in range(2)]
    post = [f"s_add_u32 s{sTX}, s{sTX}, {(adv*step)&mask}", f"s_and_b32 s{sTX}, s{sTX}, {mask}"]
    return pre, ops, post
pKV = [60, 62]; gW_ = 36; gT_ = 38
def base(p, srd, off): return [f"s_add_u32 s{p}, s{srd}, {off}", f"s_addc_u32 s{p+1}, s{srd+1}, 0"]
def gKV(ch, hf):
    pre, ops, post = dmaKV(ch, hf)
    ops = [VM(f"global_load_lds_dwordx4 v{v16}, s[{pKV[hf]}:{pKV[hf]+1}] offset:{1024*n} sc1", ops[n].tag) for n in range(4)]
    return pre, ops, post + [base(pKV[hf], WS, f"s{(sKV, sKV2)[hf]}")]
def burst(p):
    pre, ops, post = p
    return pre + ["s_nop 0"] + ops + post
def dmaKV(ch, hf):
    so = sKV2 if hf else sKV
    pre = [f"s_add_u32 m0, s{sWb}, {KB[ch%4]+16384*hf}"]
    ops = [VM(f"buffer_load_dwordx4 v{v16}, {sr(WS,4)}, s{so} offen offset:{1024*n} sc1 lds", f"KV{ch}{'ab'[hf]}") for n in range(4)]
    post = [f"s_add_u32 s{so}, s{so}, 32768", f"s_and_b32 s{so}, s{so}, 0x3ffff"]
    return pre, ops, post

FS = [32, 196, 152]
def gemm(g, pfx, srcA, srcB, waits, groups, gaps):
    e = g.e
    def rd(t):
        c, u = t >> 1, t & 1; f = FS[t % 3]; r, o = srcA(c); rb, ob, nb = srcB(c)
        A = [None] * 4 if r == "a" else [LG(f"ds_read_b64_tr_b16 {vr(f+4*m+2*ee,2)}, v{r[m]} offset:{o+u*8192+ee*1024}", f"{pfx}r{t}") for m in range(2) for ee in range(2)]
        B = [LG(f"ds_read_b128 {vr(f+8+4*n,4)}, v{rb} offset:{ob+u*4096+nb[n]}", f"{pfx}r{t}") for n in range(4)]
        return [x for p in zip(B, A) for x in p]
    extra = {i: list(v) for i, v in gaps.items()}
    if waits.get(0): e(Wt(vm=waits[0])); e("s_barrier")
    for t in range(2): e(rd(t))
    e(extra.pop(-1, []))
    def put(i, l): extra.setdefault(i, []).extend(l)
    i = 0
    for c in range(16):
        i = max(i, 8 * c)
        for pre, ops, post in groups.get(c, []):
            put(i, pre)
            for op in ops:
                i += 1; put(i, [op])
            put(i, post)
    for t in range(32):
        c, u = t >> 1, t & 1; f = FS[t % 3]; r, o = srcA(c)
        nxt = rd(t + 2) if t + 2 < 32 else [None] * 8
        e(Wt(lg=f"{pfx}r{t}"))
        for j in range(8):
            m, n = j & 1, j >> 1
            a = ar(o + 8 * u + 4 * m, 4) if r == "a" else vr(f + 4 * m, 4)
            e(f"v_mfma_f32_16x16x32_bf16 {vr(4*j,4)}, {a}, {vr(f+8+4*n,4)}, {'0' if t == 0 else vr(4*j,4)}")
            if j == 0 and u == 0:
                if waits.get(c + 1): e(Wt(vm=waits[c + 1]))
                if waits.get(c + 1) or groups.get(c): e("s_barrier")
            e(nxt[j])
            if j & 1: e(extra.pop(4 * t + n, []))
    rest = []
    for i in sorted(extra): rest += extra[i]
    return rest
def dmaWo(c, lds):
    pre = [f"s_add_u32 m0, s{sWb}, {lds}", f"s_lshl4_add_u32 s{sOffW}, s{idx(c)}, s{sLow}"]
    ops = [VM(f"buffer_load_dwordx4 v{vOW+n}, {sr(GW,4)}, s{sOffW} offen offset:{1024*n} {NT['o']} lds", f"oW{c}") for n in range(4)]
    return pre, ops, []
def dmaXo(c):
    pre = [f"s_add_u32 m0, s{sXb}, {((c-2)%8)*8192}"]
    ops = [VM(f"buffer_load_dwordx4 v{vOX}, {sr(WS,4)}, s{idx(c)} offen offset:{1024*n} sc1 lds", f"oX{c}") for n in range(2)]
    return pre, ops, []

def gen(opt):
    g = G(opt); e = g.e
    opt.names = []
    opt.nob = [int(x) for x in opt.nobar]
    for k in opt.nt: NT[k] = opt.ntf
    opt.win = [7, 8, 9][:opt.nwin]
    e(f"{NAME}_kernel:")
    if opt.stamps or opt.echo: e("s_memrealtime s[60:61]")
    e(f"""
    s_cmp_ge_u32 s2, 256
    s_cbranch_scc1 Lend
    s_load_dwordx16 s[4:19], s[0:1], 0
    s_load_dwordx8 s[20:27], s[0:1], 64
    s_load_dwordx2 s[28:29], s[0:1], 96
    v_lshrrev_b32 v1, 6, v0
    v_and_b32 v{vL}, 63, v0
    v_readfirstlane_b32 s{sW}, v1
    v_lshlrev_b32 v{v16}, 4, v{vL}
    s_and_b32 s{sX}, s2, 7
    s_lshr_b32 s{sJ}, s2, 3
    """)
    if opt.codepf:
        e(f"""
        s_lshl_b32 s{sT0}, s{sJ}, 2
        s_add_u32 s{sT0}, s{sT0}, s{sW}
        s_lshl_b32 s{sT0}, s{sT0}, 10
        s_cmp_ge_u32 s{sT0}, Lcode_end-Lpc1
        s_cbranch_scc1 Lnopf
        s_getpc_b64 s[{sT2}:{sT3}]
        Lpc1:
        v_add_u32 v13, s{sT0}, v{v16}
        global_load_dwordx4 {vr(vDummy,4)}, v13, s[{sT2}:{sT3}]
        Lnopf:
        """)
    e(f"s_lshl2_add_u32 s{sCB}, s{sX}, s{sW}")
    if opt.mapA:
        e(f"""
        s_and_b32 s{sT0}, s{sJ}, 7
        s_lshr_b32 s{sT1}, s{sX}, 1
        s_lshl3_add_u32 s{sRB}, s{sT1}, s{sT0}
        s_lshr_b32 s{sT1}, s{sJ}, 3
        s_and_b32 s{sT2}, s{sX}, 1
        s_lshl2_add_u32 s{sG}, s{sT2}, s{sT1}
        s_lshl1_add_u32 s{sT0}, s{sT1}, s{sT0}
        s_lshl_b32 s{sT0}, s{sT0}, 1
        s_and_b32 s{sC0}, s{sT0}, 15
        """)
    if opt.rot:
        a, b, c, d = [int(x, 16) for x in opt.rot]
        e(f"""
        s_lshr_b32 s{sT0}, s{sX}, 1
        s_mul_i32 s{sC0}, s{sT0}, {a}
        s_and_b32 s{sT0}, s{sX}, 1
        s_mul_i32 s{sT0}, s{sT0}, {b}
        s_add_u32 s{sC0}, s{sC0}, s{sT0}
        s_lshr_b32 s{sT0}, s{sJ}, 3
        s_mul_i32 s{sT0}, s{sT0}, {c}
        s_add_u32 s{sC0}, s{sC0}, s{sT0}
        s_and_b32 s{sT0}, s{sJ}, 7
        s_mul_i32 s{sT0}, s{sT0}, {d}
        s_lshr_b32 s{sT0}, s{sT0}, 1
        s_add_u32 s{sC0}, s{sC0}, s{sT0}
        s_and_b32 s{sC0}, s{sC0}, 15
        """)
    e(f"""
    v_lshrrev_b32 v1, 5, v{vL}
    v_lshrrev_b32 v2, 4, v{vL}
    v_and_b32 v7, 31, v{vL}
    v_and_b32 v9, 15, v{vL}
    v_xor_b32 v8, v7, v1
    v_lshlrev_b32 v8, 4, v8
    v_lshl_or_b32 v128, v1, 11, v8
    """)
    for n in range(1, 8):
        e(f"v_xor_b32 v{128+n}, {32*n}, v128\nv_add_u32 v{128+n}, {n*4096-1024*(n&3)}, v{128+n}")
    e(f"""
    s_lshl_b32 s{sT2}, s{sW}, 13
    s_add_u32 s{sT2}, s{sT2}, {112*1024}
    s_mov_b32 s{sT3}, {48*1024}
    s_cmp_eq_u32 s{sW}, 1
    s_cselect_b32 s{sT3}, {144*1024}, s{sT3}
    s_cmp_eq_u32 s{sW}, 2
    s_cselect_b32 s{sT3}, {80*1024}, s{sT3}
    s_cmp_eq_u32 s{sW}, 3
    s_cselect_b32 s{sT3}, {64*1024}, s{sT3}
    s_lshr_b32 s{sT0}, s{sG}, 1
    s_lshl2_add_u32 s{sT0}, s{sRB}, s{sT0}
    s_lshl_b32 s{sT4}, s{sT0}, 15
    s_lshl_b32 s{sT0}, s{sW}, 9
    s_add_u32 s{sT4}, s{sT4}, s{sT0}
    s_lshl_b32 s{sT5}, s{sW}, 14
    """)
    e(f"""
    v_lshlrev_b32 v10, 2, v2
    v_xor_b32 v10, v10, v9
    v_lshlrev_b32 v10, 4, v10
    v_lshl_or_b32 v{vOW}, v2, 11, v10
    v_add_u32 v{vOW+1}, 7168, v{vOW}
    v_xor_b32 v10, 32, v{vOW}
    v_add_u32 v{vOW+2}, 14336, v10
    v_add_u32 v{vOW+3}, 21504, v10
    """)
    e(f"""
    s_lshl_b32 s{sWb}, s{sW}, 12
    s_lshl_b32 s{sXb}, s{sW}, 11
    s_add_u32 s{sXb}, s{sXb}, {L_X}
    s_lshl2_add_u32 s{sT0}, s{sC0}, s{sW}
    s_lshl_b32 s{sT0}, s{sT0}, 7
    s_add_u32 s{sT0}, s{sT0}, s{sG}
    s_lshl_b32 s{sOffW}, s{sT0}, 8
    s_lshl_b32 s{sTX}, s{sC0}, 7
    """)
    e(f"""
    s_and_b32 s{sTb}, s{sJ}, 7
    s_lshr_b32 s{sT0}, s{sJ}, 4
    s_lshl3_add_u32 s{sTb}, s{sT0}, s{sTb}
    s_lshl_b32 s{sTb}, s{sTb}, 10
    """)
    e("s_waitcnt lgkmcnt(0)")
    if opt.stamps or opt.echo: e("s_mov_b32 s3, s60")
    e([f"s_bitcmp1_b32 s{sG}, 0", f"s_cselect_b32 s{KW}, s20, s18", f"s_cselect_b32 s{KW+1}, s21, s19",
       f"s_and_b32 s{KW+1}, s{KW+1}, 0xffff", f"s_mov_b32 s{KW+2}, 65536", f"s_mov_b32 s{KW+3}, 0x20000"])
    def kvw1():
        return [f"s_add_u32 m0, s{sT3}, s{sTb}", f"s_add_u32 s{sOst2}, s{sT5}, s{sTb}",
                VM(f"buffer_load_dwordx4 v{v16}, {sr(KW,4)}, s{sOst2} offen lds", "kv"),
                f"s_add_u32 s{sTb}, s{sTb}, 1024", f"s_and_b32 s{sTb}, s{sTb}, 0x3fff"]
    e(kvw1())
    e(g.srd(GX, 14, 4194304))
    for _ in range(opt.wf - 1): e(kvw1())
    kvx = [VM(f"buffer_load_dwordx4 v{128+n}, {sr(GX,4)}, s{sT4} offen offset:{1024*(n&3)} {NT['x']} lds", "kv") for n in range(8)]
    fill = [g.srd(GW, 16, 2097152), g.srd(WS, 28, 0x10000000) + [f"s_mov_b32 s{sMode}, {FL_EPOCH}"]]
    fill.append(f"""
    v_bfe_u32 v3, v{vL}, 2, 2
    v_and_b32 v4, 1, v{vL}
    v_bfe_u32 v5, v{vL}, 1, 1
    v_and_b32 v6, 1, v2
    v_lshlrev_b32 v{vP4}, 2, v7
    v_lshrrev_b32 v11, 3, v{vL}
    """)
    fill.append(f"""
    s_and_b32 s{sT0}, s{sW}, 1
    s_lshl1_add_u32 s{sT0}, s{sRB}, s{sT0}
    s_lshl_b32 s{sT0}, s{sT0}, 16
    s_lshr_b32 s{sT1}, s{sW}, 1
    s_lshl_b32 s{sT1}, s{sT1}, 6
    s_add_u32 s{sT0}, s{sT0}, s{sT1}
    v_lshrrev_b32 v12, 2, v{vL}
    v_and_b32 v13, 3, v{vL}
    v_sub_u32 v14, 0, v2
    v_xor_b32 v14, v13, v14
    v_and_b32 v14, 3, v14
    v_lshlrev_b32 v14, 4, v14
    v_lshl_or_b32 v14, v12, 11, v14
    v_add_u32 v{vOX}, s{sT0}, v14
    v_add_u32 v{vOX+1}, {32768-1024}, v{vOX}
    """)
    fill.append(f"""
    v_xor_b32 v13, v2, v9
    v_lshlrev_b32 v13, 4, v13
    v_lshl_or_b32 v13, v9, 9, v13
    v_add_u32 v136, s{sT2}, v13
    v_xor_b32 v14, 64, v13
    v_add_u32 v137, s{sT2}, v14
    v_xor_b32 v14, 128, v13
    v_add_u32 v138, s{sT2}, v14
    v_xor_b32 v14, 192, v13
    v_add_u32 v139, s{sT2}, v14
    """)
    fill.append(f"""
    v_lshl_add_u32 v13, v2, 3, v3
    v_lshlrev_b32 v13, 6, v13
    v_add_u32 v13, s{sT3}, v13
    v_and_b32 v14, 3, v{vL}
    v_lshlrev_b32 v14, 4, v14
    v_lshlrev_b32 v15, 5, v4
    v_lshl_or_b32 v15, v5, 3, v15
    s_bitcmp1_b32 s{sG}, 0
    s_cselect_b64 vcc, -1, 0
    s_cselect_b32 s{sT1}, 16, 8
    v_cndmask_b32 v14, v14, v15, vcc
    v_add_u32 v140, v13, v14
    v_add_u32 v141, s{sT1}, v140
    """)
    fill.append(f"""
    v_lshl_add_u32 v14, v6, 5, v9
    v_lshlrev_b32 v14, 4, v14
    v_lshl_or_b32 v14, v1, 10, v14
    v_cndmask_b32 v142, v14, v{v16}, vcc
    v_add_u32 v{vKhi}, 65536, v{v16}
    v_min_u32 v{vOne}, 1, v{vL}
    v_lshlrev_b32 v{vOne}, 28, v{vOne}
    """)
    fill.append(f"""
    v_lshl_add_u32 v13, v2, 3, v3
    v_xor_b32 v14, s{sW}, v3
    v_lshl_add_u32 v14, v14, 1, v6
    v_lshl_add_u32 v14, v14, 1, v5
    v_lshl_add_u32 v14, v14, 1, v4
    v_lshlrev_b32 v14, 3, v14
    v_lshl_or_b32 v{vA}, v13, 8, v14
    v_add_u32 v{vA+1}, 49152, v{vA}
    v_xor_b32 v{vA2}, 32, v{vA}
    v_xor_b32 v{vA2+1}, 32, v{vA+1}
    """)
    fill.append(f"""
    v_sub_u32 v13, 0, v3
    v_xor_b32 v13, v13, v2
    v_and_b32 v13, 3, v13
    v_lshlrev_b32 v13, 4, v13
    v_lshl_or_b32 v13, v9, 6, v13
    v_add_u32 v{vB}, {L_X}, v13
    """)
    fill.append(f"""
    v_lshl_add_u32 v13, v1, 3, v3
    v_lshl_add_u32 v14, v6, 1, v4
    v_lshrrev_b32 v15, 1, v3
    v_lshl_add_u32 v14, v14, 1, v15
    v_lshl_add_u32 v14, v14, 1, v5
    v_lshlrev_b32 v14, 3, v14
    v_lshl_or_b32 v13, v13, 7, v14
    s_add_u32 s{sMisc}, s{sWb}, {L_MISC}
    v_add_u32 v{vFB}, s{sMisc}, v13
    v_xor_b32 v{vFB+1}, 16, v{vFB}
    """)
    fill.append(f"""
    v_xor_b32 v13, v4, v6
    v_bfe_u32 v14, v{vL}, 1, 2
    v_lshlrev_b32 v15, 4, v14
    v_lshl_or_b32 v15, v11, 16, v15
    v_lshl_or_b32 v{vP1}, v13, 21, v15
    v_lshlrev_b32 v15, 9, v14
    v_lshl_or_b32 v15, v11, 12, v15
    v_lshl_or_b32 v{vZ}, v13, 4, v15
    """)
    if opt.d1nat:
        fill.append(f"""
        v_lshrrev_b32 v13, 2, v{vL}
        v_and_b32 v14, 3, v{vL}
        v_lshlrev_b32 v14, 4, v14
        v_lshl_or_b32 v{vP1}, v13, 16, v14
        v_lshl_add_u32 v13, v1, 3, v3
        v_lshl_add_u32 v14, v6, 1, v4
        v_lshl_add_u32 v14, v14, 1, v5
        v_lshlrev_b32 v14, 3, v14
        v_lshl_or_b32 v13, v13, 6, v14
        v_add_u32 v192, s{sMisc}, v13
        """)
    fill.append(g.srd(OUT, 24, 8388608) + g.srd(XA, 4, 4194304))
    fill.append(f"""
    s_getpc_b64 s[{TBL}:{TBL+1}]
    s_add_u32 s{TBL}, s{TBL}, fn_tables@rel32@lo+4
    s_addc_u32 s{TBL+1}, s{TBL+1}, fn_tables@rel32@hi+12
    s_and_b32 s{TBL+1}, s{TBL+1}, 0xffff
    s_mov_b32 s{TBL+2}, {TB.TBL_SIZE}
    s_mov_b32 s{TBL+3}, 0x20000
    """)
    fill.append(f"""
    s_lshl3_add_u32 s{sFlKV}, s{sRB}, s{sG}
    s_lshl_b32 s{sFlKV}, s{sFlKV}, 2
    s_add_u32 s{sFlKV}, s{sFlKV}, {FL_KV}
    s_lshl_b32 s{sKV}, s{sX}, 15
    s_add_u32 s{sKV}, s{sKV}, s{sWb}
    s_add_u32 s{sKV2}, s{sKV}, 16384
    s_lshl_b32 s{sF1}, s{sJ}, 5
    s_add_u32 s{sF1}, s{sF1}, s{sCB}
    s_lshl_b32 s{sFl2}, s{sF1}, 2
    s_add_u32 s{sFl2}, s{sFl2}, {FL_Z2}
    s_lshl_b32 s{sSt2}, s{sF1}, 12
    s_add_u32 s{sSt2}, s{sSt2}, {WS_Z2}
    s_lshl_b32 s{sF1}, s{sF1}, 6
    """)
    fill.append(f"""
    s_lshl_b32 s{sSt1}, s{sCB}, 5
    s_add_u32 s{sSt1}, s{sSt1}, s{sJ}
    s_lshl_b32 s{sFl1}, s{sSt1}, 2
    s_add_u32 s{sFl1}, s{sFl1}, {FL_Z1}
    s_lshl_b32 s{sSt1}, s{sSt1}, 12
    s_add_u32 s{sSt1}, s{sSt1}, {WS_Z1}
    s_lshl_b32 s{sPo1}, s{sCB}, 7
    s_add_u32 s{sPo1}, s{sPo1}, {FL_Z1}
    s_lshl_b32 s{sPo2}, s{sJ}, 7
    s_add_u32 s{sPo2}, s{sPo2}, {FL_Z2}
    s_lshl_b32 s{sTab2}, s{sJ}, 13
    s_add_u32 s{sTab2}, s{sTab2}, {TB.OFF_T2}
    """)
    def zoff(dst, hi, lo, base):
        return f"""
        s_lshl_b32 s{dst}, s{hi}, 17
        s_lshr_b32 s{sT1}, s{lo}, 4
        s_lshl_b32 s{sT1}, s{sT1}, 11
        s_add_u32 s{dst}, s{dst}, s{sT1}
        s_and_b32 s{sT1}, s{lo}, 15
        s_lshl_b32 s{sT1}, s{sT1}, 5
        s_add_u32 s{dst}, s{dst}, s{sT1}
        s_add_u32 s{dst}, s{dst}, {base}
        """
    fill.append(zoff(sF2, sCB, sJ, WS_Z1))
    fill.append(zoff(sF3, sJ, sCB, WS_Z2))
    fill.append(f"""
    s_lshl_b32 s{sT1}, s{sCB}, 6
    s_add_u32 s{sRow}, s{sT1}, s{sJ}
    s_sub_u32 s{sOst}, s{sT1}, {1024-32}
    s_cmp_lt_u32 s{sCB}, 16
    s_cselect_b32 s{sT1}, s{sT1}, s{sOst}
    s_cmp_eq_u32 s{sJ}, 0
    s_cselect_b32 s{sRow}, s{sT1}, s{sRow}
    s_lshl2_add_u32 s{sT1}, s{sG}, s{sW}
    s_lshl_b32 s{sOst}, s{sRB}, 5
    s_add_u32 s{sOst}, s{sOst}, s{sT1}
    s_lshl_b32 s{sFlO}, s{sOst}, {opt.fsp}
    s_add_u32 s{sFlO}, s{sFlO}, {FL_O}
    s_lshl_b32 s{sOst}, s{sOst}, 12
    s_add_u32 s{sOst}, s{sOst}, {WS_O}
    """)
    fill.append(f"""
    s_lshl_b32 s{sPoO}, s{sRB}, {5+opt.fsp}
    s_add_u32 s{sPoO}, s{sPoO}, {FL_O}
    s_lshl_b32 s{sLow}, s{sW}, 7
    s_add_u32 s{sLow}, s{sLow}, s{sG}
    s_lshl_b32 s{sLow}, s{sLow}, 8
    s_lshl_b32 s{sOwn[0]}, s{sG}, 14
    s_add_u32 s{sOwn[1]}, s{sOwn[0]}, 8192
    s_and_b32 s{sT0}, s{sJ}, 7
    s_lshl_b32 s{sT0}, s{sT0}, 1
    s_cmp_eq_u32 s{sT0}, 14
    s_cselect_b32 s{sT0}, 0, s{sT0}
    s_lshl1_add_u32 s{sT1}, s{sG}, 2
    """)
    for c0 in range(0, 14, 4):
        L = []
        for c in range(c0, min(c0 + 4, 14)):
            L += [f"s_add_u32 s{sIdx[c]}, s{sT0}, s{sT1}", f"s_and_b32 s{sIdx[c]}, s{sIdx[c]}, 15", f"s_lshl_b32 s{sIdx[c]}, s{sIdx[c]}, 13",
                  f"s_add_u32 s{sT0}, s{sT0}, 1", f"s_cmp_eq_u32 s{sT0}, 14", f"s_cselect_b32 s{sT0}, 0, s{sT0}"]
        fill.append(L)
    XS, XM = 128, 2047
    nfill = len(fill)
    def take_vm(lst, n=1):
        out = []
        while lst and n:
            x = lst.pop(0); out.append(x)
            if isinstance(x, I) and x.kind == "vm": n -= 1
        return out
    for n in range(8):
        if n % 4 == 0: e(f"s_add_u32 m0, s{sT2}, {1024*n}\ns_nop 0")
        e(kvx[n])
        if n >= opt.nofill: e(fill.pop(0))
    w0 = dmaW(0)
    for n in range(opt.w0n): e(w0[1][n]); e(fill.pop(0))
    while len(fill) > nfill - 2: e(fill.pop(0))
    e(VM(f"buffer_load_dword v143, off, {sr(WS,4)}, s{sMode} sc1", "kv"))
    for n in range(16 - opt.wf):
        if opt.walk and n == opt.wpos:
            while len(fill) > 23 - 9: e(fill.pop(0))
            e(["s_mov_b64 exec, 0"] + sum([[f"s_cmp_eq_u32 s{sW}, {w}", f"s_cbranch_scc1 Lpad{w}"] for w in range(3)], []) + ["s_branch Lpad3", "Lwalk_ret:", "s_mov_b64 exec, -1"])
        e(kvw1())
        if fill: e(fill.pop(0))
        if len(fill) > 16 - opt.wf - n - 1: e(fill.pop(0))
    print("fillers left", len(fill), file=sys.stderr) if fill else None
    while fill: e(fill.pop(0))
    if opt.fine: e("s_memrealtime s[10:11]")
    later = w0[0] + ["s_nop 0"] + w0[1][opt.w0n:] + w0[2] + burst(dmaX(0, XS, XM)) + burst(dmaW(1)) + burst(dmaX(1, XS, XM)) + burst(dmaW(2))
    e(take_vm(later, opt.pre1))
    if opt.stamps:
        e(f"s_lshl2_add_u32 s8, s2, s{sW}\ns_lshl_b32 s8, s8, 8\ns_add_u32 s8, s8, {WS_ST}")
        opt.names.append("entry"); g.nst += 1
        if opt.dbg:
            e(g.srd(12, 26, 256))
            e(f"""
            s_or_b32 s9, s{sW}, s{sJ}
            s_cmp_lg_u32 s9, 0
            s_cbranch_scc1 Lnost0
            v_not_b32 v195, s3
            s_mov_b64 exec, 1
            buffer_atomic_umax v195, off, s[12:15], 0
            s_mov_b64 exec, -1
            Lnost0:
            """)
        else:
            e(f"v_mov_b32 v195, s3\nbuffer_store_dword v195, off, {sr(WS,4)}, s8")
            if opt.fine:
                opt.names.append("kv issued"); g.nst += 1
                e(f"s_waitcnt lgkmcnt(0)\nv_mov_b32 v195, s10\nbuffer_store_dword v195, off, {sr(WS,4)}, s8 offset:8")
    e(Wt(vm="kv"))
    g.stamp("kv landed")
    tagst = [f"v_mov_b32 v195, s{sTAG}", f"buffer_store_dword v195, off, {sr(WS,4)}, s8 offset:{8*27}"] if opt.stamps else []
    for ks in range(8):
        e(LG(f"ds_read_b128 {vr(4*ks,4)}, v{136+(ks&3)} offset:{256*(ks>>2)}", f"k{ks}"))
        for b in range(2):
            for ee in range(2):
                e(LG(f"ds_read_b64_tr_b16 {vr(64+8*ks+4*b+2*ee,2)}, v{140+b} offset:{2048*ks+256*ee}", f"k{ks}"))
        if ks == 0: e(f"v_readfirstlane_b32 s{sTAG}, v143")
        if ks == 1: e(f"s_mul_i32 s{sTAG}, s{sTAG}, 0x9e3779b1\ns_add_u32 s{sTAG}, s{sTAG}, 0x7f4a7c15")
        e(take_vm(later))
    e(Wt(lg="k4"))
    e(f"s_bitcmp1_b32 s{sG}, 0\ns_cbranch_scc1 Lkv_v")
    mid = [take_vm(later) for _ in range(4)]
    for var in range(2):
        if var == 1: e("Lkv_v:")
        for ks in range(8):
            if ks == 5: e("s_waitcnt lgkmcnt(0)")
            for b in range(2):
                w = vr(64 + 8 * ks + 4 * b, 4); x = vr(4 * ks, 4); d = vr(32 + 4 * b, 4)
                c = "0" if ks == 0 else d
                e(f"v_mfma_f32_16x16x32_bf16 {d}, {w}, {x}, {c}" if var == 0 else f"v_mfma_f32_16x16x32_bf16 {d}, {x}, {w}, {c}")
            if ks % 2 == 0: e(mid[ks >> 1] if var == 0 else [x.t if isinstance(x, I) else x for x in mid[ks >> 1]])
        if var == 0: e("s_branch Lkv_j")
    e("Lkv_j:")
    e(Wt(lg="all"))
    e(f"""
    s_cmp_eq_u32 s{sW}, 3
    s_cselect_b32 s{sT1}, s{sT2}, s{sT3}
    v_add_u32 v13, s{sT1}, v{v16}
    """)
    e(later); later = []
    e(f"""
    s_cmp_eq_u32 s{sW}, 0
    s_cbranch_scc1 Lkv_nw
    s_nop 3
    ds_write_b128 v13, v[32:35]
    ds_write_b128 v13, v[36:39] offset:1024
    s_waitcnt lgkmcnt(0)
    Lkv_nw:
    s_barrier
    s_cmp_lg_u32 s{sW}, 0
    s_cbranch_scc1 Lkv_done
    v_add_u32 v13, {80*1024}, v{v16}
    v_add_u32 v14, {136*1024}, v{v16}
    ds_read_b128 v[40:43], v13
    ds_read_b128 v[44:47], v13 offset:1024
    ds_read_b128 v[48:51], v14
    ds_read_b128 v[52:55], v14 offset:1024
    ds_read_b128 v[56:59], v14 offset:8192
    ds_read_b128 v[60:63], v14 offset:9216
    s_lshr_b32 s{sT1}, s{sG}, 2
    s_lshl1_add_u32 s{sT0}, s{sRB}, s{sT1}
    s_lshl_b32 s{sT0}, s{sT0}, 12
    s_bfe_u32 s{sT1}, s{sG}, 0x10001
    s_lshl_b32 s{sT2}, s{sT1}, 8
    s_lshl_b32 s{sT1}, s{sT1}, 10
    s_add_u32 s{sT1}, s{sT1}, 2048
    s_bitcmp1_b32 s{sG}, 0
    s_cselect_b32 s{sT1}, s{sT1}, s{sT2}
    s_cselect_b32 s{sT2}, 1.0, {hex(f2u(1.4426950408889634/32**0.5))}
    s_mov_b32 s{sT3}, s{sT2}
    s_add_u32 s{sT0}, s{sT0}, s{sT1}
    """)
    for p in range(3):
        e(f"s_waitcnt lgkmcnt({4-2*p})")
        for i in range(4):
            e(f"v_pk_add_f32 {vr(32+2*i,2)}, {vr(32+2*i,2)}, {vr(40+8*p+2*i,2)}")
    for i in range(4): e(f"v_pk_mul_f32 {vr(32+2*i,2)}, {vr(32+2*i,2)}, s[{sT2}:{sT3}]")
    for i in range(4): e(f"v_cvt_pk_bf16_f32 v{40+i}, v{32+2*i}, v{33+2*i}")
    e(f"""
    s_bitcmp1_b32 s{sG}, 0
    s_cbranch_scc0 Lkv_st
    v_permlane16_swap_b32 v40, v42
    v_permlane16_swap_b32 v41, v43
    Lkv_st:
    buffer_store_dwordx4 v[40:43], v142, {sr(WS,4)}, s{sT0} offen sc1
    Lkv_done:
    """)
    LD = opt.lead
    pl = [dmaX(2, XS, XM)]
    for c in range(3, LD): pl += [dmaW(c), dmaX(c, XS, XM)]
    lead = []
    for p in pl: lead += burst(p)
    e(take_vm(lead, max(0, 2 + 6 * (LD - 3) - 3)))
    e(tagst)
    g.stamp("kv done")
    gaps = {-1: lead}
    g.tail += ["Lkvflag:", "KVFLAGWAIT"] + g.flag(56, sFlKV) + ["s_branch Lkvflag_b"]
    gaps.setdefault(opt.fgap, []).extend([f"s_cmp_eq_u32 s{sW}, 0", "s_cbranch_scc1 Lkvflag", "Lkvflag_b:"])
    init = [f"v_mov_b64 {vr(i,2)}, 0" for i in range(O[0], Lr[1] + 4, 2)]
    init += [f"v_mov_b32 v{IDX}, 0xdddddddd", "v_mov_b32 v60, 0x3f803f80", f"v_and_b32 v61, 7, v{vL}", "v_cmp_eq_u32 vcc, 0, v61",
             "v_cmp_eq_u32 s[10:11], 4, v61", "s_nop 1"]
    init += [f"v_cndmask_b32 v{ONES}, 0, v60, vcc", f"v_cndmask_b32 v{ONES+1}, 0, v60, vcc",
             f"v_cndmask_b32 v{ONES+2}, 0, v60, s[10:11]", f"v_cndmask_b32 v{ONES+3}, 0, v60, s[10:11]"]
    for n, x in enumerate(init): gaps.setdefault(18 + n, []).append(x)
    kvpoll = f"buffer_load_dwordx4 v[56:59], v{v16}, {sr(WS,4)}, s{sT5} offen sc1"
    if opt.pf2:
        fill2 = ["s_getpc_b64 s[8:9]", "Lpc2:", "s_and_b32 s9, s9, 0xffff", "s_mov_b32 s10, Lcode_end-Lpc2", "s_mov_b32 s11, 0x20000",
                 f"s_lshl2_add_u32 s12, s{sJ}, s{sW}", "s_lshl_b32 s12, s12, 10",
                 VM(f"buffer_load_dwordx4 {vr(vDummy,4)}, v{v16}, s[8:11], s12 offen")]
        gaps.setdefault(opt.pf2, []).extend(fill2)
    b0 = opt.kvb
    gaps.setdefault(8 * b0 - 4 - opt.ppos, []).extend([f"s_mov_b32 s{sT5}, {FL_KV}", VM(kvpoll, "kvpoll")])
    if opt.fine:
        gaps.setdefault(5, []).extend(g.stampl("q c0"))
        gaps.setdefault(45, []).extend(g.stampl("q c5"))
        gaps.setdefault(8 * b0 - 2, []).extend(g.stampl("q prechk"))
    gaps.setdefault(8 * b0 - 1, []).extend([Wt(vm="kvpoll")] + g.check(4, 56, kvpoll) + (g.stampl("q postchk") if opt.fine else []))
    halves = [(0, 0), (0, 1), (1, 0), (1, 1), (2, 0), (2, 1), (3, 0), (3, 1)]
    ab = {c: [dmaW(c + LD), dmaX(c + LD, XS, XM)] for c in range(16 - LD)}
    for i in range(opt.nkv):
        ab.setdefault(max(b0, 11 + i), []).append(dmaKV(*halves.pop(0)))
    for i in range(opt.walk, 128, 3 * opt.walk) if opt.walk else []: gaps.setdefault(i | 1, []).extend(g.pad())
    def kvaddr(T, frag):
        a = KB[(T >> 3) % 4] + (T & 7) * 4096 + frag * 1024
        return (vKlo, a) if a < 65536 else (vKhi, a - 65536)
    def rdKV(dst, T, frag, tag):
        r, o = kvaddr(T, frag); return LG(f"ds_read_b128 {vr(dst,4)}, v{r} offset:{o}", tag)
    pre_rd = [rdKV(K[t] + 4 * k, t, k, f"pk{t}") for t in range(2) for k in range(2)] + [rdKV(V[0] + 4 * k, 0, 2 + k, "pv") for k in range(2)]
    for i in range(3): gaps.setdefault(121 + i, []).extend(pre_rd[2 * i:2 * i + 2])
    rest = gemm(g, "q", lambda c: ((vA + (c % 6) // 3, vA2 + (c % 6) // 3), (c % 3) * 16384), lambda c: (vB, (c % 6) * 8192, (0, 1024, 2048, 3072)),
                {**{c: [f"W{c}", f"X{c}"] for c in range(16)}, 16: ["KV0a"]}, ab, gaps)
    g.stamp("q gemm done")
    g.tail += ["Lepoch:", f"s_mov_b32 s{sT0}, {FL_EPOCH}"] + g.flag(56, sT0) + ["s_branch Lepoch_b"]
    e(rest)
    e(f"s_or_b32 s{sT0}, s2, s{sW}\ns_cbranch_scc0 Lepoch\nLepoch_b:")
    if opt.exp == 4:
        e(f"s_getpc_b64 s[{sT2}:{sT3}]\ns_lshl_b32 s{sT0}, s{sW}, 13\nv_add_u32 v60, s{sT0}, v{v16}\nv_add_u32 v61, 4096, v60")
        for n in range(8): e(f"global_load_dwordx4 {vr(vDummy,4)}, v{60+(n>>2)}, s[{sT2}:{sT3}] offset:{1024*(n&3)}")
    def maxtree(dst, s, first):
        L = []
        if first:
            L.append(f"v_max3_f32 v{dst}, v{s}, v{s+1}, v{s+2}")
            L += [f"v_max3_f32 v{dst}, v{dst}, v{s+i}, v{s+i+1}" for i in range(3, 15, 2)]
            L.append(f"v_max_f32 v{dst}, v{dst}, v{s+15}")
        else:
            L += [f"v_max3_f32 v{dst}, v{dst}, v{s+i}, v{s+i+1}" for i in range(0, 16, 2)]
        return L
    def tabload(dst, n, tag, o0=-4096):
        return [VM(f"global_load_dwordx4 {dst(m)}, v{v16}, s[{gT_}:{gT_+1}] offset:{o0+1024*m}", tag) for m in range(n)]
    p1 = []
    if not opt.nofft:
        e(f"s_mov_b32 m0, s{sMisc}\ns_nop {opt.pnop}")
        for n in range(4):
            p1 += [[VM(f"buffer_load_dwordx4 v{vP1}, {sr(XA,4)}, s{sF1} offen offset:{1024*n} {opt.d1_sc} lds", "d1")] +
                   ([f"s_add_u32 s{sF1}, s{sF1}, {(1024 if opt.d1nat else 512)*1024-1024}"] if n < 3 else []), []]
    else: e("s_nop 7")
    nx = lambda: p1.pop(0) if p1 else []
    def qcv(qb):
        L = []
        for m in range(2):
            for nn in range(2):
                d = 4 * (2 * (2 * qb + nn) + m)
                L += [f"v_cvt_pk_bf16_f32 v{Q[qb]+4*m+2*nn+i}, v{d+2*i}, v{d+2*i+1}" for i in range(2)]
        return L + [f"v_permlane16_swap_b32 v{Q[qb]+4*m+i}, v{Q[qb]+4*m+2+i}" for m in range(2) for i in range(2)]
    c0_, c1_ = qcv(0), qcv(1)
    def qk0(t, qb, k, s):
        return f"v_mfma_f32_32x32x16_bf16 {vr(s,16)}, {vr(K[t]+4*k,4)}, {vr(Q[qb]+4*k,4)}, {vr(s,16) if k else 0}"
    tA = maxtree(vT0, S[2], True); tB = maxtree(vT0, S[3], False); tC = maxtree(vT1, S[0], True); tD = maxtree(vT1, S[1], False)
    e(c0_ + nx() + [Wt(lg="pk0", must=True), "s_nop 0", qk0(0, 0, 0, S[2])] + c1_[:6] + nx() + [qk0(0, 0, 1, S[2])] + c1_[6:] + nx())
    e([Wt(lg="pk1"), qk0(1, 0, 0, S[3])] + nx() + [qk0(1, 0, 1, S[3])] + nx() + [qk0(0, 1, 0, S[0])] + nx() + ["s_nop 3"] + tA[:2])
    e([qk0(0, 1, 1, S[0])] + tA[2:] + [qk0(1, 1, 0, S[1])] + ["s_nop 0"] + nx() + tB[:4] + [qk0(1, 1, 1, S[1])] + tB[4:] + tC + tD)
    def finish_max(off, mid):
        lit = hex(f2u(-off)) if off else 0
        e(f"""
        v_mov_b32 v{vT2}, v{vT0}
        v_mov_b32 v{vT3}, v{vT1}
        s_nop 0
        v_permlane32_swap_b32 v{vT0}, v{vT2}
        v_permlane32_swap_b32 v{vT1}, v{vT3}
        v_max_f32 v{vT0}, v{vT0}, v{vT2}
        v_max_f32 v{vT1}, v{vT1}, v{vT3}
        v_sub_f32 v{M[0]}, {lit}, v{vT0}
        v_sub_f32 v{M[0]+1}, {lit}, v{vT0}
        """)
        for i in range(2, 16, 2): e(f"v_mov_b64 {vr(M[0]+i,2)}, {vr(M[0],2)}")
        e(f"v_sub_f32 v{M[1]}, {lit}, v{vT1}\nv_sub_f32 v{M[1]+1}, {lit}, v{vT1}")
        e(mid)
        for i in range(2, 16, 2): e(f"v_mov_b64 {vr(M[1]+i,2)}, {vr(M[1],2)}")
    finish_max(opt.off, [f"v_mfma_f32_32x32x16_bf16 {vr(S[0],16)}, {vr(K[0],4)}, {vr(Q[0],4)}, {vr(M[0],16)}",
                         f"v_mfma_f32_32x32x16_bf16 {vr(S[0],16)}, {vr(K[0]+4,4)}, {vr(Q[0]+4,4)}, {vr(S[0],16)}"])
    e(base(pKV[0], WS, f"s{sKV}") + base(pKV[1], WS, f"s{sKV2}") + base(gT_, TBL, TB.OFF_T1 + 4096))
    e(Wt(vm=["KV0b", "KV1a"])); e("s_barrier")
    g.stamp("attn start"); g.stamp("attn start", True)
    sl = {k: {} for k in ("q1", "q2", "p1", "p2", "x", "va", "top")}
    def put(kind, n, l): sl[kind].setdefault(n, []).extend(l if isinstance(l, list) else [l])
    later_ = []
    def put_group(grp, n0, kind="p1"):
        pre, ops, post = grp
        put("q2", n0, pre)
        for i, op in enumerate(ops): put(kind, n0 + i, op)
        n1 = n0 + len(ops) - 1
        for i, x in enumerate(post):
            if i < 2: put("p2", n1, x)
            else: later_.append((n1 + 1, x))
        return n0 + len(ops)
    def fftdata(srd, voff, sreg, step, n0, tag):
        put("q2", n0, f"s_mov_b32 m0, s{sMisc}")
        for n in range(4):
            put("p1", n0 + n, VM(f"buffer_load_dwordx4 v{voff}, {sr(srd,4)}, s{sreg} offen offset:{1024*n} sc1 lds", tag))
            if n < 3: put(*(("p2", n0 + n) if opt.rebal else ("q1", n0 + n + 1)), f"s_add_u32 s{sreg}, s{sreg}, {step}")
    def comp(n0, aT, sst, dtag, ttag, stag):
        put("q2", n0, Wt(vm=dtag)); put("q1", n0 + 4, Wt(vm=ttag))
        for k in range(4):
            for ee in range(2):
                ad = f"v192 offset:{k*1024+ee*256}" if opt.d1nat and dtag == "d1" else f"v{vFB+(k>>1)} offset:{(k&1)*2048+ee*512}"
                put("p2", n0 + k, LG(f"ds_read_b64_tr_b16 {ar(aD+4*k+2*ee,2)}, {ad}", f"{stag}r{k}"))
        for i in range(8):
            k, nb = i >> 1, i & 1; d = vr(vFD + 16 * nb, 16)
            put("q2", n0 + 4 + i, Wt(lg=f"{stag}r{k}"))
            put("x", n0 + 4 + i, f"v_mfma_f32_32x32x16_bf16 {d}, {ar(aD+4*k,4)}, {ar(aT+16*nb+4*k,4)}, {'0' if k==0 else d}")
        for q in range(4):
            nb, i = q >> 1, q & 1
            for m_ in range(4 * i, 4 * i + 4):
                put("va", n0 + 13 + q, f"v_cvt_pk_bf16_f32 v{vFD+16*nb+m_}, v{vFD+16*nb+2*m_}, v{vFD+16*nb+2*m_+1}")
            put("p1", n0 + 14 + q, VM(f"buffer_store_dwordx4 {vr(vFD+16*nb+4*i,4)}, v{v16}, {sr(WS,4)}, s{sst} offen offset:{1024*q} sc1", stag))
    def putflag(n, sfl, stag):
        put("q2", n, Wt(vm=stag)); put("va", n, f"v_mov_b32 v{vT0}, s{sTAG}")
        put("p2", n, VM(f"buffer_store_dword v{vT0}, v{vOne}, {sr(WS,4)}, s{sfl} offen sc1"))
    def putpoll(n, nchk, spo, tag):
        ld = f"buffer_load_dword v{vPoll}, v{vP4}, {sr(WS,4)}, s{spo} offen sc1"
        put("p2", n, VM(ld, tag))
        put("q1", nchk, Wt(vm=tag)); put("top2" if False else "q2", nchk, g.check(1, vPoll, ld))
    early = {(1, 1): 0, (2, 0): 4}
    t1slot = "p2" if (1, 1) in halves else "p1"
    n = 8
    for hv in halves:
        n = put_group(gKV(*hv), n)
    assert n == 20
    for (ch, hf), n in {(4, 0): 20, (4, 1): 30, (5, 0): 34, (5, 1): 38, (6, 0): 48, (6, 1): 52, (7, 0): 64, (7, 1): 68}.items():
        put_group(gKV(ch, hf), n)
    put("q1", 70, [f"s_mov_b32 s{GW}, s22"]); put("q1", 71, [f"s_and_b32 s{GW+1}, s23, 0xffff"])
    for c, n in ((2, 84), (3, 88), (0, 92), (1, 96), (4, 100), (5, 120), (6, 124)):
        pre, ops, _ = dmaWo(c, ASL[c])
        ops = [VM(f"global_load_lds_dwordx4 v{vOW+k}, s[{gW_}:{gW_+1}] offset:{1024*k}", ops[k].tag) for k in range(4)]
        put("q2", n - 1, pre[1]); put("p2", n - 1, base(gW_, GW, f"s{sOffW}")); put_group(([pre[0]], ops, []), n)
    if not opt.nofft:
        for m, op in enumerate(tabload(lambda m: ar(aT1 + 4 * m, 4), 8, "t1")): put("p1", m, op)
        comp(12, aT1, sSt1, "d1", "t1", "s1")
        putflag(37, sFl1, "s1")
        put("q2", 21, f"s_add_u32 s{sTab2}, s{sTab2}, 4096"); put("q2", 22, base(gT_, TBL, f"s{sTab2}"))
        for m, op in enumerate(tabload(lambda m: ar(aT2 + 4 * m, 4), 8, "t2")): put("p1", 24 + m if m < 2 else 40 + m, op)
        putpoll(51, 55, sPo1, "po1")
        fftdata(WS, vZ, sF2, 32768 - 1024, 56, "d2")
        put("q2", 53, base(gT_, TBL, TB.OFF_T3 + 4096))
        for m, op in enumerate(tabload(lambda m: ar(aT3 + 4 * m, 4), 6, "t3")): put("p1", 60 + m if m < 4 else 68 + m, op)
        comp(66, aT2, sSt2, "d2", "t2", "s2")
        putflag(91, sFl2, "s2")
        put("p2", 73, base(gT_, TBL, TB.OFF_TW + 4096))
        for m, op in enumerate(tabload(lambda m: ar(aTW + 4 * m, 4), 8, "t3")): put("p1", 74 + m if m < 6 else 104 + m, op)
        put("p2", 111, base(gT_, TBL, TB.OFF_TX))
        put("p1", 112, tabload(lambda m: ar(aTX, 4), 1, "t3", 0))
        putpoll(104, 115, sPo2, "po2")
        fftdata(WS, vZ, sF3, 32768 - 1024, 116, "d3")
    for n, x in later_:
        k, m = next((k, m) for m in range(n, n + 3) for k in ("q2", "p2") if not sl[k].get(m))
        put(k, m, x)
    if opt.rebal:
        for n in sorted(sl["q1"]):
            for x in [x for x in sl["q1"][n] if isinstance(x, str)]:
                for k, m in (("p2", n - 1), ("q2", n - 1), ("p2", n - 2), ("q2", n - 2)):
                    if (k, m) == ("p2", n - 1) if f"s{sOffW}," in x else not sl[k].get(m):
                        sl["q1"][n].remove(x); put(k, m, x); break
    for k in ("p1",):
        for n_, l in sl[k].items(): assert len(l) <= 1, (k, n_, l)
    if opt.loop2: e("s_mov_b32 s3, 0\nLpass:")
    for n in range(128):
        if opt.loop2 and n == 64:
            e("s_add_u32 s3, s3, 1\ns_cmp_lt_u32 s3, 2\ns_cbranch_scc1 Lpass\ns_branch Lpass_end")
        X = n & 1; Y = 1 - X
        se, sp, sq = S[n % 4], S[(n - 1) % 4], S[(n + 1) % 4]
        tq = ((n + 1) // 2) % 2; tv = ((n - 1) // 2) % 2
        E = [f"v_exp_f32 v{se+i}, v{se+i}" for i in range(16)]
        Q1 = f"v_mfma_f32_32x32x16_bf16 {vr(sq,16)}, {vr(K[tq],4)}, {vr(Q[Y],4)}, {vr(M[Y],16)}"
        Q2 = f"v_mfma_f32_32x32x16_bf16 {vr(sq,16)}, {vr(K[tq]+4,4)}, {vr(Q[Y]+4,4)}, {vr(sq,16)}"
        P1 = f"v_smfmac_f32_32x32x32_bf16 {vr(O[Y],16)}, {vr(V[tv],4)}, {vr(sp,8)}, v{IDX}"
        P2 = f"v_smfmac_f32_32x32x32_bf16 {vr(O[Y],16)}, {vr(V[tv]+4,4)}, {vr(sp+8,8)}, v{IDX}"
        L1 = f"v_smfmac_f32_16x16x64_bf16 {vr(Lr[Y],4)}, {vr(ONES,4)}, {vr(sp,8)}, v{IDX}"
        L2 = f"v_smfmac_f32_16x16x64_bf16 {vr(Lr[Y],4)}, {vr(ONES,4)}, {vr(sp+8,8)}, v{IDX}"
        if n == 0: P1 = P2 = L1 = L2 = None
        if n == 127: Q1 = Q2 = None
        T = n >> 1
        if X == 0: D = [rdKV(K[tq] + 4 * k, T + 2, k, f"h{n}") for k in range(2)] if T + 2 < 64 else [None, None]
        else: D = [rdKV(V[1 - tv] + 4 * k, T + 1, 2 + k, f"h{n}") for k in range(2)] if T + 1 < 64 else [None, None]
        bw = None
        if n % 16 == 0 and n:
            c = n >> 4
            bw = [f"KV{c}b", f"KV{c+1}a"] + ([f"oW{k}" for k in range(5)] if c == 7 else [])
            if opt.bpos == 0: e(Wt(vm=bw)); e("s_barrier")
            elif opt.bpos == 2: sl["q2"][n] = ["s_barrier"] + sl["q2"].get(n, [])
            else: sl["q1"][n] = ["s_barrier"] + sl["q1"].get(n, [])
        if opt.afine and n % 8 == 0 and n: g.stamp(f"a{n}")
        if opt.walk and n % opt.walk == 0: put("q2", n, g.pad())
        w = Wt(lg=[f"h{n-2}", "pv"], vm=bw if opt.bpos else None)
        gq = lambda k: sl[k].get(n, [])
        xm = gq("x")
        if xm: a, b, c_, d_ = 8, 9, 12, 13
        else: a, b, c_, d_ = 9, 11, 14, 16
        e([Q1, w] + gq("q1") + E[0:3] + [Q2] + gq("q2") + E[3:6] + [P1] + gq("p1") + E[6:a] + [L1, D[0]] + E[a:b] + gq("va") +
          [P2] + gq("p2") + E[b:c_] + [L2, D[1]] + E[c_:d_] + xm + E[d_:16])
    e(sl["q1"].get(128, []))
    if opt.loop2: e("Lpass_end:")
    e(f"""
    v_rcp_f32 v{vT0}, v{Lr[0]}
    v_smfmac_f32_16x16x64_bf16 {vr(Lr[1],4)}, {vr(ONES,4)}, {vr(S[3],8)}, v{IDX}
    v_smfmac_f32_16x16x64_bf16 {vr(Lr[1],4)}, {vr(ONES,4)}, {vr(S[3]+8,8)}, v{IDX}
    v_smfmac_f32_32x32x32_bf16 {vr(O[1],16)}, {vr(V[1],4)}, {vr(S[3],8)}, v{IDX}
    v_smfmac_f32_32x32x32_bf16 {vr(O[1],16)}, {vr(V[1]+4,4)}, {vr(S[3]+8,8)}, v{IDX}
    s_mov_b32 s{sMode}, 0
    """.replace(f"v_rcp_f32 v{vT0}, v{Lr[0]}\n", "s_nop 0\n"))
    g.stamp("attn end"); g.stamp("attn end", True)
    e("s_nop 2\nLa_norm:")
    for qb in range(2):
        e(f"v_rcp_f32 v{2*qb}, v{Lr[qb]}\ns_nop 0\nv_mov_b32 v{2*qb+1}, v{2*qb}")
        for i in range(8): e(f"v_pk_mul_f32 {vr(O[qb]+2*i,2)}, {vr(O[qb]+2*i,2)}, {vr(2*qb,2)}")
        for i in range(8): e(f"v_cvt_pk_bf16_f32 v{8+8*qb+i}, v{O[qb]+2*i}, v{O[qb]+2*i+1}")
        for k in range(2):
            e(VM(f"buffer_store_dwordx4 {vr(8+8*qb+4*k,4)}, v{v16}, {sr(WS,4)}, s{sOst} offen offset:{2048*qb+1024*k} sc1", "ost"))
    for qb in range(2):
        e(f"v_maximum3_f32 v{4+qb}, abs(v{O[qb]}), abs(v{O[qb]+1}), abs(v{O[qb]+2})")
        for i in range(3, 15, 2): e(f"v_maximum3_f32 v{4+qb}, v{4+qb}, abs(v{O[qb]+i}), abs(v{O[qb]+i+1})")
        e(f"v_maximum3_f32 v{4+qb}, v{4+qb}, abs(v{O[qb]+15}), v{4+qb}")
    e(f"""
    v_mul_f32 v6, v4, v{Lr[0]}
    v_mul_f32 v7, v5, v{Lr[1]}
    v_maximum3_f32 v4, v4, v5, v{Lr[0]}
    v_min_f32 v6, v6, v7
    v_maximum3_f32 v4, v4, v{Lr[1]}, v4
    s_mov_b32 s{sT0}, {hex(f2u(2.0**-108))}
    v_cmp_nge_f32 s[10:11], v6, s{sT0}
    s_mov_b32 s{sT0}, {hex(f2u(2.0**110))}
    v_cmp_nlt_f32 vcc, v4, s{sT0}
    s_or_b64 vcc, vcc, s[10:11]
    """)
    if opt.force_fb: e("s_nop 1\ns_mov_b64 vcc, -1")
    e(f"""
    s_cmp_eq_u64 vcc, 0
    s_cselect_b32 s{sT0}, 1, s{sMode}
    s_cmp_eq_u32 s{sT0}, 0
    s_cbranch_scc1 Lfb
    """)
    g.stamp("o stored")
    pA = 32; pR = 48; pI = 64; pU = 80; pT = 96; pF = 104; pM = 112; pX = 120; pW = 128
    vAs = 5; vBm = 176; vPO = 7
    p3st = [f"buffer_store_dwordx4 {vr(pF,4)}, v{pX+1}, {sr(OUT,4)}, s{sF1} offen {opt.p3_sc}",
            f"buffer_store_dwordx4 {vr(pF+4,4)}, v{pX+1}, {sr(OUT,4)}, s{sF1} offen offset:512 {opt.p3_sc}",
            f"buffer_store_dwordx4 {vr(pM,4)}, v{pX+2}, {sr(OUT,4)}, s{sF2} offen offset:512 {opt.p3_sc}",
            f"buffer_store_dwordx4 {vr(pM+4,4)}, v{pX+2}, {sr(OUT,4)}, s{sF2} offen {opt.p3_sc}"]
    zero_im = [f"v_mov_b64 {vr(pA+8+i,2)}, 0" for i in range(0, 8, 2)]
    opoll = f"buffer_load_dword v{vPoll}, v{vPO}, {sr(WS,4)}, s{sPoO} offen sc1"
    def pollissue(pos):
        if pos != opt.ap: return []
        g.tail += ["Lqi:", opoll, "s_branch Lqi_b"]
        return [f"s_cmp_eq_u32 s{sW}, 3", "s_cbranch_scc1 Lqi", "Lqi_b:"]
    def p3(main):
        L = []; a = L.append
        T = (lambda t, tag: LG(t, tag)) if main else (lambda t, tag: t)
        for k in range(4):
            for ee in range(2):
                a(T(f"ds_read_b64_tr_b16 {vr(pA+4*k+2*ee,2)}, v{vFB+(k>>1)} offset:{(k&1)*2048+ee*512}", f"b{k}"))
        stage = []; stage2 = []; wl = []
        if main:
            L += [f"s_sub_u32 s{sF2}, 2048, s{sRow}", f"s_and_b32 s{sF2}, s{sF2}, 2047", f"s_lshl_b32 s{sF2}, s{sF2}, 12",
                  f"s_lshl_b32 s{sF1}, s{sRow}, 12", f"v_add_u32 v{vAs}, 131072, v{vA}", f"v_add_u32 v{vAs+1}, 131072, v{vA2}",
                  f"v_and_b32 v{vPO}, 7, v{vL}", f"v_lshl_or_b32 v{vPO}, v{vPO}, 2, 1", f"v_lshlrev_b32 v{vPO}, {opt.fsp}, v{vPO}", f"s_cmp_eq_u32 s{sRow}, 0", "s_cbranch_scc1 Lp3_real", "Lp3_mm:"]
            for c in range(7):
                hi = ASL[c] // 49152
                r, o = ((vAs, vAs + 1), 0) if hi > 1 else ((vA + hi, vA2 + hi), ASL[c] % 49152)
                for u in range(2):
                    for m in range(2):
                        for ee in range(2):
                            stage.append(LG(f"ds_read_b64_tr_b16 {ar(aW(c)+8*u+4*m+2*ee,2)}, v{r[m]} offset:{o+u*8192+ee*1024}", "stg" if c < 5 else "stg2"))
            stage2 = stage[40:]; stage = stage[:40]
            for c in opt.win: wl += burst(dmaWo(c, WSL[c] * 16384))
        else: L += ["s_waitcnt lgkmcnt(0)"] + zero_im + ["s_nop 1"]
        acc = [f"v_accvgpr_read_b32 v{pW+i}, a{aTW+i}" for i in range(32)] + [f"v_accvgpr_read_b32 v{pX+i}, a{aTX+i}" for i in range(3)] if main else []
        for k in range(4):
            if main: a(Wt(lg=f"b{k}"))
            for nb in range(2):
                d = vr((pR, pI)[nb], 16)
                tb = aT3 + (4 * k if nb == 0 else (16 + 4 * k if k < 2 else 4 * (k - 2)))
                a(f"v_mfma_f32_32x32x16_bf16 {d}, {vr(pA+4*k,4)}, {ar(tb,4)}, {'0' if k==0 else d}")
                for _ in range(5):
                    if stage: a(stage.pop(0))
                for _ in range(3):
                    if acc: a(acc.pop(0))
        if main:
            L += acc + g.stampl("beta") + [Wt(vm="ost", lg="stg"), "s_barrier", f"s_cmp_lg_u32 s{sW}, 1", "s_cbranch_scc1 Lnoofl"] + g.flag(0, sFlO) + ["Lnoofl:"] + g.stampl("oflag")
        else: a("s_nop 11")
        for i in range(8):
            r, im, c, s_ = pR + 2 * i, pI + 2 * i, pW + 2 * i, pW + 16 + 2 * i
            L += stage2[2 * i:2 * i + 2] + (take_vm(wl) if i % 2 else []) + [
                f"v_pk_mul_f32 {vr(pT,2)}, {vr(r,2)}, {vr(c,2)}", f"v_pk_mul_f32 {vr(pT+2,2)}, {vr(im,2)}, {vr(c,2)}",
                f"v_pk_fma_f32 {vr(pT,2)}, {vr(im,2)}, {vr(s_,2)}, {vr(pT,2)}",
                f"v_pk_fma_f32 {vr(pT+2,2)}, {vr(r,2)}, {vr(s_,2)}, {vr(pT+2,2)} neg_lo:[0,1,0] neg_hi:[0,1,0]",
                f"v_cvt_pk_bf16_f32 v{pU+i}, v{pT}, v{pT+1}", f"v_cvt_pk_bf16_f32 v{pU+8+i}, v{pT+2}, v{pT+3}"]
        a("s_nop 0")
        if main: L += pollissue(1)
        for k in range(4):
            a(f"v_mfma_f32_32x32x16_bf16 {vr(pR,16)}, {vr(pU+4*k,4)}, {ar(aT3+4*k,4)}, {'0' if k==0 else vr(pR,16)}")
            L += take_vm(wl)
        if main:
            L += [f"s_lshl_b32 s{sT2}, s{sRB}, 6", f"s_add_u32 s{sT2}, s{sT2}, s{sW}", f"s_lshl_b32 s{sT2}, s{sT2}, 11",
                  f"s_add_u32 s{sT2}, s{sT2}, {WS_O}", f"s_sub_u32 s{sXb}, s{sXb}, {L_X-L_XO}", f"v_add_u32 v{vOX}, s{sT2}, v{v16}",
                  f"v_and_b32 v{vB}, 15, v{vL}", f"v_bfe_u32 v{vBm}, v{vL}, 4, 1", f"v_lshlrev_b32 v{vB}, 4, v{vB}", f"v_lshl_or_b32 v{vB}, v{vBm}, 10, v{vB}",
                  f"v_lshrrev_b32 v{vBm}, 5, v{vL}", f"v_lshl_or_b32 v{vB}, v{vBm}, 9, v{vB}", f"v_add_u32 v{vBm}, {L_MISC}, v{vB}",
                  f"v_add_u32 v{vB}, {L_XO}, v{vB}", f"v_add_u32 v{vBm+2}, s{sMisc}, v{v16}",
                  "s_nop 0"] + pollissue(2)
        else: a("s_nop 11")
        a(T(f"ds_bpermute_b32 v{pR+16}, v{pX}, v{pR}", "bp"))
        for m_ in range(8):
            a(f"v_cvt_pk_bf16_f32 v{pF+m_}, v{pR+2*m_}, v{pR+2*m_+1}")
            if m_ % 4 == 3: L += take_vm(wl)
        for m_ in range(1, 8): a(f"v_cvt_pk_bf16_f32 v{pM+m_}, v{pR+16-2*m_}, v{pR+15-2*m_}")
        L += take_vm(wl)
        if main: L += pollissue(3)
        for i in range(4): a(f"v_permlane16_swap_b32 v{pF+i}, v{pF+4+i}")
        L += [Wt(lg="bp") if main else "s_waitcnt lgkmcnt(0)", f"v_cvt_pk_bf16_f32 v{pM}, v{pR+16}, v{pR+15}", "s_nop 1"]
        for i in range(4): a(f"v_permlane16_swap_b32 v{pM+i}, v{pM+4+i}")
        return L + wl
    e(g.pad())
    e(Wt(vm=["d3", "t3"]))
    e(p3(True))
    e(g.pad())
    g.tail += ["Lp3_real:", "s_waitcnt lgkmcnt(0)"] + zero_im + [f"v_xor_b32 v{vFB}, 16, v{vFB}", "s_branch Lp3_mm"]
    g.tail += ["Lp3_again:"] + p3st + [f"s_mov_b32 s{sF1}, {1024<<12}", f"s_mov_b32 s{sF2}, {1024<<12}"] + p3(False) + ["s_branch Lp3_end"]
    e(f"s_cmp_eq_u32 s{sRow}, 0\ns_cbranch_scc1 Lp3_again\nLp3_end:")
    for n in range(4): e(LG(f"ds_write_b128 v{vBm+2}, {vr(8+4*n,4)} offset:{1024*n}", "own"))
    epi = f"""
    v_and_b32 v56, 15, v{vL}
    v_lshrrev_b32 v57, 5, v{vL}
    v_bfe_u32 v58, v{vL}, 4, 1
    v_lshl_or_b32 v57, v58, 1, v57
    v_bfe_u32 v58, v{vL}, 1, 2
    v_xor_b32 v57, v57, v58
    v_lshlrev_b32 v57, 4, v57
    v_lshl_or_b32 v56, v56, 6, v57
    v_add_u32 v56, s{sWb}, v56
    v_lshrrev_b32 v58, 2, v{vL}
    v_bfe_u32 v59, v{vL}, 3, 2
    v_and_b32 v60, 3, v{vL}
    v_xor_b32 v59, v59, v60
    v_lshlrev_b32 v59, 4, v59
    v_lshl_or_b32 v59, v58, 6, v59
    v_add_u32 v59, s{sWb}, v59
    v_lshlrev_b32 v60, 4, v60
    v_lshl_or_b32 v58, v58, 12, v60
    s_lshl_b32 s{sT0}, s{sRB}, 18
    s_lshl2_add_u32 s{sT1}, s{sG}, s{sW}
    s_lshl_b32 s{sT1}, s{sT1}, 6
    s_add_u32 s{sT0}, s{sT0}, s{sT1}
    s_add_u32 s{sT0}, s{sT0}, 2048
    s_add_u32 s{sT1}, s{sT0}, 0x10000
    s_add_u32 s{sT2}, s{sT0}, 0x20000
    s_add_u32 s{sT3}, s{sT0}, 0x30000
    """.strip().split("\n")
    if opt.wgepi:
        epi = f"""
        v_and_b32 v56, 15, v{vL}
        v_lshrrev_b32 v57, 5, v{vL}
        v_bfe_u32 v58, v{vL}, 4, 1
        v_lshl_or_b32 v57, v58, 1, v57
        v_lshl_or_b32 v57, s{sW}, 2, v57
        v_and_b32 v58, 7, v{vL}
        v_xor_b32 v57, v57, v58
        v_lshlrev_b32 v57, 4, v57
        v_lshl_or_b32 v57, v56, 8, v57
        v_lshrrev_b32 v58, 4, v{vL}
        v_xor_b32 v59, v56, v58
        v_lshlrev_b32 v59, 4, v59
        v_lshl_or_b32 v59, v58, 8, v59
        v_add_u32 v59, s{sWb}, v59
        v_xor_b32 v60, 64, v59
        v_lshlrev_b32 v56, 4, v56
        v_lshl_or_b32 v58, v58, 12, v56
        s_lshl2_add_u32 s{sT0}, s{sRB}, s{sW}
        s_lshl_b32 s{sT0}, s{sT0}, 16
        s_lshl_b32 s{sT1}, s{sG}, 8
        s_add_u32 s{sT0}, s{sT0}, s{sT1}
        s_add_u32 s{sT0}, s{sT0}, 2048
        s_add_u32 s{sT1}, s{sT0}, 0x4000
        s_add_u32 s{sT2}, s{sT0}, 0x8000
        s_add_u32 s{sT3}, s{sT0}, 0xc000
        """.strip().split("\n")
    if not opt.epig: e([x.strip() for x in epi])
    g.stamp("p3 done")
    first = ["WAITSINCE Lqi_b: Lqc:"] if opt.ap else [opoll, "s_waitcnt vmcnt(0)"]
    e(["Lqc:", f"s_cmp_lg_u32 s{sW}, 3", "s_cbranch_scc1 Lnopoll"] + first + g.check(1, vPoll, opoll) + ["Lnopoll:", Wt(lg=["own", "stg2"]), "s_barrier"])
    g.stamp("o flags")
    lead = []
    for c in range(2, 2 + opt.xurg): lead += burst(dmaXo(c))
    e(take_vm(lead, 2))
    og = {-1: take_vm(lead, opt.xpre)}
    i = 0
    while lead: og[i] = take_vm(lead); i += 1
    items = [(0, 8 * c - 8, dmaXo(c)) for c in range(2 + opt.xurg, 10)] + [(8 * (c - 7), 8 * c - 8, dmaXo(c)) for c in range(10, 16)]
    items += [(0, 8 * c - 8, dmaWo(c, WSL[c] * 16384)) for c in range(7, 12) if c not in opt.win]
    items += [(8 * (c - 4), 8 * c - 8, dmaWo(c, WSL[c] * 16384)) for c in range(12, 16)]
    while items:
        av = [it for it in items if it[0] <= i]
        if not av: i = min(it[0] for it in items); continue
        it = min(av, key=lambda it: it[1]); items.remove(it)
        pre, ops, _ = it[2]
        og.setdefault(i, []).extend(pre + ([] if len(pre) > 1 else ["s_nop 0"]))
        for op in ops:
            og.setdefault(i, []).append(op); last = i
            i += opt.pace if it[1] - i > opt.slack else 1
        assert last < it[1] - 6, (last, it[1])
    if opt.epig:
        for n, x in enumerate(epi): og.setdefault(n * 8 // len(epi), []).append(x.strip())
    if opt.ofine:
        for c in range(1, 16): og.setdefault(8 * c - 1, []).extend(g.stampl(f"oc{c}"))
    if opt.fine:
        for i, nm in ((13, "o c2"), (45, "o c5"), (85, "o c10")): og.setdefault(i, []).extend(g.stampl(nm))
    for n, x in enumerate(p3st): og.setdefault(opt.dpos + opt.dsp * n, []).append(VM(x))
    grp = {}
    for i in range(2 * opt.walk, 128, 3 * opt.walk) if opt.walk else []: og.setdefault(i | 1, []).extend(g.pad())
    rest = gemm(g, "o", lambda c: ("a", aW(c)) if c < 7 else ((vA + WSL[c] // 3, vA2 + WSL[c] // 3), (WSL[c] % 3) * 16384),
                lambda c: (vBm, c * 8192, (0, 256, 2048, 2304)) if c < 2 else (vB, ((c - 2) % 8) * 8192, (0, 256, 2048, 2304)),
                {c: [f"oX{c}"] + ([f"oW{c}"] if c > 6 else []) for c in range(2, 16)}, grp, og)
    assert not rest
    g.stamp("out gemm done")
    e("s_nop 1")
    for n in range(4):
        for i in range(4): e(f"v_cvt_pk_bf16_f32 v{64+4*n+i}, v{8*n+2*i}, v{8*n+2*i+1}")
        if n: e([f"v_permlane16_swap_b32 v{60+4*n+i}, v{62+4*n+i}" for i in range(2)] + [LG(f"ds_write_b128 v{57 if opt.wgepi else 56}, {vr(60+4*n,4)} offset:{(4096 if opt.wgepi else 1024)*(n-1)}", f"ew{n-1}")])
    e(["s_nop 0"] + [f"v_permlane16_swap_b32 v{76+i}, v{78+i}" for i in range(2)] + [LG(f"ds_write_b128 v{57 if opt.wgepi else 56}, {vr(76,4)} offset:{12288 if opt.wgepi else 3072}", "ew3")])
    if opt.wgepi: e([Wt(lg="ew3"), "s_barrier"])
    for n in range(4):
        e(Wt(lg=f"ew{n}"))
        e(LG(f"ds_read_b128 {vr(80+4*n,4)}, v{59+(n&1) if opt.wgepi else 59} offset:{1024*n}", f"er{n}"))
    for n in range(4):
        e(Wt(lg=f"er{n}"))
        e(f"buffer_store_dwordx4 {vr(80+4*n,4)}, v58, {sr(OUT,4)}, s{sT0+n} offen {opt.out_sc}")
    if opt.stamps:
        e("s_waitcnt vmcnt(0)")
        g.stamp("end")
    if opt.echo:
        e("s_waitcnt vmcnt(0)")
        g.stamp("fin")
        e("""
        s_memrealtime s[6:7]
        s_waitcnt lgkmcnt(0)
        s_lshl_b32 s9, s9, 2
        s_add_u32 s9, s9, s6
        Lecho:
        s_sleep 2
        s_memrealtime s[6:7]
        s_waitcnt lgkmcnt(0)
        s_sub_u32 s10, s6, s9
        s_cmp_lt_i32 s10, 0
        s_cbranch_scc1 Lecho
        """)
    e("Lend:\ns_endpgm")
    e(g.tail)
    e(f"""
    Lfb:
    s_mov_b32 s{sMode}, 1
    v_mov_b32 v{vT0}, 0xff800000
    v_mov_b32 v{vT1}, 0xff800000
    s_mov_b32 s{sC}, 0
    Lfb1:
    buffer_load_dwordx4 {vr(K[0],4)}, v{v16}, {sr(WS,4)}, s{sC} offen sc1
    buffer_load_dwordx4 {vr(K[0]+4,4)}, v{v16}, {sr(WS,4)}, s{sC} offen offset:1024 sc1
    s_waitcnt vmcnt(0)
    """)
    for qb in range(2):
        e(f"v_mfma_f32_32x32x16_bf16 {vr(S[qb],16)}, {vr(K[0],4)}, {vr(Q[qb],4)}, 0")
        e(f"v_mfma_f32_32x32x16_bf16 {vr(S[qb],16)}, {vr(K[0]+4,4)}, {vr(Q[qb]+4,4)}, {vr(S[qb],16)}")
    e("s_nop 15")
    e(maxtree(vT0, S[0], False) + maxtree(vT1, S[1], False))
    e(f"s_add_u32 s{sC}, s{sC}, 4096\ns_cmp_lt_u32 s{sC}, 0x40000\ns_cbranch_scc1 Lfb1")
    finish_max(0.0, [])
    for i in range(O[0], Lr[1] + 4, 2): e(f"v_mov_b64 {vr(i,2)}, 0")
    e(f"s_mov_b32 s{sC}, 0\nLfb2:")
    for k in range(2):
        e(f"buffer_load_dwordx4 {vr(K[0]+4*k,4)}, v{v16}, {sr(WS,4)}, s{sC} offen offset:{1024*k} sc1")
        e(f"buffer_load_dwordx4 {vr(V[0]+4*k,4)}, v{v16}, {sr(WS,4)}, s{sC} offen offset:{2048+1024*k} sc1")
    e("s_waitcnt vmcnt(0)")
    for qb in range(2):
        e(f"v_mfma_f32_32x32x16_bf16 {vr(S[qb],16)}, {vr(K[0],4)}, {vr(Q[qb],4)}, {vr(M[qb],16)}")
        e(f"v_mfma_f32_32x32x16_bf16 {vr(S[qb],16)}, {vr(K[0]+4,4)}, {vr(Q[qb]+4,4)}, {vr(S[qb],16)}")
    e("s_nop 15")
    for i in range(32): e(f"v_exp_f32 v{i}, v{i}")
    e("s_nop 1")
    for qb in range(2):
        for u in range(2):
            e(f"v_smfmac_f32_32x32x32_bf16 {vr(O[qb],16)}, {vr(V[0]+4*u,4)}, {vr(S[qb]+8*u,8)}, v{IDX}")
            e(f"v_smfmac_f32_16x16x64_bf16 {vr(Lr[qb],4)}, {vr(ONES,4)}, {vr(S[qb]+8*u,8)}, v{IDX}")
    e(f"""
    s_add_u32 s{sC}, s{sC}, 4096
    s_cmp_lt_u32 s{sC}, 0x40000
    s_cbranch_scc1 Lfb2
    s_nop 15
    s_branch La_norm
    Lcode_end:
    """)
    txt = g.text()
    for i, l in enumerate(txt):
        if "PADNEXT" in l:
            k = int(l.split("PADNEXT")[1]) + 4
            txt[i] = l.split("PADNEXT")[0] + (f"Lpad{k}" if k < g.npad else "Lwalk_ret")
    for i, l in enumerate(txt):
        if "WAITSINCE" in l:
            _, x, y = l.split()
            txt[i] = f" s_waitcnt vmcnt({sum(1 for z in txt[txt.index(x):txt.index(y)] if z.startswith(' buffer_load'))})"
    a = txt.index("Lkv_done:"); b = txt.index("Lkvflag_b:")
    nld = sum(1 for l in txt[a:b] if l.startswith(" buffer_load"))
    txt[txt.index(" KVFLAGWAIT")] = f" s_waitcnt vmcnt({nld})"
    return txt

def table_text():
    b = TB.blob(); L = []
    for i in range(0, len(b), 128):
        ch = b[i:i + 128]
        L.append(".octa " + ",".join("0x%x" % int.from_bytes(ch[j:j + 16], "little") for j in range(0, 128, 16)))
    return "\n".join(L)

NOTES = """;
;  3. Attention over all 2048 keys: S^T = K Q^T with -m as the C operand, v_exp_f32 in place, P V and the row sums with the
; Hand-offs between workgroups go through d_ws: sc1 stores, vmcnt wait, sc1 flag; consumers poll with sc1 loads, then load
"""
def build(opt):
    ref = open(f"cdna_kernels/{NAME}.s.ref").read().split("\n")
    head = [l for l in ref if l.startswith(";") and "@launch" not in l]
    s = "\n".join(head) + "\n; @launch grid=(256,1,1) block=(256,1,1) lds=163840\n" + NOTES
    s += f""".amdgcn_target "amdgcn-amd-amdhsa--gfx950"
.text
.globl {NAME}_kernel
.p2align 8
.type {NAME}_kernel,@function
"""
    s += "\n".join(gen(opt)) + "\n"
    s += f""".fill {2048 if opt.exp==4 else 256}, 4, 0xbf800000
s_endpgm
.section .rodata,"a"
.p2align 6
.amdhsa_kernel {NAME}_kernel
  .amdhsa_next_free_vgpr 512
  .amdhsa_next_free_sgpr 102
  .amdhsa_accum_offset 256
  .amdhsa_group_segment_fixed_size 0
  .amdhsa_kernarg_size 104
  .amdhsa_user_sgpr_count 2
  .amdhsa_user_sgpr_kernarg_segment_ptr 1
  .amdhsa_system_sgpr_workgroup_id_x 1
.end_amdhsa_kernel
.p2align 8
fn_tables:
"""
    s += table_text() + "\n"
    return s

if __name__ == "__main__":
    opt = Opt()
    out = f"cdna_kernels/{NAME}.s"
    for a in sys.argv[1:]:
        if a.startswith("-o"): out = a[2:]
        else:
            k, v = a.split("=")
            cur = getattr(opt, k)
            setattr(opt, k, type(cur)(int(v)) if isinstance(cur, (bool, int)) else type(cur)(v))
    s = build(opt)
    open(out, "w").write(s)
    if opt.stamps: open(out + ".names", "w").write("\n".join(opt.names))
    print(out, len(s), "bytes")
```
